```python
import torch

def _softmax(x, axis=-1):
    return torch.softmax(x, dim=axis)
def _gelu(x):
    return torch.nn.functional.gelu(x, approximate="tanh")
def _silu(x):
    return torch.nn.functional.silu(x)
def _sigmoid(x):
    return torch.sigmoid(x)
def _layernorm(x, axis=-1, eps=1e-5):
    m = x.mean(dim=axis, keepdim=True)
    v = x.var(dim=axis, keepdim=True, unbiased=False)
    return (x - m) / torch.sqrt(v + eps)
def _scatter_add(tgt, idx, src, axis=0):
    return tgt.clone().index_add_(axis, idx, src)
def _segment_sum(src, seg, n):
    out = torch.zeros((n,) + src.shape[1:], dtype=src.dtype)
    return out.index_add_(0, seg, src)
def _pad(x, pw):
    flat = tuple(v for pair in reversed(pw) for v in pair)
    return torch.nn.functional.pad(x, flat)

kernel_name = 'concat_heads__compressed_kv_cla__compressed_kv_cla__decode'

def setup_inputs():

    _w = (lambda a: (lambda t: t.to(torch.bfloat16) if t.is_floating_point() else t)(torch.as_tensor(a)))
    def _A_setup():
        B, H, Sq, Sk, D, M = 2, 16, 1, 4096, 256, 448
        Dc = 4 * D
        return {
            "x": _w((lambda *s: torch.randn(*s, dtype=torch.bfloat16) * 3.2)(B, Sq, M)),
            "c_kv": _w((lambda *s: torch.randn(*s, dtype=torch.bfloat16) * 0.05)(B, Sk, Dc)),
            "w_q": _w((lambda *s: torch.randn(*s, dtype=torch.bfloat16) * 3.2)(M, H, D) * (M ** -0.5)),
            "w_uk": _w((lambda *s: torch.randn(*s, dtype=torch.bfloat16) * 3.2)(Dc, H, D) * (Dc ** -0.5)),
            "w_uv": _w((lambda *s: torch.randn(*s, dtype=torch.bfloat16) * 0.05)(Dc, H, D) * (Dc ** -0.5)),
            "w_o": _w((lambda *s: torch.randn(*s, dtype=torch.bfloat16) * 0.05)(H, D, M) * ((H * D) ** -0.5)),
        }
    _A_in = _A_setup()

    def _B_setup():
        B, H, Sq, Sk, D, M = 2, 16, 1, 4096, 256, 448
        Dc = 4 * D
        return {
            "x": _w((lambda *s: torch.randn(*s, dtype=torch.bfloat16) * 3.2)(B, Sq, M)),
            "c_kv": _w((lambda *s: torch.randn(*s, dtype=torch.bfloat16) * 0.05)(B, Sk, Dc)),
            "w_q": _w((lambda *s: torch.randn(*s, dtype=torch.bfloat16) * 3.2)(M, H, D) * (M ** -0.5)),
            "w_uk": _w((lambda *s: torch.randn(*s, dtype=torch.bfloat16) * 3.2)(Dc, H, D) * (Dc ** -0.5)),
            "w_uv": _w((lambda *s: torch.randn(*s, dtype=torch.bfloat16) * 0.05)(Dc, H, D) * (Dc ** -0.5)),
            "w_o": _w((lambda *s: torch.randn(*s, dtype=torch.bfloat16) * 0.05)(H, D, M) * ((H * D) ** -0.5)),
        }
    _B_in = _B_setup()

    return {
        "A_x": _A_in["x"],
        "A_c_kv": _A_in["c_kv"],
        "A_w_q": _A_in["w_q"],
        "A_w_uk": _A_in["w_uk"],
        "A_w_uv": _A_in["w_uv"],
        "A_w_o": _A_in["w_o"],
        "B_x": _B_in["x"],
        "B_c_kv": _B_in["c_kv"],
        "B_w_q": _B_in["w_q"],
        "B_w_uk": _B_in["w_uk"],
        "B_w_uv": _B_in["w_uv"],
        "B_w_o": _B_in["w_o"],
    }

def reference(A_x, A_c_kv, A_w_q, A_w_uk, A_w_uv, A_w_o, B_x, B_c_kv, B_w_q, B_w_uk, B_w_uv, B_w_o):
    def _A_ref(x, c_kv, w_q, w_uk, w_uv, w_o):
        B, Sq, M = x.shape[0], x.shape[1], x.shape[2]
        Sk = c_kv.shape[1]
        H, D = w_q.shape[1], w_q.shape[2]
        q = torch.einsum("bqm,mhd->bhqd", x, w_q)
        k = torch.einsum("bkc,chd->bhkd", c_kv, w_uk)
        v = torch.einsum("bkc,chd->bhkd", c_kv, w_uv)
        scores = torch.einsum("bhqd,bhkd->bhqk", q, k) * (D ** -0.5)
        off = Sk - Sq
        qi = torch.arange(Sq)[:, None]
        kj = torch.arange(Sk)[None, :]
        cmask = kj <= (qi + off)
        scores = torch.where(cmask[None, None], scores, -1e9)
        p = _softmax(scores, axis=-1)
        ctx = torch.einsum("bhqk,bhkd->bhqd", p, v)
        return torch.einsum("bhqd,hdm->bqm", ctx, w_o)

    def _B_ref(x, c_kv, w_q, w_uk, w_uv, w_o):
        B, Sq, M = x.shape[0], x.shape[1], x.shape[2]
        Sk = c_kv.shape[1]
        H, D = w_q.shape[1], w_q.shape[2]
        q = torch.einsum("bqm,mhd->bhqd", x, w_q)
        k = torch.einsum("bkc,chd->bhkd", c_kv, w_uk)
        v = torch.einsum("bkc,chd->bhkd", c_kv, w_uv)
        scores = torch.einsum("bhqd,bhkd->bhqk", q, k) * (D ** -0.5)
        off = Sk - Sq
        qi = torch.arange(Sq)[:, None]
        kj = torch.arange(Sk)[None, :]
        cmask = kj <= (qi + off)
        scores = torch.where(cmask[None, None], scores, -1e9)
        p = _softmax(scores, axis=-1)
        ctx = torch.einsum("bhqk,bhkd->bhqd", p, v)
        return torch.einsum("bhqd,hdm->bqm", ctx, w_o)

    a = _A_ref(A_x, A_c_kv, A_w_q, A_w_uk, A_w_uv, A_w_o)
    b = _B_ref(B_x, B_c_kv, B_w_q, B_w_uk, B_w_uv, B_w_o)
    return torch.concatenate([a, b], axis=-1)
```

```python
import sys, argparse
ap = argparse.ArgumentParser()
ap.add_argument("--mode", default="multi")
ap.add_argument("--nt", type=int, default=0)
ap.add_argument("--ntkv", type=int, default=0)
args = ap.parse_args()
MODE = args.mode
PERSIST = MODE == "persist"
NT = " nt" if args.nt else ""
NTKV = " nt" if args.ntkv else ""

KN = "concat_heads__compressed_kv_cla__compressed_kv_cla__decode_kernel"
out = []
def a(s): out.append("    " + s)
def lab(s): out.append(s + ":")
def c(s): out.append("    ; " + s)

QA = 0
PC = 1 << 20
ST = 10 << 20
PO = 11 << 20
F3 = 12 << 20
F5 = (12 << 20) + 4096
WS_USED = 13 << 20
X0 = 131072
QL = X0 + 16384
CL = 0
P4 = 4096
P5 = 16384
LDS_BYTES = 163840

sW, sP, sH, sCs, sJ = "s3", "s4", "s5", "s6", "s7"
SX, SKV, SWQ, SUK, SUV, SWO, SWS, SOUT, SDBG = ["s[%d:%d]" % (i, i + 3) for i in range(8, 44, 4)]
sSel0, sSel1 = "s44", "s45"
vLane, vR, vG = "v1", "v2", "v3"
def v(i, n=1): return "v%d" % i if n == 1 else "v[%d:%d]" % (i, i + n - 1)

SC1 = " sc1" if PERSIST else ""

def prologue(nwg):
    a("s_cmp_ge_u32 s2, %d" % nwg)
    a("s_cbranch_scc1 L_end")
    a("s_load_dwordx16 s[60:75], s[0:1], 0")
    a("s_load_dwordx8 s[76:83], s[0:1], 64")
    a("s_load_dwordx4 s[84:87], s[0:1], 96")
    a("s_load_dwordx2 s[88:89], s[0:1], 112")
    a("v_and_b32 %s, 63, v0" % vLane)
    a("v_lshrrev_b32 v4, 6, v0")
    a("v_and_b32 %s, 15, v0" % vR)
    a("v_readfirstlane_b32 %s, v4" % sW)
    a("v_bfe_u32 %s, v0, 4, 2" % vG)
    a("s_and_b32 s46, s2, 7")
    a("s_lshr_b32 s47, s2, 3")
    a("s_lshr_b32 %s, s46, 2" % sP)
    a("s_and_b32 s46, s46, 3")
    a("s_lshl_b32 %s, s46, 2" % sH)
    a("s_lshr_b32 s48, s47, 3")
    a("s_add_u32 %s, %s, s48" % (sH, sH))
    a("s_and_b32 %s, s47, 7" % sCs)
    a("s_lshl_b32 %s, s46, 5" % sJ)
    a("s_add_u32 %s, %s, s47" % (sJ, sJ))
    a("s_mov_b32 %s, 0x05040100" % sSel0)
    a("s_mov_b32 %s, 0x07060302" % sSel1)
    sizes = [1792, 16777216, 3670016, 8388608, 8388608, 3670016]
    for k in range(6):
        a("s_mov_b32 s%d, %d" % (8 + 4 * k + 2, sizes[k]))
        a("s_mov_b32 s%d, 0x20000" % (8 + 4 * k + 3))
    a("s_mov_b32 s34, %d" % WS_USED); a("s_mov_b32 s35, 0x20000")
    a("s_mov_b32 s38, 3584"); a("s_mov_b32 s39, 0x20000")
    a("s_mov_b32 s42, 256"); a("s_mov_b32 s43, 0x20000")
    a("s_cmp_eq_u32 %s, 0" % sP)
    a("s_waitcnt lgkmcnt(0)")
    for k in range(6):
        a("s_cselect_b64 s[%d:%d], s[%d:%d], s[%d:%d]" % (8 + 4 * k, 9 + 4 * k, 60 + 2 * k, 61 + 2 * k, 72 + 2 * k, 73 + 2 * k))
    a("s_mov_b64 s[32:33], s[88:89]")
    a("s_mov_b64 s[36:37], s[84:85]")
    a("s_mov_b64 s[40:41], s[86:87]")

def perms(T, L, i):
    k, e = i >> 1, i & 1
    for jj in range(4):
        a("v_perm_b32 %s, %s, %s, %s" % (v(T + jj), v(L + 4 * (2 * jj + 1) + k), v(L + 4 * (2 * jj) + k), sSel1 if e else sSel0))

def block_mfma(L, B, D, first, T0=80, T1=84):
    Ts = [T0, T1]
    perms(Ts[0], L, 0)
    for i in range(8):
        if i < 7: perms(Ts[(i + 1) & 1], L, i + 1)
        else: a("s_nop 1")
        a("v_mfma_f32_16x16x32_bf16 %s, %s, %s, %s" % (v(D + 4 * i, 4), v(Ts[i & 1], 4), v(B, 4), "0" if first else v(D + 4 * i, 4)))

def transpose_inplace(L, t0, t1):
    def pr(jj, k): return (L + 8 * jj + k, L + 8 * jj + 4 + k)
    for jj in range(4):
        lo, hi = pr(jj, jj)
        a("v_perm_b32 %s, %s, %s, %s" % (v(t0), v(hi), v(lo), sSel0))
        a("v_perm_b32 %s, %s, %s, %s" % (v(hi), v(hi), v(lo), sSel1))
        a("v_mov_b32 %s, %s" % (v(lo), v(t0)))
    for jj in range(4):
        for k in range(jj + 1, 4):
            A0, A1 = pr(jj, k); B0, B1 = pr(k, jj)
            a("v_perm_b32 %s, %s, %s, %s" % (v(t0), v(A1), v(A0), sSel0))
            a("v_perm_b32 %s, %s, %s, %s" % (v(t1), v(A1), v(A0), sSel1))
            a("v_perm_b32 %s, %s, %s, %s" % (v(A0), v(B1), v(B0), sSel0))
            a("v_perm_b32 %s, %s, %s, %s" % (v(A1), v(B1), v(B0), sSel1))
            a("v_mov_b32 %s, %s" % (v(B0), v(t0)))
            a("v_mov_b32 %s, %s" % (v(B1), v(t1)))

def exec_n2():
    a("s_mov_b32 exec_lo, 0x00030003"); a("s_mov_b32 exec_hi, 0x00030003")
def exec_all():
    a("s_mov_b64 exec, -1")

def issue_uk():
    c("w_uk loads -> v[16:47]: row 128cs+16w+r, cols s*32+8g")
    a("v_lshlrev_b32 v6, 13, %s" % vR)
    a("v_lshl_add_u32 v6, %s, 4, v6" % vG)
    a("s_lshl_b32 s48, %s, 20" % sCs)
    a("s_lshl_b32 s49, %s, 17" % sW)
    a("s_add_u32 s48, s48, s49")
    a("s_lshl_b32 s49, %s, 9" % sH)
    a("s_add_u32 s48, s48, s49")
    for s in range(8):
        a("buffer_load_dwordx4 %s, v6, %s, s48 offen offset:%d%s" % (v(16 + 4 * s, 4), SUK, 64 * s, NT))

def issue_dma():
    c("c_kv LDS-DMA: back wave w: 64 keys x 256B slab; instr t = keys 4t..4t+3")
    a("s_sub_u32 s50, %s, 8" % sW)
    for tq in range(4):
        a("v_add_u32 v120, %d, %s" % (4 * tq, vG))
        a("v_and_b32 v121, 7, v120")
        a("v_lshlrev_b32 v121, 1, v121")
        a("v_lshrrev_b32 v122, 3, v120")
        a("v_or_b32 v121, v121, v122")
        a("v_xor_b32 v121, v121, %s" % vR)
        a("v_lshlrev_b32 v121, 4, v121")
        a("v_lshl_add_u32 %s, v120, 11, v121" % v(124 + tq))
    a("s_lshl_b32 s48, %s, 17" % sJ)
    a("s_lshl_b32 s49, s50, 8")
    a("s_add_u32 s48, s48, s49")
    a("s_lshl_b32 s51, s50, 14")
    for t in range(16):
        a("s_mov_b32 m0, s51")
        a("s_add_u32 s51, s51, 1024")
        a("buffer_load_dwordx4 %s, %s, s48 offen%s lds" % (v(124 + (t & 3)), SKV, NTKV))
        if t & 3 == 3 and t < 15:
            a("s_add_u32 s48, s48, 32768")

def issue_back_weights():
    c("w_uv -> v[16:47], w_o -> v[48:111]   (s50 = w')")
    a("v_lshlrev_b32 v6, 15, %s" % vG)
    a("v_lshl_add_u32 v6, %s, 4, v6" % vR)
    a("s_lshr_b32 s48, %s, 1" % sCs)
    a("s_lshl_b32 s48, s48, 21")
    a("s_lshl_b32 s49, s50, 18")
    a("s_add_u32 s48, s48, s49")
    a("s_lshl_b32 s49, %s, 9" % sH)
    a("s_add_u32 s48, s48, s49")
    a("s_and_b32 s52, %s, 1" % sCs)
    a("s_lshl_b32 s49, s52, 8")
    a("s_add_u32 s48, s48, s49")
    for j in range(8):
        a("buffer_load_dwordx4 %s, v6, %s, s48 offen%s" % (v(16 + 4 * j, 4), SUV, NT))
        a("s_add_u32 s48, s48, %d" % (8192 if j != 3 else 13 * 8192))
    a("v_mul_u32_u24 v6, 1792, %s" % vG)
    a("v_lshl_add_u32 v6, %s, 4, v6" % vR)
    a("s_lshl_b32 s48, %s, 8" % sH)
    a("s_lshl_b32 s49, s52, 7")
    a("s_add_u32 s48, s48, s49")
    a("s_and_b32 s49, s50, 3")
    a("s_lshl_b32 s49, s49, 5")
    a("s_add_u32 s48, s48, s49")
    a("s_mul_i32 s48, s48, 896")
    a("s_lshr_b32 s53, s50, 2")
    a("s_lshl_b32 s49, s53, 9")
    a("s_add_u32 s48, s48, s49")
    a("v_mov_b32 v7, v6")
    a("s_cmp_eq_u32 s53, 1")
    a("s_cbranch_scc0 L_nomask%d" % len(out))
    lbl = "L_nomask%d" % (len(out) - 1)
    a("v_cmp_lt_u32 vcc, 7, %s" % vR)
    a("v_mov_b32 v8, 0x7fff0000")
    a("s_nop 1")
    a("v_cndmask_b32 v7, v6, v8, vcc")
    lab(lbl)
    for j in range(8):
        a("buffer_load_dwordx4 %s, v6, %s, s48 offen" % (v(48 + 4 * j, 4), SWO))
        a("buffer_load_dwordx4 %s, v7, %s, s48 offen offset:256" % (v(80 + 4 * j, 4), SWO))
        if j < 7:
            a("s_add_u32 s48, s48, %d" % (8 * 896 if j != 3 else (896 - 24 * 896) & 0xffffffff))

def s1_s2():
    c("================ S1: q = x . w_q[:,h,:]  (16 waves, 2 blocks of 32 rows x 128 cols each)")
    a("s_and_b32 s46, %s, 1" % sW)
    a("s_lshr_b32 s47, %s, 1" % sW)
    a("v_lshlrev_b32 v4, 16, %s" % vG)
    a("v_lshl_add_u32 v4, %s, 4, v4" % vR)
    a("v_and_b32 v5, 1, %s" % vR)
    a("v_mul_u32_u24 v5, 896, v5")
    a("v_lshl_add_u32 v5, %s, 4, v5" % vG)
    a("s_lshl_b32 s48, s47, 6")
    a("buffer_load_dwordx4 v[8:11], v5, %s, s48 offen" % SX)
    a("buffer_load_dwordx4 v[12:15], v5, %s, s48 offen offset:512" % SX)
    a("s_lshl_b32 s48, s47, 18")
    a("s_lshl_b32 s49, %s, 9" % sH)
    a("s_add_u32 s48, s48, s49")
    a("s_lshl_b32 s49, s46, 8")
    a("s_add_u32 s48, s48, s49")
    for blk in range(2):
        for j in range(8):
            a("buffer_load_dwordx4 %s, v4, %s, s48 offen" % (v(16 + 32 * blk + 4 * j, 4), SWQ))
            a("s_add_u32 s48, s48, %d" % (8192 if not (blk == 0 and j == 7) else 8 * 262144 - 7 * 8192))
    if PERSIST:
        c("zero own flags (front wave 0)")
    a("s_waitcnt vmcnt(8)")
    block_mfma(16, 8, 88, True)
    a("s_cmp_ge_u32 %s, 8" % sW)
    a("s_cbranch_scc1 L_s1_back")
    issue_uk()
    a("s_waitcnt vmcnt(8)")
    a("s_branch L_s1_join")
    lab("L_s1_back")
    if PERSIST:
        issue_dma()
        a("s_waitcnt vmcnt(16)")
    else:
        a("s_waitcnt vmcnt(0)")
    lab("L_s1_join")
    block_mfma(48, 12, 88, False)
    a("s_lshl_b32 s48, %s, 10" % sW)
    a("s_add_u32 s48, s48, %d" % X0)
    a("v_lshlrev_b32 v6, 9, %s" % vR)
    a("v_lshl_add_u32 v6, %s, 7, v6" % vG)
    a("v_add_u32 v6, s48, v6")
    a("s_nop 7")
    exec_n2()
    for i in range(8):
        a("ds_write_b128 v6, %s offset:%d" % (v(88 + 4 * i, 4), 16 * i))
    exec_all()
    a("s_waitcnt lgkmcnt(0)")
    a("s_barrier")
    a("s_cmp_ge_u32 %s, 8" % sW)
    a("s_cbranch_scc1 L_s1_backdone")
    c("front: sum 8 partials for (b,d) = tid")
    a("v_bfe_u32 v6, v0, 7, 1")
    a("v_lshlrev_b32 v6, 10, v6")
    a("v_bfe_u32 v7, v0, 8, 1")
    a("v_lshl_add_u32 v6, v7, 9, v6")
    a("v_bfe_u32 v7, v0, 5, 2")
    a("v_lshl_add_u32 v6, v7, 7, v6")
    a("v_and_b32 v7, 7, v0")
    a("v_lshl_add_u32 v6, v7, 4, v6")
    a("v_bfe_u32 v7, v0, 3, 2")
    a("v_lshl_add_u32 v6, v7, 2, v6")
    a("v_add_u32 v6, %d, v6" % X0)
    for k in range(8):
        a("ds_read_b32 %s, v6 offset:%d" % (v(88 + k), 2048 * k))
    a("v_lshlrev_b32 v7, 1, v0")
    a("v_add_u32 v7, %d, v7" % QL)
    a("s_waitcnt lgkmcnt(0)")
    a("v_add_f32 v88, v88, v89"); a("v_add_f32 v90, v90, v91"); a("v_add_f32 v92, v92, v93"); a("v_add_f32 v94, v94, v95")
    a("v_add_f32 v88, v88, v90"); a("v_add_f32 v92, v92, v94"); a("v_add_f32 v88, v88, v92")
    a("v_cvt_pk_bf16_f32 v88, v88, v88")
    a("ds_write_b16 v7, v88")
    a("s_waitcnt lgkmcnt(0)")
    a("s_barrier")
    c("================ S2: q_abs[b][c] for c = 128cs+16w+(4g+ii)")
    a("v_and_b32 v6, 1, %s" % vR)
    a("v_lshlrev_b32 v6, 9, v6")
    a("v_lshl_add_u32 v6, %s, 4, v6" % vG)
    a("v_add_u32 v6, %d, v6" % QL)
    for s in range(8):
        a("ds_read_b128 %s, v6 offset:%d" % (v(48 + 4 * s, 4), 64 * s))
    a("s_waitcnt vmcnt(0) lgkmcnt(0)")
    for s in range(8):
        a("v_mfma_f32_16x16x32_bf16 v[88:91], %s, %s, %s" % (v(16 + 4 * s, 4), v(48 + 4 * s, 4), "0" if s == 0 else "v[88:91]"))
    a("v_lshlrev_b32 v6, 15, %s" % vR)
    a("v_lshl_add_u32 v6, %s, 3, v6" % vG)
    a("s_lshl_b32 s48, %s, 16" % sP)
    a("s_lshl_b32 s49, %s, 12" % sCs)
    a("s_add_u32 s48, s48, s49")
    a("s_lshl_b32 s49, %s, 8" % sH)
    a("s_add_u32 s48, s48, s49")
    a("s_lshl_b32 s49, %s, 5" % sW)
    a("s_add_u32 s48, s48, s49")
    a("s_mov_b32 s49, 0x3db8aa3b")
    a("s_nop 4")
    for k in range(4):
        a("v_mul_f32 %s, s49, %s" % (v(88 + k), v(88 + k)))
    a("v_cvt_pk_bf16_f32 v88, v88, v89")
    a("v_cvt_pk_bf16_f32 v89, v90, v91")
    exec_n2()
    a("buffer_store_dwordx2 v[88:89], v6, %s, s48 offen%s" % (SWS, SC1))
    exec_all()

def s3_front():
    c("================ S3 front wave w: c-slice w")
    a("s_lshr_b32 s48, %s, 6" % sJ)
    a("s_lshl_b32 s49, %s, 1" % sP)
    a("s_add_u32 s48, s48, s49")
    a("s_lshl_b32 s48, s48, 3")
    a("s_add_u32 s48, s48, %s" % sW)
    a("s_lshl_b32 s48, s48, 12")
    a("v_lshlrev_b32 v6, 8, %s" % vR)
    a("v_lshl_add_u32 v6, %s, 6, v6" % vG)
    for s in range(4):
        a("buffer_load_dwordx4 %s, v6, %s, s48 offen offset:%d%s" % (v(16 + 4 * s, 4), SWS, QA + 16 * s, SC1))
    a("s_lshl_b32 s50, %s, 14" % sW)
    a("v_and_b32 v8, 7, %s" % vR)
    a("v_lshlrev_b32 v8, 1, v8")
    a("v_lshrrev_b32 v9, 3, %s" % vR)
    a("v_or_b32 v8, v8, v9")
    a("v_lshlrev_b32 v9, 2, %s" % vG)
    a("v_xor_b32 v8, v8, v9")
    a("v_lshlrev_b32 v9, 8, %s" % vR)
    a("v_add_u32 v9, s50, v9")
    for s in range(4):
        a("v_xor_b32 v10, %d, v8" % s)
        a("v_lshl_add_u32 %s, v10, 4, v9" % v(4 + s))
    a("v_lshrrev_b32 v112, 2, %s" % vR)
    a("v_lshl_add_u32 v112, %s, 2, v112" % vG)
    a("v_and_b32 v113, 7, v112")
    a("v_lshlrev_b32 v113, 1, v113")
    a("v_lshrrev_b32 v114, 3, v112")
    a("v_or_b32 v113, v113, v114")
    a("v_bfe_u32 v114, %s, 1, 1" % vR)
    a("v_xor_b32 v113, v113, v114")
    a("v_lshlrev_b32 v113, 4, v113")
    a("v_and_b32 v114, 1, %s" % vR)
    a("v_lshl_add_u32 v113, v114, 3, v113")
    a("v_lshl_add_u32 v113, v112, 8, v113")
    a("v_add_u32 v113, s50, v113")
    for t in range(8):
        a("v_xor_b32 %s, %d, v113" % (v(8 + t), 32 * t))
    a("v_lshlrev_b32 v113, 4, %s" % vLane)
    a("v_add_u32 v113, %d, v113" % X0)
    a("s_lshl_b32 s48, %s, 12" % sW)
    a("v_add_u32 v112, s48, v113")
    a("s_waitcnt vmcnt(0)")
    def sum_partials(T):
        for k in range(4):
            a("v_add_f32 %s, %s, %s" % (v(80 + k), v(80 + k), v(84 + k)))
            a("v_add_f32 %s, %s, %s" % (v(88 + k), v(88 + k), v(92 + k)))
            a("v_add_f32 %s, %s, %s" % (v(96 + k), v(96 + k), v(100 + k)))
            a("v_add_f32 %s, %s, %s" % (v(104 + k), v(104 + k), v(108 + k)))
        for k in range(4):
            a("v_add_f32 %s, %s, %s" % (v(80 + k), v(80 + k), v(88 + k)))
            a("v_add_f32 %s, %s, %s" % (v(96 + k), v(96 + k), v(104 + k)))
        for k in range(4):
            a("v_add_f32 %s, %s, %s" % (v(64 + 4 * T + k), v(80 + k), v(96 + k)))
    def read_partials(T):
        for k in range(8):
            a("ds_read_b128 %s, v113 offset:%d" % (v(80 + 4 * k, 4), 4096 * k + 1024 * T))
    for T in range(4):
        a("s_barrier")
        for s in range(4):
            a("ds_read_b128 %s, %s offset:%d" % (v(32 + 4 * s, 4), v(4 + s), 4096 * T))
        if T > 0:
            read_partials(T - 1)
            a("s_waitcnt lgkmcnt(8)")
        else:
            a("s_waitcnt lgkmcnt(0)")
        for s in range(4):
            a("v_mfma_f32_16x16x32_bf16 v[48:51], %s, %s, %s" % (v(32 + 4 * s, 4), v(16 + 4 * s, 4), "0" if s == 0 else "v[48:51]"))
        if T > 0:
            a("s_waitcnt lgkmcnt(0)")
            sum_partials(T - 1)
        else:
            a("s_nop 7")
        a("ds_write_b128 v112, v[48:51] offset:%d" % (1024 * T))
        a("s_waitcnt lgkmcnt(0)")
    a("s_barrier")
    read_partials(3)
    a("s_waitcnt lgkmcnt(0)")
    sum_partials(3)
    c("softmax over 64 keys for head r: 16 regs x 4 g-groups")
    a("v_max3_f32 v48, v64, v65, v66")
    for k in range(67, 79, 2):
        a("v_max3_f32 v48, v48, %s, %s" % (v(k), v(k + 1)))
    a("v_max_f32 v48, v48, v79")
    for op in ("v_permlane32_swap_b32", "v_permlane16_swap_b32"):
        a("v_mov_b32 v49, v48")
        a("s_nop 1")
        a("%s v48, v49" % op)
        a("s_nop 1")
        a("v_max_f32 v48, v48, v49")
    for k in range(16):
        a("v_sub_f32 %s, %s, v48" % (v(64 + k), v(64 + k)))
    for k in range(16):
        a("v_exp_f32 %s, %s" % (v(64 + k), v(64 + k)))
    a("s_nop 0")
    a("v_add_f32 v49, v64, v65")
    for k in range(66, 80):
        a("v_add_f32 v49, v49, %s" % v(k))
    for op in ("v_permlane32_swap_b32", "v_permlane16_swap_b32"):
        a("v_mov_b32 v50, v49")
        a("s_nop 1")
        a("%s v49, v50" % op)
        a("s_nop 1")
        a("v_add_f32 v49, v49, v50")
    for u in range(2):
        for q in range(4):
            a("v_cvt_pk_bf16_f32 %s, %s, %s" % (v(52 + 4 * u + q), v(64 + 8 * u + 2 * q), v(64 + 8 * u + 2 * q + 1)))
    c("PV^T: D[t] (v[80+4t..]) = V^T tile t x P^T")
    for u in range(2):
        for half in range(2):
            for tt in range(4):
                t = 4 * half + tt
                for jh in range(2):
                    a("ds_read_b64_tr_b16 %s, %s offset:%d" % (v(16 + 4 * t + 2 * jh, 2), v(8 + t), 8192 * u + 4096 * jh))
        for t in range(8):
            if t == 0: a("s_waitcnt lgkmcnt(8)")
            if t == 4: a("s_waitcnt lgkmcnt(0)")
            a("v_mfma_f32_16x16x32_bf16 %s, %s, %s, %s" % (v(80 + 4 * t, 4), v(16 + 4 * t, 4), v(52 + 4 * u, 4), "0" if u == 0 else v(80 + 4 * t, 4)))
    a("v_lshlrev_b32 v6, 18, %s" % vR)
    a("v_lshl_add_u32 v6, %s, 4, v6" % vG)
    a("s_lshl_b32 s48, %s, 22" % sP)
    a("s_lshl_b32 s49, %s, 15" % sW)
    a("s_add_u32 s48, s48, s49")
    a("s_lshl_b32 s49, %s, 6" % sJ)
    a("s_add_u32 s48, s48, s49")
    a("s_add_u32 s48, s48, %d" % PC)
    a("s_nop 3")
    for up in range(4):
        for q in range(4):
            a("v_cvt_pk_bf16_f32 %s, %s, %s" % (v(16 + 4 * up + q), v(80 + 8 * up + 2 * q), v(80 + 8 * up + 2 * q + 1)))
        a("buffer_store_dwordx4 %s, v6, %s, s48 offen%s" % (v(16 + 4 * up, 4), SWS, SC1))
        a("s_add_u32 s48, s48, 8192")
    a("s_cmp_lg_u32 %s, 0" % sW)
    a("s_cbranch_scc1 L_s3_nostat")
    a("v_lshlrev_b32 v6, 10, %s" % vR)
    a("s_lshl_b32 s48, %s, 14" % sP)
    a("s_lshl_b32 s49, %s, 3" % sJ)
    a("s_add_u32 s48, s48, s49")
    a("s_add_u32 s48, s48, %d" % ST)
    a("s_mov_b64 exec, 0xffff")
    a("buffer_store_dwordx2 v[48:49], v6, %s, s48 offen%s" % (SWS, SC1))
    exec_all()
    lab("L_s3_nostat")

def xlane_reduce_2to5(reg, tmp, op):
    for ror in (4, 8):
        a("s_nop 1")
        a("%s_dpp %s, %s, %s row_ror:%d row_mask:0xf bank_mask:0xf" % (op, v(reg), v(reg), v(reg), ror))
    for pop in ("v_permlane16_swap_b32", "v_permlane32_swap_b32"):
        a("v_mov_b32 %s, %s" % (v(tmp), v(reg)))
        a("s_nop 1")
        a("%s %s, %s" % (pop, v(reg), v(tmp)))
        a("s_nop 1")
        a("%s %s, %s, %s" % (op, v(reg), v(reg), v(tmp)))

def combine_front():
    c("================ H3 combine (front wave w'): 128 producers x 64B")
    a("s_lshl_b32 s48, %s, 22" % sP)
    a("s_lshl_b32 s49, %s, 18" % sH)
    a("s_add_u32 s48, s48, s49")
    a("s_lshr_b32 s49, %s, 1" % sCs)
    a("s_lshl_b32 s49, s49, 3")
    a("s_add_u32 s49, s49, %s" % sW)
    a("s_lshl_b32 s49, s49, 13")
    a("s_add_u32 s48, s48, s49")
    a("s_add_u32 s48, s48, %d" % PC)
    a("s_add_u32 s51, s48, 4096")
    a("s_lshl_b32 s49, %s, 4" % sP)
    a("s_add_u32 s49, s49, %s" % sH)
    a("s_lshl_b32 s49, s49, 10")
    a("s_add_u32 s49, s49, %d" % ST)
    a("v_lshlrev_b32 v6, 4, %s" % vLane)
    a("v_lshrrev_b32 v7, 2, %s" % vLane)
    a("v_lshlrev_b32 v7, 3, v7")
    for k in range(8):
        a("buffer_load_dwordx2 %s, v7, %s, s49 offen offset:%d%s" % (v(64 + 2 * k, 2), SWS, 128 * k, SC1))
    for k in range(8):
        a("buffer_load_dwordx4 %s, v6, %s, %s offen offset:%d%s" % (v(16 + 4 * k, 4), SWS, "s48" if k < 4 else "s51", 1024 * (k & 3), SC1))
    a("s_waitcnt vmcnt(8)")
    for b in range(2):
        m = [64 + 2 * (4 * b + k) for k in range(4)]
        M = 80 + b; L = 82 + b
        a("v_max_f32 %s, %s, %s" % (v(M), v(m[0]), v(m[1])))
        a("v_max3_f32 %s, %s, %s, %s" % (v(M), v(M), v(m[2]), v(m[3])))
        xlane_reduce_2to5(M, 84, "v_max_f32")
        for k in range(4):
            a("v_sub_f32 %s, %s, %s" % (v(m[k]), v(m[k]), v(M)))
        for k in range(4):
            a("v_exp_f32 %s, %s" % (v(m[k]), v(m[k])))
        a("s_nop 0")
        a("v_mul_f32 %s, %s, %s" % (v(L), v(m[0]), v(m[0] + 1)))
        for k in range(1, 4):
            a("v_fmac_f32 %s, %s, %s" % (v(L), v(m[k]), v(m[k] + 1)))
        xlane_reduce_2to5(L, 84, "v_add_f32")
        a("v_rcp_f32 %s, %s" % (v(L), v(L)))
    a("s_waitcnt vmcnt(0)")
    for b in range(2):
        for k in range(4):
            kk = 4 * b + k
            e = 64 + 2 * kk
            for q in range(4):
                a("v_lshlrev_b32 v84, 16, %s" % v(16 + 4 * kk + q))
                a("v_and_b32 v85, 0xffff0000, %s" % v(16 + 4 * kk + q))
                if k == 0:
                    a("v_mul_f32 %s, v84, %s" % (v(88 + 8 * b + 2 * q), v(e)))
                    a("v_mul_f32 %s, v85, %s" % (v(88 + 8 * b + 2 * q + 1), v(e)))
                else:
                    a("v_fmac_f32 %s, v84, %s" % (v(88 + 8 * b + 2 * q), v(e)))
                    a("v_fmac_f32 %s, v85, %s" % (v(88 + 8 * b + 2 * q + 1), v(e)))
    for b in range(2):
        for j in range(8):
            a("v_mul_f32 %s, %s, %s" % (v(88 + 8 * b + j), v(88 + 8 * b + j), v(82 + b)))
    a("s_nop 1")
    for j in range(8):
        a("v_permlane32_swap_b32 %s, %s" % (v(88 + j), v(96 + j)))
    a("s_nop 1")
    for j in range(8):
        a("v_add_f32 %s, %s, %s" % (v(88 + j), v(88 + j), v(96 + j)))
    a("s_nop 1")
    for j in range(4):
        a("v_permlane16_swap_b32 %s, %s" % (v(88 + j), v(92 + j)))
    a("s_nop 1")
    for j in range(4):
        a("v_add_f32 %s, %s, %s" % (v(88 + j), v(88 + j), v(92 + j)))
    for ror in (4, 8):
        a("s_nop 1")
        for j in range(4):
            a("v_add_f32_dpp %s, %s, %s row_ror:%d row_mask:0xf bank_mask:0xf" % (v(88 + j), v(88 + j), v(88 + j), ror))
    a("v_cvt_pk_bf16_f32 v88, v88, v89")
    a("v_cvt_pk_bf16_f32 v89, v90, v91")
    a("v_bfe_u32 v6, %s, 5, 1" % vLane)
    a("v_lshlrev_b32 v6, 6, v6")
    a("v_and_b32 v7, 3, %s" % vLane)
    a("v_lshl_add_u32 v6, v7, 4, v6")
    a("v_bfe_u32 v7, %s, 4, 1" % vLane)
    a("v_lshl_add_u32 v6, v7, 3, v6")
    a("s_lshl_b32 s48, %s, 7" % sW)
    a("v_add_u32 v6, s48, v6")
    a("s_mov_b32 exec_lo, 0x000f000f"); a("s_mov_b32 exec_hi, 0x000f000f")
    a("ds_write_b64 v6, v[88:89] offset:%d" % CL)
    exec_all()
    a("s_waitcnt lgkmcnt(0)")

def s4_s5_back():
    c("================ S4/S5 (back wave w' = s50)")
    a("v_and_b32 v6, 1, %s" % vR)
    a("v_lshlrev_b32 v6, 6, v6")
    a("v_lshl_add_u32 v6, %s, 4, v6" % vG)
    a("s_lshl_b32 s48, s50, 7")
    a("v_add_u32 v6, s48, v6")
    a("ds_read_b128 v[4:7], v6 offset:%d" % CL)
    a("v_lshlrev_b32 v8, 9, %s" % vR)
    a("v_lshl_add_u32 v8, %s, 7, v8" % vG)
    a("s_lshl_b32 s48, s50, 10")
    a("v_add_u32 v8, s48, v8")
    a("s_waitcnt lgkmcnt(0)")
    for grp in range(2):
        for q in range(4):
            i = 4 * grp + q
            a("v_mfma_f32_16x16x32_bf16 %s, %s, v[4:7], 0" % (v(112 + 4 * q, 4), v(16 + 4 * i, 4)))
        a("s_nop 7")
        exec_n2()
        for q in range(4):
            a("ds_write_b128 v8, %s offset:%d" % (v(112 + 4 * q, 4), P4 + 16 * (4 * grp + q)))
        exec_all()
        a("s_waitcnt lgkmcnt(0)")
    a("s_barrier")
    a("v_and_b32 v6, 1, %s" % vR)
    a("v_lshlrev_b32 v6, 9, v6")
    a("v_lshl_add_u32 v6, %s, 5, v6" % vG)
    a("s_and_b32 s48, s50, 3")
    a("s_lshl_b32 s48, s48, 7")
    a("v_add_u32 v6, s48, v6")
    for rnd in range(2):
        for kk in range(4):
            for e in range(2):
                a("ds_read_b128 %s, v6 offset:%d" % (v(16 + 8 * kk + 4 * e, 4), P4 + 1024 * (4 * rnd + kk) + 16 * e))
        a("s_waitcnt lgkmcnt(0)")
        for j in range(8):
            a("v_add_f32 %s, %s, %s" % (v(16 + j), v(16 + j), v(24 + j)))
            a("v_add_f32 %s, %s, %s" % (v(32 + j), v(32 + j), v(40 + j)))
        for j in range(8):
            if rnd == 0:
                a("v_add_f32 %s, %s, %s" % (v(112 + j), v(16 + j), v(32 + j)))
            else:
                a("v_add3_f32_dummy")
                out.pop()
                a("v_add_f32 %s, %s, %s" % (v(16 + j), v(16 + j), v(32 + j)))
                a("v_add_f32 %s, %s, %s" % (v(112 + j), v(112 + j), v(16 + j)))
    for q in range(4):
        a("v_cvt_pk_bf16_f32 %s, %s, %s" % (v(4 + q), v(112 + 2 * q), v(112 + 2 * q + 1)))
    a("v_lshlrev_b32 v8, 9, %s" % vR)
    a("v_lshl_add_u32 v8, %s, 7, v8" % vG)
    a("s_and_b32 s48, s50, 3")
    a("s_lshl_b32 s48, s48, 12")
    a("s_lshr_b32 s49, s50, 2")
    a("s_lshl_b32 s49, s49, 11")
    a("s_add_u32 s48, s48, s49")
    a("v_add_u32 v8, s48, v8")
    for blk in range(2):
        D = 16 if blk == 0 else 48
        for i in range(8):
            a("v_mfma_f32_16x16x32_bf16 %s, %s, v[4:7], 0" % (v(D + 4 * i, 4), v(48 + 32 * blk + 4 * i, 4)))
        a("s_nop 7")
        exec_n2()
        for i in range(8):
            a("ds_write_b128 v8, %s offset:%d" % (v(D + 4 * i, 4), P5 + 1024 * blk + 16 * i))
        exec_all()
        if blk == 0: a("s_nop 7")
    a("s_waitcnt lgkmcnt(0)")
    a("s_barrier")
    a("v_subrev_u32 v6, 512, v0")
    a("v_cmp_lt_u32 vcc, 111, v6")
    a("v_subrev_u32 v7, 112, v6")
    a("s_nop 0")
    a("v_cndmask_b32 v7, v6, v7, vcc")
    a("v_cndmask_b32 v8, 0, 1, vcc")
    a("v_lshrrev_b32 v9, 5, v7")
    a("v_lshlrev_b32 v9, 10, v9")
    a("v_lshl_add_u32 v9, v8, 9, v9")
    a("v_and_b32 v10, 31, v7")
    a("v_lshl_add_u32 v9, v10, 4, v9")
    a("v_cmp_gt_u32 vcc, 224, v6")
    a("s_and_saveexec_b64 s[54:55], vcc")
    a("s_cbranch_execz L_s5_skip")
    for k in range(4):
        a("ds_read_b128 %s, v9 offset:%d" % (v(16 + 4 * k, 4), P5 + 4096 * k))
    a("v_lshlrev_b32 v6, 4, v6")
    a("s_lshl_b32 s48, %s, 7" % sP)
    a("s_add_u32 s48, s48, %s" % sJ)
    a("s_mul_i32 s48, s48, 3584")
    a("s_add_u32 s48, s48, %d" % PO)
    a("s_waitcnt lgkmcnt(0)")
    for q in range(4):
        a("v_add_f32 %s, %s, %s" % (v(16 + q), v(16 + q), v(20 + q)))
        a("v_add_f32 %s, %s, %s" % (v(24 + q), v(24 + q), v(28 + q)))
    for q in range(4):
        a("v_add_f32 %s, %s, %s" % (v(16 + q), v(16 + q), v(24 + q)))
    a("buffer_store_dwordx4 v[16:19], v6, %s, s48 offen%s" % (SWS, SC1))
    lab("L_s5_skip")
    a("s_mov_b64 exec, s[54:55]")

def final_reduce(sRho):
    c("================ final reduce: wave handles 16 positions rho*16.. of problem p")
    a("v_lshrrev_b32 v6, 2, %s" % vLane)
    a("v_mul_u32_u24 v6, 3584, v6")
    a("v_and_b32 v7, 3, %s" % vLane)
    a("v_lshl_add_u32 v6, v7, 4, v6")
    a("s_mul_i32 s48, %s, %d" % (sP, 128 * 3584))
    a("s_lshl_b32 s49, %s, 6" % sRho)
    a("s_add_u32 s48, s48, s49")
    a("s_add_u32 s48, s48, %d" % PO)
    for k in range(8):
        a("buffer_load_dwordx4 %s, v6, %s, s48 offen%s" % (v(16 + 4 * k, 4), SWS, SC1))
        a("s_add_u32 s48, s48, %d" % (16 * 3584))
    a("s_cmp_ge_u32 %s, 28" % sRho)
    a("s_cselect_b32 s49, 28, 0")
    a("s_cselect_b32 s51, 896, 0")
    a("s_sub_u32 s49, %s, s49" % sRho)
    a("s_lshl_b32 s49, s49, 4")
    a("s_and_b32 s52, s49, 0xffe0")
    a("s_lshr_b32 s49, s49, 2")
    a("s_and_b32 s49, s49, 7")
    a("s_add_u32 s52, s52, s49")
    a("s_add_u32 s52, s52, s51")
    a("s_mul_i32 s49, %s, 448" % sP)
    a("s_add_u32 s52, s52, s49")
    a("s_lshl_b32 s52, s52, 1")
    a("v_lshlrev_b32 v7, 1, v7")
    a("s_waitcnt vmcnt(0)")
    for q in range(4):
        a("v_add_f32 %s, %s, %s" % (v(16 + q), v(16 + q), v(20 + q)))
        a("v_add_f32 %s, %s, %s" % (v(24 + q), v(24 + q), v(28 + q)))
        a("v_add_f32 %s, %s, %s" % (v(32 + q), v(32 + q), v(36 + q)))
        a("v_add_f32 %s, %s, %s" % (v(40 + q), v(40 + q), v(44 + q)))
    for q in range(4):
        a("v_add_f32 %s, %s, %s" % (v(16 + q), v(16 + q), v(24 + q)))
        a("v_add_f32 %s, %s, %s" % (v(32 + q), v(32 + q), v(40 + q)))
    for q in range(4):
        a("v_add_f32 %s, %s, %s" % (v(16 + q), v(16 + q), v(32 + q)))
    for q in range(4):
        xlane_reduce_2to5(16 + q, 20, "v_add_f32")
    for q in range(4):
        a("v_cvt_pk_bf16_f32 %s, %s, %s" % (v(16 + q), v(16 + q), v(16 + q)))
    a("s_mov_b64 exec, 0xf")
    for q in range(4):
        a("buffer_store_short %s, v7, %s, s52 offen offset:%d" % (v(16 + q), SOUT, 16 * q))
    exec_all()

def kdesc(name, vg=128):
    out.extend(['.section .rodata,"a"', ".p2align 6", ".amdhsa_kernel %s" % name,
        "  .amdhsa_next_free_vgpr %d" % vg, "  .amdhsa_next_free_sgpr 96", "  .amdhsa_accum_offset %d" % vg,
        "  .amdhsa_group_segment_fixed_size 0", "  .amdhsa_kernarg_size 120", "  .amdhsa_user_sgpr_count 2",
        "  .amdhsa_user_sgpr_kernarg_segment_ptr 1", "  .amdhsa_system_sgpr_workgroup_id_x 1", ".end_amdhsa_kernel", ".text"])

def kstart(name):
    out.extend([".globl %s" % name, ".p2align 8", ".type %s,@function" % name, name + ":"])

hdr = [l for l in open("concat_heads__compressed_kv_cla__compressed_kv_cla__decode.s.ref").read().split("\n") if l.startswith(";") and "@launch" not in l]
out.extend(hdr)

def relabel(start, suffix):
    import re
    for i in range(start, len(out)):
        out[i] = re.sub(r"\bL_(\w+)", lambda m: "L_%s_%s" % (m.group(1), suffix), out[i])

if MODE == "multi":
    out.append("; @launch kernel=k1_kernel grid=(256,1,1) block=(1024,1,1) lds=%d" % LDS_BYTES)
    out.append("; @launch kernel=k2_kernel grid=(256,1,1) block=(1024,1,1) lds=%d" % LDS_BYTES)
    out.append("; @launch kernel=k3_kernel grid=(256,1,1) block=(1024,1,1) lds=%d" % LDS_BYTES)
    out.append("; @launch kernel=k4_kernel grid=(256,1,1) block=(64,1,1) lds=0")
    out.extend(['.amdgcn_target "amdgcn-amd-amdhsa--gfx950"', ".text"])
    st = len(out); kstart("k1_kernel"); prologue(256); s1_s2()
    lab("L_s1_backdone"); lab("L_end"); a("s_endpgm"); relabel(st, "k1"); kdesc("k1_kernel")
    st = len(out); kstart("k2_kernel"); prologue(256)
    a("s_cmp_ge_u32 %s, 8" % sW); a("s_cbranch_scc1 L_back")
    s3_front(); a("s_endpgm")
    lab("L_back"); issue_dma()
    for T in range(4):
        a("s_waitcnt vmcnt(%d)" % (12 - 4 * T)); a("s_barrier")
    lab("L_end"); a("s_endpgm"); relabel(st, "k2"); kdesc("k2_kernel")
    st = len(out); kstart("k3_kernel"); prologue(256)
    a("s_cmp_ge_u32 %s, 8" % sW); a("s_cbranch_scc1 L_back")
    combine_front(); a("s_barrier"); a("s_endpgm")
    lab("L_back"); a("s_sub_u32 s50, %s, 8" % sW); issue_back_weights()
    a("s_waitcnt vmcnt(16)"); transpose_inplace(16, 112, 113)
    a("s_waitcnt vmcnt(0)"); transpose_inplace(48, 112, 113); transpose_inplace(80, 112, 113)
    a("s_barrier")
    s4_s5_back()
    lab("L_end"); a("s_endpgm"); relabel(st, "k3"); kdesc("k3_kernel")
    st = len(out); kstart("k4_kernel"); prologue(256)
    a("s_cmp_ge_u32 %s, 56" % sJ); a("s_cbranch_scc1 L_end")
    final_reduce(sJ)
    lab("L_end"); a("s_endpgm"); relabel(st, "k4"); kdesc("k4_kernel", 64)

print("\n".join(out))
```

```python
import sys, argparse
ap = argparse.ArgumentParser()
ap.add_argument("--stamp", type=int, default=0)
ap.add_argument("--spin", type=int, default=200000)
ap.add_argument("--sleep", type=int, default=4)
ap.add_argument("--ntq", type=int, default=1)
ap.add_argument("--depth", type=int, default=3)
ap.add_argument("--depth2", type=int, default=0)
ap.add_argument("--pcl", type=int, default=1)
ap.add_argument("--dense", type=int, default=1)
ap.add_argument("--prio", type=int, default=0)
ap.add_argument("--clrpos", type=int, default=8)
args = ap.parse_args()
NT = " nt"
NTQ = " nt" if args.ntq else ""

KN = "concat_heads__compressed_kv_cla__compressed_kv_cla__decode_kernel"
out = []
def a(s): out.append("    " + s)
def lab(s): out.append(s + ":")
def c(s): out.append("    ; " + s)

QA = 0
PC = 1 << 20
Q1 = 9 << 20
ST = 10 << 20
FL = (10 << 20) + (256 << 10)
EP = (10 << 20) + (512 << 10)
PO = 13 << 20
STAMP = 12 << 20
WS_USED = 16 << 20
X0 = 131072
P1 = X0
QL = X0 + 16384
SY = QL + 1024
W_S1P, W_Q, W_GO2, W_S1C, W_SC, W_PROG, W_CL, W_S2C, W_QAD, W_GO3, W_PCD, W_SCL = 0, 1, 2, 3, 4, 8, 16, 24, 32, 33, 34, 35
SCL = SY + 256
CL = 0
P4 = 4096
P5 = 16384
LDS_BYTES = 163840

sW, sP, sH, sCs, sJ = "s3", "s4", "s5", "s6", "s7"
SX, SKV, SWQ, SUK, SUV, SWO, SWS, SOUT, SDBG = ["s[%d:%d]" % (i, i + 3) for i in range(8, 44, 4)]
sSel0, sSel1 = "s44", "s45"
sWb = "s50"
sN0, sN1 = "s92", "s93"
sSent = "s94"
vLane, vR, vG = "v1", "v2", "v3"
vSY, vSYw = "v123", "v125"
def v(i, n=1): return "v%d" % i if n == 1 else "v[%d:%d]" % (i, i + n - 1)
def exec_n2():
    a("s_mov_b32 exec_lo, 0x00030003"); a("s_mov_b32 exec_hi, 0x00030003")
def exec_all(): a("s_mov_b64 exec, -1")

def stamp(idx):
    if not args.stamp: return
    a("s_memrealtime s[56:57]")
    a("s_lshl_b32 s58, s2, 4")
    a("s_add_u32 s58, s58, %s" % sW)
    a("s_lshl_b32 s58, s58, 6")
    a("s_add_u32 s58, s58, %d" % (STAMP + 4 * idx))
    a("s_waitcnt lgkmcnt(0)")
    a("v_mov_b32 v127, s56")
    a("v_mov_b32 v126, 0")
    a("s_mov_b64 s[56:57], exec")
    a("s_mov_b64 exec, 1")
    a("buffer_store_dword v127, v126, %s, s58 offen" % SWS)
    a("s_mov_b64 exec, s[56:57]")

def prologue(nwg):
    a("s_cmp_ge_u32 s2, %d" % nwg)
    a("s_cbranch_scc1 L_end")
    a("s_load_dwordx16 s[60:75], s[0:1], 0")
    a("s_load_dwordx8 s[76:83], s[0:1], 64")
    a("s_load_dwordx4 s[84:87], s[0:1], 96")
    a("s_load_dwordx2 s[88:89], s[0:1], 112")
    a("v_and_b32 %s, 63, v0" % vLane)
    a("v_lshrrev_b32 v4, 6, v0")
    a("v_and_b32 %s, 15, v0" % vR)
    a("v_readfirstlane_b32 %s, v4" % sW)
    a("v_bfe_u32 %s, v0, 4, 2" % vG)
    a("s_and_b32 s46, s2, 7")
    a("s_lshr_b32 s47, s2, 3")
    a("s_lshr_b32 %s, s46, 2" % sP)
    a("s_and_b32 s46, s46, 3")
    a("s_lshl_b32 %s, s46, 2" % sH)
    a("s_lshr_b32 s48, s47, 3")
    a("s_add_u32 %s, %s, s48" % (sH, sH))
    a("s_and_b32 %s, s47, 7" % sCs)
    a("s_lshl_b32 %s, s46, 5" % sJ)
    a("s_add_u32 %s, %s, s47" % (sJ, sJ))
    a("s_mov_b32 %s, 0x05040100" % sSel0)
    a("s_mov_b32 %s, 0x07060302" % sSel1)
    sizes = [1792, 16777216, 3670016, 8388608, 8388608, 3670016]
    for k in range(6):
        a("s_mov_b32 s%d, %d" % (8 + 4 * k + 2, sizes[k]))
        a("s_mov_b32 s%d, 0x20000" % (8 + 4 * k + 3))
    a("s_mov_b32 s34, %d" % WS_USED); a("s_mov_b32 s35, 0x20000")
    a("s_mov_b32 s38, 3584"); a("s_mov_b32 s39, 0x20000")
    a("s_mov_b32 s42, 256"); a("s_mov_b32 s43, 0x20000")
    a("s_sub_u32 %s, %s, 8" % (sWb, sW))
    a("s_mov_b32 %s, 0xfffffffe" % sSent)
    a("v_mov_b32 %s, %d" % (vSY, SY))
    a("s_and_b32 s46, %s, 7" % sW)
    a("s_lshl_b32 s46, s46, 2")
    a("s_add_u32 s46, s46, %d" % SY)
    a("v_mov_b32 %s, s46" % vSYw)
    a("s_cmp_lg_u32 %s, 7" % sW)
    a("s_cbranch_scc1 L_noinit")
    a("v_lshl_add_u32 v4, %s, 2, %s" % (vLane, vSY))
    a("v_mov_b32 v5, 0")
    a("ds_write_b32 v4, v5")
    lab("L_noinit")
    a("s_cmp_eq_u32 %s, 0" % sP)
    a("s_waitcnt lgkmcnt(0)")
    for k in range(6):
        a("s_cselect_b64 s[%d:%d], s[%d:%d], s[%d:%d]" % (8 + 4 * k, 9 + 4 * k, 60 + 2 * k, 61 + 2 * k, 72 + 2 * k, 73 + 2 * k))
    a("s_mov_b64 s[32:33], s[88:89]")
    a("s_mov_b64 s[36:37], s[84:85]")
    a("s_mov_b64 s[40:41], s[86:87]")
    c("launch nonce = epoch word found in d_ws + 1 (only tells this launch's tags/flags from stale ones)")
    a("s_lshl_b32 s46, %s, 7" % sP)
    a("s_add_u32 s46, s46, %d" % EP)
    a("s_load_dwordx2 s[92:93], s[88:89], s46")

def nonce_ready():
    a("s_waitcnt lgkmcnt(0)")
    a("s_add_u32 %s, %s, 1" % (sN0, sN0))
    a("s_addc_u32 %s, %s, 0" % (sN1, sN1))

def perms(T, L, i):
    k, e = i >> 1, i & 1
    for jj in range(4):
        a("v_perm_b32 %s, %s, %s, %s" % (v(T + jj), v(L + 4 * (2 * jj + 1) + k), v(L + 4 * (2 * jj) + k), sSel1 if e else sSel0))

def block_mfma(L, B, D, first, T0=80, T1=84):
    Ts = [T0, T1]
    perms(Ts[0], L, 0)
    for i in range(8):
        if i < 7: perms(Ts[(i + 1) & 1], L, i + 1)
        else: a("s_nop 1")
        a("v_mfma_f32_16x16x32_bf16 %s, %s, %s, %s" % (v(D + 4 * i, 4), v(Ts[i & 1], 4), v(B, 4), "0" if first else v(D + 4 * i, 4)))

def transpose_inplace(L, t0, t1):
    def pr(jj, k): return (L + 8 * jj + k, L + 8 * jj + 4 + k)
    for jj in range(4):
        lo, hi = pr(jj, jj)
        a("v_perm_b32 %s, %s, %s, %s" % (v(t0), v(hi), v(lo), sSel0))
        a("v_perm_b32 %s, %s, %s, %s" % (v(hi), v(hi), v(lo), sSel1))
        a("v_mov_b32 %s, %s" % (v(lo), v(t0)))
    for jj in range(4):
        for k in range(jj + 1, 4):
            A0, A1 = pr(jj, k); B0, B1 = pr(k, jj)
            a("v_perm_b32 %s, %s, %s, %s" % (v(t0), v(A1), v(A0), sSel0))
            a("v_perm_b32 %s, %s, %s, %s" % (v(t1), v(A1), v(A0), sSel1))
            a("v_perm_b32 %s, %s, %s, %s" % (v(A0), v(B1), v(B0), sSel0))
            a("v_perm_b32 %s, %s, %s, %s" % (v(A1), v(B1), v(B0), sSel1))
            a("v_mov_b32 %s, %s" % (v(B0), v(t0)))
            a("v_mov_b32 %s, %s" % (v(B1), v(t1)))

def desent(regs):
    for r in regs: a("v_min_u32 %s, %s, %s" % (v(r), sSent, v(r)))

def poll_masked(name, loads, tmp=120):
    n = len(loads)
    assert n <= 16
    M = lambda k: "s[%d:%d]" % (60 + 2 * k, 61 + 2 * k)
    for k in range(n): a("s_mov_b64 %s, -1" % M(k))
    a("s_mov_b32 s59, %d" % args.spin)
    lab("L_pm_%s" % name)
    for k, (emit, regs, kind) in enumerate(loads):
        a("s_mov_b64 exec, %s" % M(k))
        emit()
    exec_all()
    a("s_waitcnt vmcnt(0)")
    for k, (emit, regs, kind) in enumerate(loads):
        rs = list(regs)
        if kind == 's':
            if len(rs) == 1:
                a("v_cmp_eq_u32 %s, -1, %s" % (M(k), v(rs[0])))
            elif len(rs) == 2:
                a("v_max_u32 %s, %s, %s" % (v(tmp), v(rs[0]), v(rs[1])))
                a("v_cmp_eq_u32 %s, -1, %s" % (M(k), v(tmp)))
            else:
                a("v_max3_u32 %s, %s, %s, %s" % (v(tmp), v(rs[0]), v(rs[1]), v(rs[2])))
                a("v_max_u32 %s, %s, %s" % (v(tmp), v(tmp), v(rs[3])))
                a("v_cmp_eq_u32 %s, -1, %s" % (M(k), v(tmp)))
        else:
            a("v_xor_b32 %s, %s, %s" % (v(tmp), sN0, v(rs[-2])))
            a("v_xor_b32 %s, %s, %s" % (v(tmp + 1), sN1, v(rs[-1])))
            a("v_or_b32 %s, %s, %s" % (v(tmp), v(tmp), v(tmp + 1)))
            a("v_cmp_ne_u32 %s, 0, %s" % (M(k), v(tmp)))
    a("s_nop 1")
    if n == 1:
        a("s_cmp_eq_u64 %s, 0" % M(0))
    else:
        a("s_or_b64 s[56:57], %s, %s" % (M(0), M(1)))
        for k in range(2, n): a("s_or_b64 s[56:57], s[56:57], %s" % M(k))
        a("s_cmp_eq_u64 s[56:57], 0")
    a("s_cbranch_scc1 L_pmok_%s" % name)
    if args.sleep: a("s_sleep %d" % args.sleep)
    a("s_sub_u32 s59, s59, 1")
    a("s_cmp_lg_u32 s59, 0")
    a("s_cbranch_scc1 L_pm_%s" % name)
    lab("L_pmok_%s" % name)

def lds_wait(name, word, target, areg=vSY, sreg="s58"):
    a("s_mov_b32 s59, 4000000")
    lab("L_lw_%s" % name)
    a("ds_read_b32 v121, %s offset:%d" % (areg, 4 * word))
    a("s_waitcnt lgkmcnt(0)")
    a("v_readfirstlane_b32 %s, v121" % sreg)
    a("s_cmp_ge_u32 %s, %d" % (sreg, target))
    a("s_cbranch_scc1 L_lwok_%s" % name)
    a("s_sleep 1")
    a("s_sub_u32 s59, s59, 1")
    a("s_cmp_lg_u32 s59, 0")
    a("s_cbranch_scc1 L_lw_%s" % name)
    lab("L_lwok_%s" % name)
def lds_add(word):
    a("v_mov_b32 v121, 1")
    a("s_mov_b64 exec, 1")
    a("ds_add_u32 %s, v121 offset:%d" % (vSY, 4 * word))
    exec_all()
def lds_set_w(word, val):
    a("v_mov_b32 v121, %d" % val)
    a("s_mov_b64 exec, 1")
    a("ds_write_b32 %s, v121 offset:%d" % (vSYw, 4 * word))
    exec_all()

def flag_store(off):
    a("s_lshl_b32 s48, %s, 7" % sP)
    a("s_add_u32 s48, s48, %s" % sJ)
    a("s_lshl_b32 s48, s48, 7")
    a("s_add_u32 s48, s48, %d" % FL)
    a("v_mov_b32 v122, 0")
    a("v_mov_b32 v120, %s" % sN0)
    a("v_mov_b32 v121, %s" % sN1)
    a("s_mov_b64 exec, 1")
    a("buffer_store_dwordx2 v[120:121], v122, %s, s48 offen offset:%d sc1" % (SWS, off))
    exec_all()
def flag_poll_all(name, off):
    a("s_lshl_b32 s48, %s, 14" % sP)
    a("s_add_u32 s48, s48, %d" % FL)
    a("s_add_u32 s49, s48, 8192")
    a("v_lshlrev_b32 v122, 7, %s" % vLane)
    poll_masked(name, [
        (lambda: a("buffer_load_dwordx2 v[116:117], v122, %s, s48 offen offset:%d sc1" % (SWS, off)), [116, 117], 't'),
        (lambda: a("buffer_load_dwordx2 v[118:119], v122, %s, s49 offen offset:%d sc1" % (SWS, off)), [118, 119], 't')])

def xlane_reduce_2to5(reg, tmp, op):
    for ror in (4, 8):
        a("s_nop 1")
        a("%s_dpp %s, %s, %s row_ror:%d row_mask:0xf bank_mask:0xf" % (op, v(reg), v(reg), v(reg), ror))
    for pop in ("v_permlane16_swap_b32", "v_permlane32_swap_b32"):
        a("v_mov_b32 %s, %s" % (v(tmp), v(reg)))
        a("s_nop 1")
        a("%s %s, %s" % (pop, v(reg), v(tmp)))
        a("s_nop 1")
        a("%s %s, %s, %s" % (op, v(reg), v(reg), v(tmp)))

def bulk_loader():
    D = args.depth
    c("w_q first (most urgent): v4 = g*65536 + r*16 ; s63")
    a("s_lshl_b32 s51, %s, 14" % sWb)
    a("v_lshlrev_b32 v4, 16, %s" % vG)
    a("v_lshl_add_u32 v4, %s, 4, v4" % vR)
    a("s_lshl_b32 s63, %s, 19" % sCs)
    a("s_lshr_b32 s49, %s, 2" % sWb)
    a("s_lshl_b32 s49, s49, 18")
    a("s_add_u32 s63, s63, s49")
    a("s_and_b32 s49, %s, 1" % sWb)
    a("s_lshl_b32 s49, s49, 15")
    a("s_add_u32 s63, s63, s49")
    a("s_lshl_b32 s49, %s, 9" % sH)
    a("s_add_u32 s63, s63, s49")
    a("s_bfe_u32 s49, %s, 0x10001" % sWb)
    a("s_lshl_b32 s49, s49, 8")
    a("s_add_u32 s63, s63, s49")
    def rest_addr():
        for tq in range(4):
            a("v_add_u32 v120, %d, %s" % (4 * tq, vG))
            a("v_and_b32 v121, 7, v120")
            a("v_lshlrev_b32 v121, 1, v121")
            a("v_lshrrev_b32 v126, 3, v120")
            a("v_or_b32 v121, v121, v126")
            a("v_xor_b32 v121, v121, %s" % vR)
            a("v_lshlrev_b32 v121, 4, v121")
            a("v_lshl_add_u32 %s, v120, 11, v121" % v(116 + tq))
        a("s_lshl_b32 s62, %s, 17" % sJ)
        a("s_lshl_b32 s49, %s, 8" % sWb)
        a("s_add_u32 s62, s62, s49")
        a("v_lshlrev_b32 v5, 13, %s" % vR)
        a("v_lshl_add_u32 v5, %s, 4, v5" % vG)
        a("s_lshl_b32 s64, %s, 20" % sCs)
        a("s_lshl_b32 s49, %s, 17" % sWb)
        a("s_add_u32 s64, s64, s49")
        a("s_lshl_b32 s49, %s, 9" % sH)
        a("s_add_u32 s64, s64, s49")
        a("v_lshlrev_b32 v6, 15, %s" % vG)
        a("v_lshl_add_u32 v6, %s, 4, v6" % vR)
        a("s_lshr_b32 s60, %s, 1" % sCs)
        a("s_lshl_b32 s60, s60, 21")
        a("s_lshl_b32 s49, %s, 18" % sWb)
        a("s_add_u32 s60, s60, s49")
        a("s_lshl_b32 s49, %s, 9" % sH)
        a("s_add_u32 s60, s60, s49")
        a("s_and_b32 s52, %s, 1" % sCs)
        a("s_lshl_b32 s49, s52, 8")
        a("s_add_u32 s60, s60, s49")
        a("v_mul_u32_u24 v7, 1792, %s" % vG)
        a("v_lshl_add_u32 v7, %s, 4, v7" % vR)
        a("s_lshl_b32 s61, %s, 8" % sH)
        a("s_lshl_b32 s49, s52, 7")
        a("s_add_u32 s61, s61, s49")
        a("s_and_b32 s49, %s, 3" % sWb)
        a("s_lshl_b32 s49, s49, 5")
        a("s_add_u32 s61, s61, s49")
        a("s_mul_i32 s61, s61, 896")
        a("s_lshr_b32 s53, %s, 2" % sWb)
        a("s_lshl_b32 s49, s53, 9")
        a("s_add_u32 s61, s61, s49")
        a("v_mov_b32 v9, 0x7fff0000")
        a("v_mov_b32 v8, v7")
        a("s_cmp_eq_u32 s53, 1")
        a("s_cbranch_scc0 L_nomask")
        a("v_cmp_lt_u32 vcc, 7, %s" % vR)
        a("s_nop 1")
        a("v_cndmask_b32 v8, v7, v9, vcc")
        lab("L_nomask")
        a("s_barrier")

    items = []
    def dma(srd, vaddr, soff, ldsoff, post=None, inst_off=0):
        def f():
            a("s_add_u32 s49, s51, %d" % (ldsoff - inst_off))
            a("s_mov_b32 m0, s49")
            a("s_nop 0")
            a("buffer_load_dwordx4 %s, %s, %s offen%s%s lds" % (vaddr, srd, soff, (" offset:%d" % inst_off) if inst_off else "", NT))
            if post: a(post)
        return f
    for jj in range(4):
        items.append([dma(SWQ, "v4", "s63", 4096 + 1024 * jj, "s_add_u32 s63, s63, 8192"), (lambda: lds_set_w(W_PROG, 1)) if jj == 3 else None, None])
    for s_ in range(8):
        items.append([dma(SUK, "v5", "s64", 8192 + 1024 * s_, None, 64 * s_), (lambda: lds_set_w(W_PROG, 2)) if s_ == 7 else None, None])
    def clr_items():
        for up in range(4):
            def f():
                a("buffer_store_dwordx4 v[112:115], v10, %s, s65 offen sc1" % SWS)
                a("s_add_u32 s65, s65, 8192")
            items.append([f, None, None])
        items.append([lambda: a("buffer_store_dwordx4 v[112:115], v11, %s, s66 offen sc1" % SWS), None, None])
        items.append([lambda: a("buffer_store_dwordx2 v[112:113], v12, %s, s67 offen sc1" % SWS), lambda: lds_add(W_CLR), None])
    for t in range(16):
        post = "s_add_u32 s62, s62, 32768" if (t & 3 == 3 and t < 15) else None
        def done(t=t):
            lds_set_w(W_PROG, 3 + t // 4)
            if t == 15: stamp(1)
        before = None
        if t == 4: before = lambda: lds_wait("s1c", W_S1C, 4)
        if t == 8: before = lambda: lds_wait("s2c", W_S2C, 1, vSYw)
        items.append([dma(SKV, v(116 + (t & 3)), "s62", 1024 * t, post), done if t & 3 == 3 else None, before])
    nkv = len(items)
    for j in range(8):
        def f(j=j):
            a("buffer_load_dwordx4 %s, v6, %s, s60 offen%s" % (v(16 + 4 * j, 4), SUV, NT))
            a("s_add_u32 s60, s60, %d" % (8192 if j != 3 else 13 * 8192))
        items.append([f, (lambda: transpose_inplace(16, 112, 113)) if j == 7 else None, None])
    for j in range(8):
        def f(j=j):
            a("buffer_load_dwordx4 %s, v7, %s, s61 offen%s" % (v(48 + 4 * j, 4), SWO, NTQ))
        def g(j=j):
            a("buffer_load_dwordx4 %s, v8, %s, s61 offen offset:256%s" % (v(80 + 4 * j, 4), SWO, NTQ))
            if j < 7:
                a("s_add_u32 s61, s61, %d" % (8 * 896 if j != 3 else (896 - 24 * 896) & 0xffffffff))
        items.append([f, None, None]); items.append([g, None, None])
    n = len(items)
    done = -1
    def complete_upto(k):
        nonlocal done
        for q in range(done + 1, k + 1):
            if items[q][1]: items[q][1]()
        done = max(done, k)
    for k in range(n):
        if items[k][2]: items[k][2]()
        items[k][0]()
        if k == min(D, 4) - 1: rest_addr()
        Dk = D if (k < nkv or not args.depth2) else args.depth2
        if k - (Dk - 1) > done:
            a("s_waitcnt vmcnt(%d)" % (Dk - 1))
            complete_upto(k - (Dk - 1))
    for k in range(done + 1, n):
        a("s_waitcnt vmcnt(%d)" % (n - 1 - k))
        complete_upto(k)

def front():
    c("================ FRONT waves 0..7")
    if args.prio: a("s_setprio %d" % args.prio)
    a("s_barrier")
    nonce_ready()
    a("s_cmp_ge_u32 %s, 4" % sW)
    a("s_cbranch_scc1 L_nos1")
    c("S1 (waves 0..3): rows 64cs+32blk.., cols 128dh..")
    a("v_and_b32 v5, 1, %s" % vR)
    a("v_mul_u32_u24 v5, 896, v5")
    a("v_lshl_add_u32 v5, %s, 4, v5" % vG)
    a("s_lshl_b32 s46, %s, 1" % sCs)
    a("s_lshr_b32 s47, %s, 1" % sW)
    a("s_add_u32 s46, s46, s47")
    a("s_lshl_b32 s48, s46, 6")
    a("buffer_load_dwordx4 v[8:11], v5, %s, s48 offen" % SX)
    a("s_lshl_b32 s46, %s, 3" % sW)
    a("s_add_u32 s46, s46, %d" % SY)
    a("v_mov_b32 v122, s46")
    a("s_lshl_b32 s46, %s, 15" % sW)
    a("v_lshlrev_b32 v6, 4, %s" % vLane)
    a("v_add_u32 v6, s46, v6")
    a("s_lshl_b32 s48, %s, 10" % sW)
    a("s_add_u32 s48, s48, %d" % P1)
    a("v_lshlrev_b32 v7, 9, %s" % vR)
    a("v_lshl_add_u32 v7, %s, 7, v7" % vG)
    a("v_add_u32 v7, s48, v7")
    lds_wait("wq0", W_PROG, 1, "v122")
    for j in range(4):
        a("ds_read_b128 %s, v6 offset:%d" % (v(48 + 4 * j, 4), 4096 + 1024 * j))
    lds_wait("wq1", W_PROG + 1, 1, "v122")
    for j in range(4, 8):
        a("ds_read_b128 %s, v6 offset:%d" % (v(48 + 4 * j, 4), 16384 + 4096 + 1024 * (j & 3)))
    a("s_waitcnt vmcnt(0) lgkmcnt(0)")
    stamp(14)
    lds_add(W_S1C)
    block_mfma(48, 8, 88, True)
    a("s_nop 7")
    exec_n2()
    for i in range(8):
        a("ds_write_b128 v7, %s offset:%d" % (v(88 + 4 * i, 4), 16 * i))
    exec_all()
    a("s_waitcnt lgkmcnt(0)")
    lds_add(W_S1P)
    c("wave 0: sum the two row blocks, publish 2KB, drain, raise F1")
    a("s_cmp_lg_u32 %s, 0" % sW)
    a("s_cbranch_scc1 L_s1done")
    a("v_bfe_u32 v6, %s, 5, 1" % vLane)
    a("v_lshlrev_b32 v6, 10, v6")
    a("v_and_b32 v7, 31, %s" % vLane)
    a("v_lshl_add_u32 v6, v7, 4, v6")
    a("v_add_u32 v6, %d, v6" % P1)
    a("v_lshlrev_b32 v7, 4, %s" % vLane)
    a("s_lshl_b32 s48, %s, 4" % sP)
    a("s_add_u32 s48, s48, %s" % sH)
    a("s_lshl_b32 s48, s48, 3")
    a("s_add_u32 s48, s48, %s" % sCs)
    a("s_lshl_b32 s48, s48, 11")
    a("s_add_u32 s48, s48, %d" % Q1)
    lds_wait("s1p", W_S1P, 4)
    a("ds_read_b128 v[88:91], v6")
    a("ds_read_b128 v[92:95], v6 offset:2048")
    a("ds_read_b128 v[96:99], v6 offset:512")
    a("ds_read_b128 v[100:103], v6 offset:2560")
    a("s_waitcnt lgkmcnt(0)")
    for k in range(4):
        a("v_add_f32 %s, %s, %s" % (v(88 + k), v(88 + k), v(92 + k)))
        a("v_add_f32 %s, %s, %s" % (v(96 + k), v(96 + k), v(100 + k)))
    a("buffer_store_dwordx4 v[88:91], v7, %s, s48 offen sc1" % SWS)
    a("buffer_store_dwordx4 v[96:99], v7, %s, s48 offen offset:1024 sc1" % SWS)
    stamp(15)
    a("s_waitcnt vmcnt(0)")
    flag_store(0)
    a("s_branch L_s1done")
    lab("L_nos1")
    a("s_cmp_lt_u32 %s, 6" % sW)
    a("s_cbranch_scc1 L_s1done")
    c("waves 6,7 (b = w-6): wait for the head group's F1 flags, gather 7 partials")
    a("s_lshl_b32 s48, %s, 7" % sP)
    a("s_and_b32 s49, %s, 0xf8" % sJ)
    a("s_add_u32 s48, s48, s49")
    a("s_lshl_b32 s48, s48, 7")
    a("s_add_u32 s48, s48, %d" % FL)
    a("v_and_b32 v122, 7, %s" % vLane)
    a("v_min_u32 v122, 6, v122")
    a("v_lshlrev_b32 v122, 7, v122")
    a("v_lshlrev_b32 v6, 4, %s" % vLane)
    a("s_lshl_b32 s49, %s, 4" % sP)
    a("s_add_u32 s49, s49, %s" % sH)
    a("s_lshl_b32 s49, s49, 14")
    a("s_sub_u32 s46, %s, 6" % sW)
    a("s_lshl_b32 s47, s46, 10")
    a("s_add_u32 s49, s49, s47")
    a("s_add_u32 s49, s49, %d" % Q1)
    a("v_lshrrev_b32 v7, 3, %s" % vLane)
    a("v_lshlrev_b32 v7, 6, v7")
    a("v_and_b32 v8, 7, %s" % vLane)
    a("v_lshl_add_u32 v7, v8, 1, v7")
    a("s_lshl_b32 s47, s46, 9")
    a("s_add_u32 s47, s47, %d" % QL)
    a("v_add_u32 v7, s47, v7")
    lds_wait("s1own", W_S1P, 4)
    stamp(11)
    poll_masked("h1f", [(lambda: a("buffer_load_dwordx2 v[116:117], v122, %s, s48 offen sc1" % SWS), [116, 117], 't')])
    stamp(12)
    for k in range(7):
        a("buffer_load_dwordx4 %s, v6, %s, s49 offen offset:%d sc1" % (v(88 + 4 * k, 4), SWS, 2048 * (k & 1)))
        if k & 1: a("s_add_u32 s49, s49, 4096")
    a("s_waitcnt vmcnt(0)")
    stamp(2)
    for e in range(4):
        a("v_add_f32 %s, %s, %s" % (v(88 + e), v(88 + e), v(92 + e)))
        a("v_add_f32 %s, %s, %s" % (v(96 + e), v(96 + e), v(100 + e)))
        a("v_add_f32 %s, %s, %s" % (v(104 + e), v(104 + e), v(108 + e)))
        a("v_add_f32 %s, %s, %s" % (v(88 + e), v(88 + e), v(96 + e)))
        a("v_add_f32 %s, %s, %s" % (v(104 + e), v(104 + e), v(112 + e)))
        a("v_add_f32 %s, %s, %s" % (v(88 + e), v(88 + e), v(104 + e)))
    a("v_cvt_pk_bf16_f32 v88, v88, v89")
    a("v_cvt_pk_bf16_f32 v90, v90, v91")
    a("ds_write_b16 v7, v88")
    a("ds_write_b16_d16_hi v7, v88 offset:16")
    a("ds_write_b16 v7, v90 offset:32")
    a("ds_write_b16_d16_hi v7, v90 offset:48")
    a("s_waitcnt lgkmcnt(0)")
    lds_add(W_Q)
    lab("L_s1done")
    stamp(1)
    c("w_uk operand from LDS staging")
    a("s_lshl_b32 s46, %s, 14" % sW)
    a("v_lshlrev_b32 v7, 4, %s" % vLane)
    a("v_add_u32 v7, s46, v7")
    a("v_and_b32 v6, 1, %s" % vR)
    a("v_lshlrev_b32 v6, 9, v6")
    a("v_lshl_add_u32 v6, %s, 4, v6" % vG)
    a("v_add_u32 v6, %d, v6" % QL)
    lds_wait("uk", W_PROG, 2, vSYw)
    for s_ in range(8):
        a("ds_read_b128 %s, v7 offset:%d" % (v(16 + 4 * s_, 4), 8192 + 1024 * s_))
    a("s_waitcnt lgkmcnt(0)")
    lds_set_w(W_S2C, 1)
    lds_wait("q", W_Q, 2)
    stamp(3)
    c("S2")
    for s in range(8):
        a("ds_read_b128 %s, v6 offset:%d" % (v(48 + 4 * s, 4), 64 * s))
    a("v_lshlrev_b32 v6, 15, %s" % vR)
    a("v_lshl_add_u32 v6, %s, 3, v6" % vG)
    a("s_lshl_b32 s48, %s, 16" % sP)
    a("s_lshl_b32 s49, %s, 12" % sCs)
    a("s_add_u32 s48, s48, s49")
    a("s_lshl_b32 s49, %s, 8" % sH)
    a("s_add_u32 s48, s48, s49")
    a("s_lshl_b32 s49, %s, 5" % sW)
    a("s_add_u32 s48, s48, s49")
    a("s_mov_b32 s49, 0x3db8aa3b")
    a("s_waitcnt lgkmcnt(0)")
    for s in range(8):
        a("v_mfma_f32_16x16x32_bf16 v[88:91], %s, %s, %s" % (v(16 + 4 * s, 4), v(48 + 4 * s, 4), "0" if s == 0 else "v[88:91]"))
    a("s_nop 7")
    for k in range(4):
        a("v_mul_f32 %s, s49, %s" % (v(88 + k), v(88 + k)))
    a("v_cvt_pk_bf16_f32 v88, v88, v89")
    a("v_cvt_pk_bf16_f32 v89, v90, v91")
    exec_n2()
    a("buffer_store_dwordx2 v[88:89], v6, %s, s48 offen sc1" % SWS)
    exec_all()
    c("================ S3 address setup")
    a("s_lshl_b32 s51, %s, 14" % sW)
    a("v_and_b32 v8, 7, %s" % vR)
    a("v_lshlrev_b32 v8, 1, v8")
    a("v_lshrrev_b32 v9, 3, %s" % vR)
    a("v_or_b32 v8, v8, v9")
    a("v_lshlrev_b32 v9, 2, %s" % vG)
    a("v_xor_b32 v8, v8, v9")
    a("v_lshlrev_b32 v9, 8, %s" % vR)
    a("v_add_u32 v9, s51, v9")
    for s in range(4):
        a("v_xor_b32 v10, %d, v8" % s)
        a("v_lshl_add_u32 %s, v10, 4, v9" % v(4 + s))
    a("v_lshrrev_b32 v112, 2, %s" % vR)
    a("v_lshl_add_u32 v112, %s, 2, v112" % vG)
    a("v_and_b32 v113, 7, v112")
    a("v_lshlrev_b32 v113, 1, v113")
    a("v_lshrrev_b32 v114, 3, v112")
    a("v_or_b32 v113, v113, v114")
    a("v_bfe_u32 v114, %s, 1, 1" % vR)
    a("v_xor_b32 v113, v113, v114")
    a("v_lshlrev_b32 v113, 4, v113")
    a("v_and_b32 v114, 1, %s" % vR)
    a("v_lshl_add_u32 v113, v114, 3, v113")
    a("v_lshl_add_u32 v113, v112, 8, v113")
    a("v_add_u32 v113, s51, v113")
    for t in range(8):
        a("v_xor_b32 %s, %d, v113" % (v(8 + t), 32 * t))
    a("v_lshlrev_b32 v113, 4, %s" % vLane)
    a("v_add_u32 v113, %d, v113" % X0)
    a("s_lshl_b32 s48, %s, 10" % sW)
    a("v_add_u32 v112, s48, v113")
    c("H2 gather")
    a("s_lshr_b32 s48, %s, 6" % sJ)
    a("s_lshl_b32 s49, %s, 1" % sP)
    a("s_add_u32 s48, s48, s49")
    a("s_lshl_b32 s48, s48, 3")
    a("s_add_u32 s48, s48, %s" % sW)
    a("s_lshl_b32 s48, s48, 12")
    a("v_lshlrev_b32 v124, 8, %s" % vR)
    a("v_lshl_add_u32 v124, %s, 6, v124" % vG)
    a("s_mov_b32 s52, s48")
    a("s_waitcnt vmcnt(0)")
    lds_add(W_QAD)
    stamp(4)
    a("s_cmp_lg_u32 %s, 0" % sW)
    a("s_cbranch_scc1 L_nof2")
    lds_wait("qad", W_QAD, 8)
    if args.dense:
        a("s_lshl_b32 s48, %s, 7" % sP)
        a("s_add_u32 s48, s48, %s" % sJ)
        a("s_lshl_b32 s48, s48, 3")
        a("s_add_u32 s48, s48, %d" % (FL + 65536))
        a("v_mov_b32 v122, 0")
        a("v_mov_b32 v120, %s" % sN0)
        a("v_mov_b32 v121, %s" % sN1)
        a("s_mov_b64 exec, 1")
        a("buffer_store_dwordx2 v[120:121], v122, %s, s48 offen sc1" % SWS)
        exec_all()
    else:
        flag_store(8)
    lab("L_nof2")
    a("s_cmp_lg_u32 %s, 7" % sW)
    a("s_cbranch_scc1 L_nopoll2")
    if args.dense:
        a("s_lshl_b32 s48, %s, 10" % sP)
        a("s_add_u32 s48, s48, %d" % (FL + 65536))
        a("v_lshlrev_b32 v122, 3, %s" % vLane)
        poll_masked("all2", [
            (lambda: a("buffer_load_dwordx2 v[116:117], v122, %s, s48 offen sc1" % SWS), [116, 117], 't'),
            (lambda: a("buffer_load_dwordx2 v[118:119], v122, %s, s48 offen offset:512 sc1" % SWS), [118, 119], 't')])
    else:
        flag_poll_all("all2", 8)
    lds_add(W_GO2)
    lab("L_nopoll2")
    lds_wait("go2", W_GO2, 1)
    stamp(13)
    for s_ in range(4):
        a("buffer_load_dwordx4 %s, v124, %s, s52 offen offset:%d sc1" % (v(16 + 4 * s_, 4), SWS, QA + 16 * s_))
    a("s_waitcnt vmcnt(0)")
    stamp(5)
    def sum_partials(T):
        for k in range(4):
            a("v_add_f32 %s, %s, %s" % (v(80 + k), v(80 + k), v(84 + k)))
            a("v_add_f32 %s, %s, %s" % (v(88 + k), v(88 + k), v(92 + k)))
            a("v_add_f32 %s, %s, %s" % (v(96 + k), v(96 + k), v(100 + k)))
            a("v_add_f32 %s, %s, %s" % (v(104 + k), v(104 + k), v(108 + k)))
        for k in range(4):
            a("v_add_f32 %s, %s, %s" % (v(80 + k), v(80 + k), v(88 + k)))
            a("v_add_f32 %s, %s, %s" % (v(96 + k), v(96 + k), v(104 + k)))
        for k in range(4):
            a("v_add_f32 %s, %s, %s" % (v(64 + 4 * T + k), v(80 + k), v(96 + k)))
    def read_partials(T):
        for k in range(8):
            a("ds_read_b128 %s, v113 offset:%d" % (v(80 + 4 * k, 4), 1024 * k + 8192 * (T & 1)))
    for T in range(4):
        lds_wait("tile%d" % T, W_PROG, T + 3, vSYw)
        for s in range(4):
            a("ds_read_b128 %s, %s offset:%d" % (v(32 + 4 * s, 4), v(4 + s), 4096 * T))
        a("s_waitcnt lgkmcnt(0)")
        for s in range(4):
            a("v_mfma_f32_16x16x32_bf16 v[48:51], %s, %s, %s" % (v(32 + 4 * s, 4), v(16 + 4 * s, 4), "0" if s == 0 else "v[48:51]"))
        if T > 0:
            lds_wait("sc%d" % (T - 1), W_SC + T - 1, 8)
            read_partials(T - 1)
            a("s_waitcnt lgkmcnt(0)")
        else:
            a("s_nop 7")
        a("ds_write_b128 v112, v[48:51] offset:%d" % (8192 * (T & 1)))
        a("s_waitcnt lgkmcnt(0)")
        lds_add(W_SC + T)
        if T > 0:
            sum_partials(T - 1)
    c("V^T operands for u=0 (independent of the scores)")
    for t in range(8):
        for jh in range(2):
            a("ds_read_b64_tr_b16 %s, %s offset:%d" % (v(16 + 4 * t + 2 * jh, 2), v(8 + t), 4096 * jh))
    lds_wait("sc3", W_SC + 3, 8)
    stamp(6)
    read_partials(3)
    a("s_waitcnt lgkmcnt(0)")
    sum_partials(3)
    a("v_max3_f32 v48, v64, v65, v66")
    for k in range(67, 79, 2):
        a("v_max3_f32 v48, v48, %s, %s" % (v(k), v(k + 1)))
    a("v_max_f32 v48, v48, v79")
    for op in ("v_permlane32_swap_b32", "v_permlane16_swap_b32"):
        a("v_mov_b32 v49, v48")
        a("s_nop 1")
        a("%s v48, v49" % op)
        a("s_nop 1")
        a("v_max_f32 v48, v48, v49")
    for k in range(16):
        a("v_sub_f32 %s, %s, v48" % (v(64 + k), v(64 + k)))
    for k in range(16):
        a("v_exp_f32 %s, %s" % (v(64 + k), v(64 + k)))
    a("s_nop 0")
    for u in range(2):
        for q in range(4):
            a("v_cvt_pk_bf16_f32 %s, %s, %s" % (v(52 + 4 * u + q), v(64 + 8 * u + 2 * q), v(64 + 8 * u + 2 * q + 1)))
    a("s_nop 1")
    for t in range(8):
        a("v_mfma_f32_16x16x32_bf16 %s, %s, v[52:55], 0" % (v(80 + 4 * t, 4), v(16 + 4 * t, 4)))
        for jh in range(2):
            a("ds_read_b64_tr_b16 %s, %s offset:%d" % (v(16 + 4 * t + 2 * jh, 2), v(8 + t), 8192 + 4096 * jh))
    c("row sum while the u=1 operands arrive")
    a("v_add_f32 v49, v64, v65")
    for k in range(66, 80):
        a("v_add_f32 v49, v49, %s" % v(k))
    for op in ("v_permlane32_swap_b32", "v_permlane16_swap_b32"):
        a("v_mov_b32 v50, v49")
        a("s_nop 1")
        a("%s v49, v50" % op)
        a("s_nop 1")
        a("v_add_f32 v49, v49, v50")
    if args.pcl == 0:
        a("v_lshlrev_b32 v6, 18, %s" % vR)
        a("v_lshl_add_u32 v6, %s, 4, v6" % vG)
        a("s_lshl_b32 s48, %s, 22" % sP)
        a("s_lshl_b32 s49, %s, 15" % sW)
        a("s_add_u32 s48, s48, s49")
        a("s_lshl_b32 s49, %s, 6" % sJ)
        a("s_add_u32 s48, s48, s49")
        a("s_add_u32 s48, s48, %d" % PC)
    else:
        a("v_lshlrev_b32 v6, 6, %s" % vR)
        a("v_lshl_add_u32 v6, %s, 4, v6" % vG)
        a("s_lshl_b32 s48, %s, 22" % sP)
        a("s_lshl_b32 s49, %s, 15" % sJ)
        a("s_add_u32 s48, s48, s49")
        a("s_lshl_b32 s49, %s, 12" % sW)
        a("s_add_u32 s48, s48, s49")
        a("s_add_u32 s48, s48, %d" % PC)
    a("s_waitcnt lgkmcnt(0)")
    for t in range(8):
        a("v_mfma_f32_16x16x32_bf16 %s, %s, v[56:59], %s" % (v(80 + 4 * t, 4), v(16 + 4 * t, 4), v(80 + 4 * t, 4)))
    a("s_nop 7")
    for up in range(4):
        for q in range(4):
            a("v_cvt_pk_bf16_f32 %s, %s, %s" % (v(16 + 4 * up + q), v(80 + 8 * up + 2 * q), v(80 + 8 * up + 2 * q + 1)))
        a("buffer_store_dwordx4 %s, v6, %s, s48 offen sc1" % (v(16 + 4 * up, 4), SWS))
        a("s_add_u32 s48, s48, %d" % (8192 if args.pcl == 0 else 1024))
    c("payload addresses for the H3 gather")
    a("s_lshl_b32 s52, %s, 22" % sP)
    a("s_lshl_b32 s49, %s, 18" % sH)
    a("s_add_u32 s52, s52, s49")
    a("s_lshr_b32 s49, %s, 1" % sCs)
    a("s_lshl_b32 s49, s49, 3")
    a("s_add_u32 s49, s49, %s" % sW)
    a("s_lshl_b32 s49, s49, 13")
    a("s_add_u32 s52, s52, s49")
    a("s_add_u32 s52, s52, %d" % PC)
    a("s_add_u32 s53, s52, 4096")
    a("v_lshlrev_b32 v6, 4, %s" % vLane)
    if args.pcl == 1:
        a("s_lshl_b32 s52, %s, 22" % sP)
        a("s_lshr_b32 s49, %s, 1" % sCs)
        a("s_lshl_b32 s49, s49, 3")
        a("s_add_u32 s49, s49, %s" % sW)
        a("s_lshl_b32 s49, s49, 10")
        a("s_add_u32 s52, s52, s49")
        a("s_lshl_b32 s49, %s, 6" % sH)
        a("s_add_u32 s52, s52, s49")
        a("s_add_u32 s52, s52, %d" % PC)
        a("v_lshrrev_b32 v5, 2, %s" % vLane)
        a("v_lshlrev_b32 v5, 15, v5")
        a("v_and_b32 v4, 3, %s" % vLane)
        a("v_lshl_add_u32 v5, v4, 4, v5")
    a("v_lshrrev_b32 v7, 2, %s" % vLane)
    a("v_lshlrev_b32 v7, 2, v7")
    a("v_add_u32 v7, %d, v7" % SCL)
    a("s_waitcnt vmcnt(0)")
    lds_add(W_PCD)
    stamp(7)
    a("s_cmp_lg_u32 %s, 0" % sW)
    a("s_cbranch_scc1 L_s3_nostat")
    c("wave 0: all partial-ctx stores drained -> stats granules {m,l,nonce} double as the H3 flags")
    a("v_lshlrev_b32 v8, 11, %s" % vR)
    a("s_lshl_b32 s48, %s, 15" % sP)
    a("s_lshl_b32 s49, %s, 4" % sJ)
    a("s_add_u32 s48, s48, s49")
    a("s_add_u32 s48, s48, %d" % ST)
    a("v_mov_b32 v50, %s" % sN0)
    a("v_mov_b32 v51, %s" % sN1)
    lds_wait("pcd", W_PCD, 8)
    a("s_mov_b64 exec, 0xffff")
    a("buffer_store_dwordx4 v[48:51], v8, %s, s48 offen sc1" % SWS)
    exec_all()
    lab("L_s3_nostat")
    a("s_cmp_lg_u32 %s, 7" % sW)
    a("s_cbranch_scc1 L_nopoll3")
    c("wave 7: poll the 128 stats granules of head h; lane l has producers l (b=0) and 64+l (b=1)")
    a("s_lshl_b32 s48, %s, 4" % sP)
    a("s_add_u32 s48, s48, %s" % sH)
    a("s_lshl_b32 s48, s48, 11")
    a("s_add_u32 s48, s48, %d" % ST)
    poll_masked("h3s", [(lambda k=k: a("buffer_load_dwordx4 %s, v6, %s, s48 offen offset:%d sc1" % (v(64 + 4 * k, 4), SWS, 1024 * k)), list(range(64 + 4 * k, 68 + 4 * k)), 't') for k in range(2)])
    lds_add(W_GO3)
    lab("L_nopoll3")
    lds_wait("go3", W_GO3, 1)
    stamp(8)
    for k in range(8):
        if args.pcl == 0:
            a("buffer_load_dwordx4 %s, v6, %s, %s offen offset:%d sc1" % (v(16 + 4 * k, 4), SWS, "s52" if k < 4 else "s53", 1024 * (k & 3)))
        else:
            a("buffer_load_dwordx4 %s, v5, %s, s52 offen sc1" % (v(16 + 4 * k, 4), SWS))
            a("s_add_u32 s52, s52, %d" % (16 * 32768))
    a("s_cmp_lg_u32 %s, 7" % sW)
    a("s_cbranch_scc1 L_noscl")
    c("wave 7: scales 2^(m-M)/L for all 128 producers -> LDS")
    for b in range(2):
        m = 64 + 4 * b
        a("v_mov_b32 v80, %s" % v(m))
        for q in ("quad_perm:[1,0,3,2]", "quad_perm:[2,3,0,1]"):
            a("s_nop 1")
            a("v_max_f32_dpp v80, v80, v80 %s row_mask:0xf bank_mask:0xf" % q)
        xlane_reduce_2to5(80, 84, "v_max_f32")
        a("v_sub_f32 %s, %s, v80" % (v(m), v(m)))
        a("v_exp_f32 %s, %s" % (v(m), v(m)))
        a("s_nop 0")
        a("v_mul_f32 v81, %s, %s" % (v(m), v(m + 1)))
        for q in ("quad_perm:[1,0,3,2]", "quad_perm:[2,3,0,1]"):
            a("s_nop 1")
            a("v_add_f32_dpp v81, v81, v81 %s row_mask:0xf bank_mask:0xf" % q)
        xlane_reduce_2to5(81, 84, "v_add_f32")
        a("v_rcp_f32 v81, v81")
        a("s_nop 0")
        a("v_mul_f32 %s, %s, v81" % (v(m), v(m)))
    a("v_lshlrev_b32 v8, 2, %s" % vLane)
    a("v_add_u32 v8, %d, v8" % SCL)
    a("ds_write_b32 v8, v64")
    a("ds_write_b32 v8, v68 offset:256")
    a("s_waitcnt lgkmcnt(0)")
    lds_add(W_SCL)
    lab("L_noscl")
    lds_wait("scl", W_SCL, 1)
    for k in range(8):
        a("ds_read_b32 %s, v7 offset:%d" % (v(64 + 2 * k), 64 * k))
    a("s_waitcnt vmcnt(0) lgkmcnt(0)")
    stamp(9)
    for b in range(2):
        for k in range(4):
            kk = 4 * b + k
            e = 64 + 2 * kk
            for q in range(4):
                a("v_lshlrev_b32 v84, 16, %s" % v(16 + 4 * kk + q))
                a("v_and_b32 v85, 0xffff0000, %s" % v(16 + 4 * kk + q))
                if k == 0:
                    a("v_mul_f32 %s, v84, %s" % (v(88 + 8 * b + 2 * q), v(e)))
                    a("v_mul_f32 %s, v85, %s" % (v(88 + 8 * b + 2 * q + 1), v(e)))
                else:
                    a("v_fmac_f32 %s, v84, %s" % (v(88 + 8 * b + 2 * q), v(e)))
                    a("v_fmac_f32 %s, v85, %s" % (v(88 + 8 * b + 2 * q + 1), v(e)))
    a("s_nop 1")
    for j in range(8):
        a("v_permlane32_swap_b32 %s, %s" % (v(88 + j), v(96 + j)))
    a("s_nop 1")
    for j in range(8):
        a("v_add_f32 %s, %s, %s" % (v(88 + j), v(88 + j), v(96 + j)))
    a("s_nop 1")
    for j in range(4):
        a("v_permlane16_swap_b32 %s, %s" % (v(88 + j), v(92 + j)))
    a("s_nop 1")
    for j in range(4):
        a("v_add_f32 %s, %s, %s" % (v(88 + j), v(88 + j), v(92 + j)))
    for ror in (4, 8):
        a("s_nop 1")
        for j in range(4):
            a("v_add_f32_dpp %s, %s, %s row_ror:%d row_mask:0xf bank_mask:0xf" % (v(88 + j), v(88 + j), v(88 + j), ror))
    a("v_cvt_pk_bf16_f32 v88, v88, v89")
    a("v_cvt_pk_bf16_f32 v89, v90, v91")
    a("v_bfe_u32 v6, %s, 5, 1" % vLane)
    a("v_lshlrev_b32 v6, 6, v6")
    a("v_and_b32 v7, 3, %s" % vLane)
    a("v_lshl_add_u32 v6, v7, 4, v6")
    a("v_bfe_u32 v7, %s, 4, 1" % vLane)
    a("v_lshl_add_u32 v6, v7, 3, v6")
    a("s_lshl_b32 s48, %s, 7" % sW)
    a("v_add_u32 v6, s48, v6")
    a("s_mov_b32 exec_lo, 0x000f000f"); a("s_mov_b32 exec_hi, 0x000f000f")
    a("ds_write_b64 v6, v[88:89] offset:%d" % CL)
    exec_all()
    a("s_waitcnt lgkmcnt(0)")
    lds_set_w(W_CL, 1)
    stamp(10)
    a("s_endpgm")

def back():
    c("================ BACK waves 8..15")
    bulk_loader()
    nonce_ready()
    stamp(2)
    transpose_inplace(48, 112, 113); transpose_inplace(80, 112, 113)
    a("v_and_b32 v6, 1, %s" % vR)
    a("v_lshlrev_b32 v6, 6, v6")
    a("v_lshl_add_u32 v6, %s, 4, v6" % vG)
    a("s_lshl_b32 s48, %s, 7" % sWb)
    a("v_add_u32 v6, s48, v6")
    a("v_lshlrev_b32 v8, 9, %s" % vR)
    a("v_lshl_add_u32 v8, %s, 7, v8" % vG)
    a("s_lshl_b32 s48, %s, 10" % sWb)
    a("v_add_u32 v8, s48, v8")
    lds_wait("cl", W_CL, 1, vSYw)
    stamp(3)
    c("================ S4/S5")
    a("ds_read_b128 v[4:7], v6 offset:%d" % CL)
    a("s_waitcnt lgkmcnt(0)")
    for grp in range(2):
        for q in range(4):
            i = 4 * grp + q
            a("v_mfma_f32_16x16x32_bf16 %s, %s, v[4:7], 0" % (v(112 + 4 * q, 4), v(16 + 4 * i, 4)))
        a("s_nop 7")
        exec_n2()
        for q in range(4):
            a("ds_write_b128 v8, %s offset:%d" % (v(112 + 4 * q, 4), P4 + 16 * (4 * grp + q)))
        exec_all()
        a("s_waitcnt lgkmcnt(0)")
    a("s_barrier")
    a("v_and_b32 v6, 1, %s" % vR)
    a("v_lshlrev_b32 v6, 9, v6")
    a("v_lshl_add_u32 v6, %s, 5, v6" % vG)
    a("s_and_b32 s48, %s, 3" % sWb)
    a("s_lshl_b32 s48, s48, 7")
    a("v_add_u32 v6, s48, v6")
    for rnd in range(2):
        for kk in range(4):
            for e in range(2):
                a("ds_read_b128 %s, v6 offset:%d" % (v(16 + 8 * kk + 4 * e, 4), P4 + 1024 * (4 * rnd + kk) + 16 * e))
        a("s_waitcnt lgkmcnt(0)")
        for j in range(8):
            a("v_add_f32 %s, %s, %s" % (v(16 + j), v(16 + j), v(24 + j)))
            a("v_add_f32 %s, %s, %s" % (v(32 + j), v(32 + j), v(40 + j)))
        for j in range(8):
            if rnd == 0:
                a("v_add_f32 %s, %s, %s" % (v(112 + j), v(16 + j), v(32 + j)))
            else:
                a("v_add_f32 %s, %s, %s" % (v(16 + j), v(16 + j), v(32 + j)))
                a("v_add_f32 %s, %s, %s" % (v(112 + j), v(112 + j), v(16 + j)))
    for q in range(4):
        a("v_cvt_pk_bf16_f32 %s, %s, %s" % (v(4 + q), v(112 + 2 * q), v(112 + 2 * q + 1)))
    a("v_lshlrev_b32 v8, 9, %s" % vR)
    a("v_lshl_add_u32 v8, %s, 7, v8" % vG)
    a("s_and_b32 s48, %s, 3" % sWb)
    a("s_lshl_b32 s48, s48, 12")
    a("s_lshr_b32 s49, %s, 2" % sWb)
    a("s_lshl_b32 s49, s49, 11")
    a("s_add_u32 s48, s48, s49")
    a("v_add_u32 v8, s48, v8")
    for blk in range(2):
        D = 16 if blk == 0 else 48
        for i in range(8):
            a("v_mfma_f32_16x16x32_bf16 %s, %s, v[4:7], 0" % (v(D + 4 * i, 4), v(48 + 32 * blk + 4 * i, 4)))
        a("s_nop 7")
        exec_n2()
        for i in range(8):
            a("ds_write_b128 v8, %s offset:%d" % (v(D + 4 * i, 4), P5 + 1024 * blk + 16 * i))
        exec_all()
        if blk == 0: a("s_nop 7")
    a("v_subrev_u32 v6, 512, v0")
    a("v_cmp_lt_u32 vcc, 111, v6")
    a("v_subrev_u32 v7, 112, v6")
    a("s_nop 0")
    a("v_cndmask_b32 v7, v6, v7, vcc")
    a("v_cndmask_b32 v8, 0, 1, vcc")
    a("v_lshrrev_b32 v9, 5, v7")
    a("v_lshlrev_b32 v9, 10, v9")
    a("v_lshl_add_u32 v9, v8, 9, v9")
    a("v_and_b32 v10, 31, v7")
    a("v_lshl_add_u32 v9, v10, 4, v9")
    a("s_lshl_b32 s48, %s, 7" % sP)
    a("s_add_u32 s48, s48, %s" % sJ)
    a("s_mul_i32 s48, s48, 7168")
    a("s_add_u32 s48, s48, %d" % PO)
    a("v_cmp_gt_u32 vcc, 224, v6")
    a("v_lshlrev_b32 v6, 5, v6")
    a("s_waitcnt lgkmcnt(0)")
    a("s_barrier")
    a("s_and_saveexec_b64 s[54:55], vcc")
    a("s_cbranch_execz L_s5_skip")
    for k in range(4):
        a("ds_read_b128 %s, v9 offset:%d" % (v(16 + 4 * k, 4), P5 + 4096 * k))
    a("s_waitcnt lgkmcnt(0)")
    for q in range(4):
        a("v_add_f32 %s, %s, %s" % (v(16 + q), v(16 + q), v(20 + q)))
        a("v_add_f32 %s, %s, %s" % (v(24 + q), v(24 + q), v(28 + q)))
    a("v_add_f32 v32, v16, v24"); a("v_add_f32 v33, v17, v25")
    a("v_add_f32 v36, v18, v26"); a("v_add_f32 v37, v19, v27")
    a("v_mov_b32 v34, %s" % sN0); a("v_mov_b32 v35, %s" % sN1)
    a("v_mov_b32 v38, %s" % sN0); a("v_mov_b32 v39, %s" % sN1)
    a("buffer_store_dwordx4 v[32:35], v6, %s, s48 offen sc1" % SWS)
    a("buffer_store_dwordx4 v[36:39], v6, %s, s48 offen offset:16 sc1" % SWS)
    lab("L_s5_skip")
    a("s_mov_b64 exec, s[54:55]")
    stamp(4)
    c("final reduce by back wave 7 of workgroups j<56")
    a("s_cmp_lg_u32 %s, 7" % sWb)
    a("s_cbranch_scc1 L_end")
    a("s_cmp_ge_u32 %s, 56" % sJ)
    a("s_cbranch_scc1 L_end")
    c("lane = (producer sub 8, granule 8); 16 loads x 8 producers; 128B per producer")
    a("v_lshrrev_b32 v6, 3, %s" % vLane)
    a("v_mul_u32_u24 v6, 7168, v6")
    a("v_and_b32 v7, 7, %s" % vLane)
    a("v_lshl_add_u32 v6, v7, 4, v6")
    a("s_mul_i32 s48, %s, %d" % (sP, 128 * 7168))
    a("s_lshl_b32 s49, %s, 7" % sJ)
    a("s_add_u32 s48, s48, s49")
    a("s_add_u32 s48, s48, %d" % PO)
    a("s_cmp_ge_u32 %s, 28" % sJ)
    a("s_cselect_b32 s49, 28, 0")
    a("s_cselect_b32 s51, 896, 0")
    a("s_sub_u32 s49, %s, s49" % sJ)
    a("s_lshl_b32 s49, s49, 4")
    a("s_and_b32 s52, s49, 0xffe0")
    a("s_lshr_b32 s49, s49, 2")
    a("s_and_b32 s49, s49, 7")
    a("s_add_u32 s52, s52, s49")
    a("s_add_u32 s52, s52, s51")
    a("s_mul_i32 s49, %s, 448" % sP)
    a("s_add_u32 s52, s52, s49")
    a("s_lshl_b32 s52, s52, 1")
    a("v_lshrrev_b32 v8, 1, v7")
    a("v_lshlrev_b32 v8, 1, v8")
    a("v_and_b32 v7, 1, v7")
    a("v_lshl_add_u32 v7, v7, 5, v8")
    def ld5(k):
        a("s_add_u32 s49, s48, %d" % (8 * 7168 * k))
        a("buffer_load_dwordx4 %s, v6, %s, s49 offen sc1" % (v(16 + 4 * k, 4), SWS))
    poll_masked("h5", [(lambda k=k: ld5(k), list(range(16 + 4 * k, 20 + 4 * k)), 't') for k in range(16)])
    stamp(5)
    for st in (8, 4, 2, 1):
        for k in range(st):
            for e in range(2):
                a("v_add_f32 %s, %s, %s" % (v(16 + 4 * k + e), v(16 + 4 * k + e), v(16 + 4 * (k + st) + e)))
    for e in range(2):
        a("s_nop 1")
        a("v_add_f32_dpp %s, %s, %s row_ror:8 row_mask:0xf bank_mask:0xf" % (v(16 + e), v(16 + e), v(16 + e)))
        for pop in ("v_permlane16_swap_b32", "v_permlane32_swap_b32"):
            a("v_mov_b32 v20, %s" % v(16 + e))
            a("s_nop 1")
            a("%s %s, v20" % (pop, v(16 + e)))
            a("s_nop 1")
            a("v_add_f32 %s, %s, v20" % (v(16 + e), v(16 + e)))
    a("v_cvt_pk_bf16_f32 v16, v16, v17")
    a("s_mov_b64 exec, 0xff")
    a("buffer_store_short v16, v7, %s, s52 offen" % SOUT)
    a("buffer_store_short_d16_hi v16, v7, %s, s52 offen offset:16" % SOUT)
    a("s_cmp_lg_u32 %s, 0" % sJ)
    a("s_cbranch_scc1 L_noep")
    c("advance the epoch word for a later launch on the same workspace")
    a("s_lshl_b32 s46, %s, 7" % sP)
    a("s_add_u32 s46, s46, %d" % EP)
    a("v_mov_b32 v20, %s" % sN0)
    a("v_mov_b32 v21, %s" % sN1)
    a("v_mov_b32 v22, 0")
    a("s_mov_b64 exec, 1")
    a("buffer_store_dwordx2 v[20:21], v22, %s, s46 offen sc1" % SWS)
    lab("L_noep")
    exec_all()
    stamp(6)

hdr = [l for l in open("concat_heads__compressed_kv_cla__compressed_kv_cla__decode.s.ref").read().split("\n") if l.startswith(";") and "@launch" not in l]
out.extend(hdr)
out.append("; @launch grid=(256,1,1) block=(1024,1,1) lds=%d" % LDS_BYTES)
out.extend(['.amdgcn_target "amdgcn-amd-amdhsa--gfx950"', ".text"])
out.extend([".globl %s" % KN, ".p2align 8", ".type %s,@function" % KN, KN + ":"])
prologue(256)
stamp(0)
a("s_cmp_ge_u32 %s, 8" % sW)
a("s_cbranch_scc1 L_back")
front()
lab("L_back")
back()
lab("L_end"); a("s_endpgm")
out.extend(['.section .rodata,"a"', ".p2align 6", ".amdhsa_kernel %s" % KN,
    "  .amdhsa_next_free_vgpr 128", "  .amdhsa_next_free_sgpr 96", "  .amdhsa_accum_offset 128",
    "  .amdhsa_group_segment_fixed_size 0", "  .amdhsa_kernarg_size 120", "  .amdhsa_user_sgpr_count 2",
    "  .amdhsa_user_sgpr_kernarg_segment_ptr 1", "  .amdhsa_system_sgpr_workgroup_id_x 1", ".end_amdhsa_kernel"])
print("\n".join(out))
```

```python
import sys, argparse
ap = argparse.ArgumentParser()
ap.add_argument("--stamp", type=int, default=0)
ap.add_argument("--spin", type=int, default=200000)
ap.add_argument("--sleep", type=int, default=4)
ap.add_argument("--ntq", type=int, default=1)
ap.add_argument("--depth", type=int, default=3)
ap.add_argument("--depth2", type=int, default=0)
ap.add_argument("--h1local", type=int, default=1)
ap.add_argument("--sleep3", type=int, default=4)
ap.add_argument("--sleep5", type=int, default=4)
ap.add_argument("--dly5", type=int, default=0)
ap.add_argument("--sleep2", type=int, default=8)
ap.add_argument("--dwo", type=int, default=0)
ap.add_argument("--wpos", type=int, default=16)
ap.add_argument("--dly4", type=int, default=4)
ap.add_argument("--pause", type=int, default=-1)
ap.add_argument("--dly1", type=int, default=16)
ap.add_argument("--dly2", type=int, default=16)
ap.add_argument("--pcl", type=int, default=1)
ap.add_argument("--dense", type=int, default=1)
ap.add_argument("--prio", type=int, default=0)
ap.add_argument("--clrpos", type=int, default=8)
args = ap.parse_args()
NT = " nt"
NTQ = " nt" if args.ntq else ""

KN = "concat_heads__compressed_kv_cla__compressed_kv_cla__decode_kernel"
out = []
def a(s): out.append("    " + s)
def lab(s): out.append(s + ":")
def c(s): out.append("    ; " + s)

QA = 0
PC = 1 << 20
Q1 = 9 << 20
C4 = 16 << 20
C4L = 17 << 20
Q1L = 15 << 20
ST = 10 << 20
FL = (10 << 20) + (256 << 10)
EP = (10 << 20) + (512 << 10)
PO = 13 << 20
STAMP = 12 << 20
WS_USED = 18 << 20
X0 = 131072
P1 = X0
QL = X0 + 16384
SY = QL + 1024
W_S1P, W_Q, W_GO2, W_S1C, W_SC, W_PROG, W_CL, W_S2C, W_QAD, W_GO3, W_PCD, W_SCL = 0, 1, 2, 3, 4, 8, 16, 24, 32, 33, 34, 35
SCL = SY + 256
CL = X0
P4 = X0 + 4096
CB = X0 + 12288
P5 = 16384
LDS_BYTES = 163840

sW, sP, sH, sCs, sJ = "s3", "s4", "s5", "s6", "s7"
SX, SKV, SWQ, SUK, SUV, SWO, SWS, SOUT, SDBG = ["s[%d:%d]" % (i, i + 3) for i in range(8, 44, 4)]
sSel0, sSel1 = "s44", "s45"
sWb = "s50"
sN0, sN1 = "s92", "s93"
sSent = "s94"
vLane, vR, vG = "v1", "v2", "v3"
vSY, vSYw = "v123", "v125"
def v(i, n=1): return "v%d" % i if n == 1 else "v[%d:%d]" % (i, i + n - 1)
def exec_n2():
    a("s_mov_b32 exec_lo, 0x00030003"); a("s_mov_b32 exec_hi, 0x00030003")
def exec_all(): a("s_mov_b64 exec, -1")

def stamp(idx):
    if not args.stamp: return
    a("s_memrealtime s[56:57]")
    a("s_lshl_b32 s58, s2, 4")
    a("s_add_u32 s58, s58, %s" % sW)
    a("s_lshl_b32 s58, s58, 6")
    a("s_add_u32 s58, s58, %d" % (STAMP + 4 * idx))
    a("s_waitcnt lgkmcnt(0)")
    a("v_mov_b32 v127, s56")
    a("v_mov_b32 v126, 0")
    a("s_mov_b64 s[56:57], exec")
    a("s_mov_b64 exec, 1")
    a("buffer_store_dword v127, v126, %s, s58 offen" % SWS)
    a("s_mov_b64 exec, s[56:57]")

def prologue(nwg):
    a("s_cmp_ge_u32 s2, %d" % nwg)
    a("s_cbranch_scc1 L_end")
    a("s_load_dwordx16 s[60:75], s[0:1], 0")
    a("s_load_dwordx8 s[76:83], s[0:1], 64")
    a("s_load_dwordx4 s[84:87], s[0:1], 96")
    a("s_load_dwordx2 s[88:89], s[0:1], 112")
    a("v_and_b32 %s, 63, v0" % vLane)
    a("v_lshrrev_b32 v4, 6, v0")
    a("v_and_b32 %s, 15, v0" % vR)
    a("v_readfirstlane_b32 %s, v4" % sW)
    a("v_bfe_u32 %s, v0, 4, 2" % vG)
    a("s_and_b32 s46, s2, 7")
    a("s_lshr_b32 s47, s2, 3")
    a("s_lshr_b32 %s, s46, 2" % sP)
    a("s_and_b32 s46, s46, 3")
    a("s_lshl_b32 %s, s46, 2" % sH)
    a("s_lshr_b32 s48, s47, 3")
    a("s_add_u32 %s, %s, s48" % (sH, sH))
    a("s_and_b32 %s, s47, 7" % sCs)
    a("s_lshl_b32 %s, s46, 5" % sJ)
    a("s_add_u32 %s, %s, s47" % (sJ, sJ))
    a("s_mov_b32 %s, 0x05040100" % sSel0)
    a("s_mov_b32 %s, 0x07060302" % sSel1)
    sizes = [1792, 16777216, 3670016, 8388608, 8388608, 3670016]
    for k in range(6):
        a("s_mov_b32 s%d, %d" % (8 + 4 * k + 2, sizes[k]))
        a("s_mov_b32 s%d, 0x20000" % (8 + 4 * k + 3))
    a("s_mov_b32 s34, %d" % WS_USED); a("s_mov_b32 s35, 0x20000")
    a("s_mov_b32 s38, 3584"); a("s_mov_b32 s39, 0x20000")
    a("s_mov_b32 s42, 256"); a("s_mov_b32 s43, 0x20000")
    a("s_sub_u32 %s, %s, 8" % (sWb, sW))
    a("s_mov_b32 %s, 0xfffffffe" % sSent)
    a("v_mov_b32 %s, %d" % (vSY, SY))
    a("s_and_b32 s46, %s, 7" % sW)
    a("s_lshl_b32 s46, s46, 2")
    a("s_add_u32 s46, s46, %d" % SY)
    a("v_mov_b32 %s, s46" % vSYw)
    a("s_cmp_lg_u32 %s, 7" % sW)
    a("s_cbranch_scc1 L_noinit")
    a("v_lshl_add_u32 v4, %s, 2, %s" % (vLane, vSY))
    a("v_mov_b32 v5, 0")
    a("ds_write_b32 v4, v5")
    lab("L_noinit")
    a("s_cmp_eq_u32 %s, 0" % sP)
    a("s_waitcnt lgkmcnt(0)")
    for k in range(6):
        a("s_cselect_b64 s[%d:%d], s[%d:%d], s[%d:%d]" % (8 + 4 * k, 9 + 4 * k, 60 + 2 * k, 61 + 2 * k, 72 + 2 * k, 73 + 2 * k))
    a("s_mov_b64 s[32:33], s[88:89]")
    a("s_mov_b64 s[36:37], s[84:85]")
    a("s_mov_b64 s[40:41], s[86:87]")
    c("launch nonce = epoch word found in d_ws + 1 (only tells this launch's tags/flags from stale ones)")
    a("s_lshl_b32 s46, %s, 7" % sP)
    a("s_add_u32 s46, s46, %d" % EP)
    a("s_load_dwordx2 s[92:93], s[88:89], s46")

def nonce_ready():
    a("s_waitcnt lgkmcnt(0)")
    a("s_add_u32 %s, %s, 1" % (sN0, sN0))
    a("s_addc_u32 %s, %s, 0" % (sN1, sN1))

def perms(T, L, i):
    k, e = i >> 1, i & 1
    for jj in range(4):
        a("v_perm_b32 %s, %s, %s, %s" % (v(T + jj), v(L + 4 * (2 * jj + 1) + k), v(L + 4 * (2 * jj) + k), sSel1 if e else sSel0))

def block_mfma(L, B, D, first, T0=80, T1=84):
    Ts = [T0, T1]
    perms(Ts[0], L, 0)
    for i in range(8):
        if i < 7: perms(Ts[(i + 1) & 1], L, i + 1)
        else: a("s_nop 1")
        a("v_mfma_f32_16x16x32_bf16 %s, %s, %s, %s" % (v(D + 4 * i, 4), v(Ts[i & 1], 4), v(B, 4), "0" if first else v(D + 4 * i, 4)))

def transpose_inplace(L, t0, t1):
    def pr(jj, k): return (L + 8 * jj + k, L + 8 * jj + 4 + k)
    for jj in range(4):
        lo, hi = pr(jj, jj)
        a("v_perm_b32 %s, %s, %s, %s" % (v(t0), v(hi), v(lo), sSel0))
        a("v_perm_b32 %s, %s, %s, %s" % (v(hi), v(hi), v(lo), sSel1))
        a("v_mov_b32 %s, %s" % (v(lo), v(t0)))
    for jj in range(4):
        for k in range(jj + 1, 4):
            A0, A1 = pr(jj, k); B0, B1 = pr(k, jj)
            a("v_perm_b32 %s, %s, %s, %s" % (v(t0), v(A1), v(A0), sSel0))
            a("v_perm_b32 %s, %s, %s, %s" % (v(t1), v(A1), v(A0), sSel1))
            a("v_perm_b32 %s, %s, %s, %s" % (v(A0), v(B1), v(B0), sSel0))
            a("v_perm_b32 %s, %s, %s, %s" % (v(A1), v(B1), v(B0), sSel1))
            a("v_mov_b32 %s, %s" % (v(B0), v(t0)))
            a("v_mov_b32 %s, %s" % (v(B1), v(t1)))

def desent(regs):
    for r in regs: a("v_min_u32 %s, %s, %s" % (v(r), sSent, v(r)))

def poll_masked(name, loads, tmp=120, again=None, slp=None):
    n = len(loads)
    assert n <= 16
    M = lambda k: "s[%d:%d]" % (60 + 2 * k, 61 + 2 * k)
    for k in range(n): a("s_mov_b64 %s, -1" % M(k))
    a("s_mov_b32 s59, %d" % args.spin)
    lab("L_pm_%s" % name)
    for k, (emit, regs, kind) in enumerate(loads):
        a("s_mov_b64 exec, %s" % M(k))
        if n > 2: a("s_cbranch_execz L_pmsk_%s_%d" % (name, k))
        emit()
        if n > 2: lab("L_pmsk_%s_%d" % (name, k))
    exec_all()
    a("s_waitcnt vmcnt(0)")
    for k, (emit, regs, kind) in enumerate(loads):
        rs = list(regs)
        if kind == 's':
            if len(rs) == 1:
                a("v_cmp_eq_u32 %s, -1, %s" % (M(k), v(rs[0])))
            elif len(rs) == 2:
                a("v_max_u32 %s, %s, %s" % (v(tmp), v(rs[0]), v(rs[1])))
                a("v_cmp_eq_u32 %s, -1, %s" % (M(k), v(tmp)))
            else:
                a("v_max3_u32 %s, %s, %s, %s" % (v(tmp), v(rs[0]), v(rs[1]), v(rs[2])))
                a("v_max_u32 %s, %s, %s" % (v(tmp), v(tmp), v(rs[3])))
                a("v_cmp_eq_u32 %s, -1, %s" % (M(k), v(tmp)))
        else:
            a("v_xor_b32 %s, %s, %s" % (v(tmp), sN0, v(rs[-2])))
            a("v_xor_b32 %s, %s, %s" % (v(tmp + 1), sN1, v(rs[-1])))
            a("v_or_b32 %s, %s, %s" % (v(tmp), v(tmp), v(tmp + 1)))
            a("v_cmp_ne_u32 %s, 0, %s" % (M(k), v(tmp)))
    a("s_nop 1")
    if n == 1:
        a("s_cmp_eq_u64 %s, 0" % M(0))
    else:
        a("s_or_b64 s[56:57], %s, %s" % (M(0), M(1)))
        for k in range(2, n): a("s_or_b64 s[56:57], s[56:57], %s" % M(k))
        a("s_cmp_eq_u64 s[56:57], 0")
    a("s_cbranch_scc1 L_pmok_%s" % name)
    if slp is None: slp = args.sleep
    if slp: a("s_sleep %d" % slp)
    if again: again()
    a("s_sub_u32 s59, s59, 1")
    a("s_cmp_lg_u32 s59, 0")
    a("s_cbranch_scc1 L_pm_%s" % name)
    lab("L_pmok_%s" % name)

def lds_wait(name, word, target, areg=vSY, sreg="s58"):
    a("s_mov_b32 s59, 4000000")
    lab("L_lw_%s" % name)
    a("ds_read_b32 v121, %s offset:%d" % (areg, 4 * word))
    a("s_waitcnt lgkmcnt(0)")
    a("v_readfirstlane_b32 %s, v121" % sreg)
    a("s_cmp_ge_u32 %s, %d" % (sreg, target))
    a("s_cbranch_scc1 L_lwok_%s" % name)
    a("s_sleep 1")
    a("s_sub_u32 s59, s59, 1")
    a("s_cmp_lg_u32 s59, 0")
    a("s_cbranch_scc1 L_lw_%s" % name)
    lab("L_lwok_%s" % name)
def lds_add(word):
    a("v_mov_b32 v121, 1")
    a("s_mov_b64 exec, 1")
    a("ds_add_u32 %s, v121 offset:%d" % (vSY, 4 * word))
    exec_all()
def lds_set_w(word, val):
    a("v_mov_b32 v121, %d" % val)
    a("s_mov_b64 exec, 1")
    a("ds_write_b32 %s, v121 offset:%d" % (vSYw, 4 * word))
    exec_all()

def flag_store(off):
    a("s_lshl_b32 s48, %s, 7" % sP)
    a("s_add_u32 s48, s48, %s" % sJ)
    a("s_lshl_b32 s48, s48, 7")
    a("s_add_u32 s48, s48, %d" % FL)
    a("v_mov_b32 v122, 0")
    a("v_mov_b32 v120, %s" % sN0)
    a("v_mov_b32 v121, %s" % sN1)
    a("s_mov_b64 exec, 1")
    a("buffer_store_dwordx2 v[120:121], v122, %s, s48 offen offset:%d sc1" % (SWS, off))
    exec_all()
def flag_poll_all(name, off):
    a("s_lshl_b32 s48, %s, 14" % sP)
    a("s_add_u32 s48, s48, %d" % FL)
    a("s_add_u32 s49, s48, 8192")
    a("v_lshlrev_b32 v122, 7, %s" % vLane)
    poll_masked(name, [
        (lambda: a("buffer_load_dwordx2 v[116:117], v122, %s, s48 offen offset:%d sc1" % (SWS, off)), [116, 117], 't'),
        (lambda: a("buffer_load_dwordx2 v[118:119], v122, %s, s49 offen offset:%d sc1" % (SWS, off)), [118, 119], 't')])

def xlane_reduce_2to5(reg, tmp, op):
    for ror in (4, 8):
        a("s_nop 1")
        a("%s_dpp %s, %s, %s row_ror:%d row_mask:0xf bank_mask:0xf" % (op, v(reg), v(reg), v(reg), ror))
    for pop in ("v_permlane16_swap_b32", "v_permlane32_swap_b32"):
        a("v_mov_b32 %s, %s" % (v(tmp), v(reg)))
        a("s_nop 1")
        a("%s %s, %s" % (pop, v(reg), v(tmp)))
        a("s_nop 1")
        a("%s %s, %s, %s" % (op, v(reg), v(reg), v(tmp)))

def bulk_loader():
    D = args.depth
    c("w_q first (most urgent): v4 = g*65536 + r*16 ; s63")
    a("s_lshl_b32 s51, %s, 14" % sWb)
    a("v_lshlrev_b32 v4, 16, %s" % vG)
    a("v_lshl_add_u32 v4, %s, 4, v4" % vR)
    a("s_lshl_b32 s63, %s, 19" % sCs)
    a("s_lshr_b32 s49, %s, 2" % sWb)
    a("s_lshl_b32 s49, s49, 18")
    a("s_add_u32 s63, s63, s49")
    a("s_and_b32 s49, %s, 1" % sWb)
    a("s_lshl_b32 s49, s49, 15")
    a("s_add_u32 s63, s63, s49")
    a("s_lshl_b32 s49, %s, 9" % sH)
    a("s_add_u32 s63, s63, s49")
    a("s_bfe_u32 s49, %s, 0x10001" % sWb)
    a("s_lshl_b32 s49, s49, 8")
    a("s_add_u32 s63, s63, s49")
    def rest_addr():
        for tq in range(4):
            a("v_add_u32 v120, %d, %s" % (4 * tq, vG))
            a("v_and_b32 v121, 7, v120")
            a("v_lshlrev_b32 v121, 1, v121")
            a("v_lshrrev_b32 v126, 3, v120")
            a("v_or_b32 v121, v121, v126")
            a("v_xor_b32 v121, v121, %s" % vR)
            a("v_lshlrev_b32 v121, 4, v121")
            a("v_lshl_add_u32 %s, v120, 11, v121" % v(116 + tq))
        a("s_lshl_b32 s62, %s, 17" % sJ)
        a("s_lshl_b32 s49, %s, 8" % sWb)
        a("s_add_u32 s62, s62, s49")
        a("v_lshlrev_b32 v5, 13, %s" % vR)
        a("v_lshl_add_u32 v5, %s, 4, v5" % vG)
        a("s_lshl_b32 s64, %s, 20" % sCs)
        a("s_lshl_b32 s49, %s, 17" % sWb)
        a("s_add_u32 s64, s64, s49")
        a("s_lshl_b32 s49, %s, 9" % sH)
        a("s_add_u32 s64, s64, s49")
        a("v_lshlrev_b32 v6, 15, %s" % vG)
        a("v_lshl_add_u32 v6, %s, 4, v6" % vR)
        a("s_lshl_b32 s60, %s, 20" % sCs)
        a("s_lshr_b32 s49, %s, 1" % sWb)
        a("s_lshl_b32 s49, s49, 18")
        a("s_add_u32 s60, s60, s49")
        a("s_lshl_b32 s49, %s, 9" % sH)
        a("s_add_u32 s60, s60, s49")
        a("s_and_b32 s49, %s, 1" % sWb)
        a("s_lshl_b32 s49, s49, 8")
        a("s_add_u32 s60, s60, s49")
        a("v_mul_u32_u24 v7, 1792, %s" % vG)
        a("v_lshl_add_u32 v7, %s, 4, v7" % vR)
        a("s_lshl_b32 s61, %s, 8" % sH)
        a("s_lshl_b32 s49, %s, 5" % sCs)
        a("s_add_u32 s61, s61, s49")
        a("s_mul_i32 s61, s61, 896")
        a("s_and_b32 s53, %s, 3" % sWb)
        a("s_lshl_b32 s49, s53, 8")
        a("s_add_u32 s61, s61, s49")
        a("v_mov_b32 v9, 0x7fff0000")
        a("s_cmp_eq_u32 %s, 7" % sWb)
        a("s_cbranch_scc0 L_nomask")
        a("v_cmp_lt_u32 vcc, 7, %s" % vR)
        a("s_nop 1")
        a("v_cndmask_b32 v7, v7, v9, vcc")
        lab("L_nomask")
        a("s_barrier")

    items = []
    def dma(srd, vaddr, soff, ldsoff, post=None, inst_off=0):
        def f():
            a("s_add_u32 s49, s51, %d" % (ldsoff - inst_off))
            a("s_mov_b32 m0, s49")
            a("s_nop 0")
            a("buffer_load_dwordx4 %s, %s, %s offen%s%s lds" % (vaddr, srd, soff, (" offset:%d" % inst_off) if inst_off else "", NT))
            if post: a(post)
        return f
    for jj in range(4):
        items.append([dma(SWQ, "v4", "s63", 4096 + 1024 * jj, "s_add_u32 s63, s63, 8192"), (lambda: lds_set_w(W_PROG, 1)) if jj == 3 else None, None])
    for s_ in range(8):
        items.append([dma(SUK, "v5", "s64", 8192 + 1024 * s_, None, 64 * s_), (lambda: lds_set_w(W_PROG, 2)) if s_ == 7 else None, None])
    def clr_items():
        for up in range(4):
            def f():
                a("buffer_store_dwordx4 v[112:115], v10, %s, s65 offen sc1" % SWS)
                a("s_add_u32 s65, s65, 8192")
            items.append([f, None, None])
        items.append([lambda: a("buffer_store_dwordx4 v[112:115], v11, %s, s66 offen sc1" % SWS), None, None])
        items.append([lambda: a("buffer_store_dwordx2 v[112:113], v12, %s, s67 offen sc1" % SWS), lambda: lds_add(W_CLR), None])
    def weight_items():
        for j in range(8):
            def f(j=j):
                a("buffer_load_dwordx4 %s, v6, %s, s60 offen%s" % (v(16 + 4 * j, 4), SUV, NT))
                a("s_add_u32 s60, s60, %d" % (8192 if j != 3 else 13 * 8192))
            items.append([f, (lambda: transpose_inplace(16, 112, 113)) if j == 7 else None, None])
        for j in range(8):
            def f(j=j):
                c("w_o only for waves 4..7")
                a("s_cmp_lt_u32 %s, 4" % sWb)
                a("s_cbranch_scc1 L_nowo%d" % j)
                a("buffer_load_dwordx4 %s, v7, %s, s61 offen%s" % (v(48 + 4 * j, 4), SWO, NT))
                lab("L_nowo%d" % j)
                if j < 7:
                    a("s_add_u32 s61, s61, %d" % (8 * 896 if j != 3 else (896 - 24 * 896) & 0xffffffff))
            items.append([f, (lambda: transpose_inplace(48, 112, 113)) if j == 7 else None, None, "opt"])
    for t in range(16):
        if t == args.wpos: weight_items()
        post = "s_add_u32 s62, s62, 32768" if (t & 3 == 3 and t < 15) else None
        def done(t=t):
            lds_set_w(W_PROG, 3 + t // 4)
            if t == 15: stamp(1)
        before = None
        if t == 4: before = lambda: lds_wait("s1c", W_S1C, 4)
        if t == 8: before = lambda: lds_wait("s2c", W_S2C, 1, vSYw)
        items.append([dma(SKV, v(116 + (t & 3)), "s62", 1024 * t, post), done if t & 3 == 3 else None, before])
    if args.wpos >= 16: weight_items()
    nkv = 1 << 30
    n = len(items)
    done = -1
    def complete_upto(k):
        nonlocal done
        for q in range(done + 1, k + 1):
            if items[q][1]: items[q][1]()
        done = max(done, k)
    def youngest_cover(k, N):
        cnt = 0; q = k
        while q >= 0 and cnt < N:
            if len(items[q]) < 4: cnt += 1
            q -= 1
        return q
    for k in range(n):
        if items[k][2]: items[k][2]()
        items[k][0]()
        if k == min(D, 4) - 1: rest_addr()
        Dk = args.dwo if (args.dwo and len(items[k]) == 4) else D
        if k >= D - 1:
            a("s_waitcnt vmcnt(%d)" % (Dk - 1))
            complete_upto(youngest_cover(k, Dk - 1))
    for N in range(max(D, args.dwo) - 2, -1, -1):
        a("s_waitcnt vmcnt(%d)" % N)
        complete_upto(youngest_cover(n - 1, N))

def front():
    c("================ FRONT waves 0..7")
    if args.prio: a("s_setprio %d" % args.prio)
    a("s_barrier")
    nonce_ready()
    a("s_cmp_ge_u32 %s, 4" % sW)
    a("s_cbranch_scc1 L_nos1")
    c("S1 (waves 0..3): rows 64cs+32blk.., cols 128dh..")
    a("v_and_b32 v5, 1, %s" % vR)
    a("v_mul_u32_u24 v5, 896, v5")
    a("v_lshl_add_u32 v5, %s, 4, v5" % vG)
    a("s_lshl_b32 s46, %s, 1" % sCs)
    a("s_lshr_b32 s47, %s, 1" % sW)
    a("s_add_u32 s46, s46, s47")
    a("s_lshl_b32 s48, s46, 6")
    a("buffer_load_dwordx4 v[8:11], v5, %s, s48 offen" % SX)
    a("s_lshl_b32 s46, %s, 3" % sW)
    a("s_add_u32 s46, s46, %d" % SY)
    a("v_mov_b32 v122, s46")
    a("s_lshl_b32 s46, %s, 15" % sW)
    a("v_lshlrev_b32 v6, 4, %s" % vLane)
    a("v_add_u32 v6, s46, v6")
    a("s_lshl_b32 s48, %s, 10" % sW)
    a("s_add_u32 s48, s48, %d" % P1)
    a("v_lshlrev_b32 v7, 9, %s" % vR)
    a("v_lshl_add_u32 v7, %s, 7, v7" % vG)
    a("v_add_u32 v7, s48, v7")
    lds_wait("wq0", W_PROG, 1, "v122")
    for j in range(4):
        a("ds_read_b128 %s, v6 offset:%d" % (v(48 + 4 * j, 4), 4096 + 1024 * j))
    lds_wait("wq1", W_PROG + 1, 1, "v122")
    for j in range(4, 8):
        a("ds_read_b128 %s, v6 offset:%d" % (v(48 + 4 * j, 4), 16384 + 4096 + 1024 * (j & 3)))
    a("s_waitcnt vmcnt(0) lgkmcnt(0)")
    stamp(14)
    lds_add(W_S1C)
    block_mfma(48, 8, 88, True)
    a("s_nop 7")
    exec_n2()
    for i in range(8):
        a("ds_write_b128 v7, %s offset:%d" % (v(88 + 4 * i, 4), 16 * i))
    exec_all()
    a("s_waitcnt lgkmcnt(0)")
    lds_add(W_S1P)
    c("waves 0,1: batch b = w: sum the two row blocks, publish 2 x 1KB of tagged granules")
    a("s_cmp_ge_u32 %s, 2" % sW)
    a("s_cbranch_scc1 L_s1done")
    a("v_bfe_u32 v6, %s, 5, 1" % vLane)
    a("v_lshlrev_b32 v6, 10, v6")
    a("v_and_b32 v7, 31, %s" % vLane)
    a("v_lshl_add_u32 v6, v7, 4, v6")
    a("s_lshl_b32 s46, %s, 9" % sW)
    a("s_add_u32 s46, s46, %d" % P1)
    a("v_add_u32 v6, s46, v6")
    a("v_lshlrev_b32 v7, 4, %s" % vLane)
    a("s_lshl_b32 s48, %s, 4" % sP)
    a("s_add_u32 s48, s48, %s" % sH)
    a("s_lshl_b32 s48, s48, 3")
    a("s_add_u32 s48, s48, %s" % sCs)
    a("s_lshl_b32 s48, s48, 12")
    a("s_lshl_b32 s46, %s, 11" % sW)
    a("s_add_u32 s48, s48, s46")
    a("s_add_u32 s48, s48, %d" % Q1)
    a("v_mov_b32 v98, %s" % sN0); a("v_mov_b32 v99, %s" % sN1)
    a("v_mov_b32 v102, %s" % sN0); a("v_mov_b32 v103, %s" % sN1)
    lds_wait("s1p", W_S1P, 4)
    a("ds_read_b128 v[88:91], v6")
    a("ds_read_b128 v[92:95], v6 offset:2048")
    a("s_waitcnt lgkmcnt(0)")
    a("v_add_f32 v96, v88, v92"); a("v_add_f32 v97, v89, v93")
    a("v_add_f32 v100, v90, v94"); a("v_add_f32 v101, v91, v95")
    if args.h1local:
        a("s_add_u32 s46, s48, %d" % (Q1L - Q1))
        a("buffer_store_dwordx4 v[96:99], v7, %s, s46 offen" % SWS)
        a("buffer_store_dwordx4 v[100:103], v7, %s, s46 offen offset:1024" % SWS)
    a("buffer_store_dwordx4 v[96:99], v7, %s, s48 offen sc1" % SWS)
    a("buffer_store_dwordx4 v[100:103], v7, %s, s48 offen offset:1024 sc1" % SWS)
    stamp(15)
    a("s_branch L_s1done")
    lab("L_nos1")
    c("H1 gather by waves 4..7: thread t = tid-256 -> granule t of each of 7 partials")
    a("v_subrev_u32 v5, 256, v0")
    a("v_lshlrev_b32 v6, 4, v5")
    a("s_lshl_b32 s48, %s, 4" % sP)
    a("s_add_u32 s48, s48, %s" % sH)
    a("s_lshl_b32 s48, s48, 15")
    a("s_add_u32 s48, s48, %d" % Q1)
    for k in range(1, 7): a("s_add_u32 s%d, s48, %d" % ([0, 49, 51, 52, 53, 54, 55][k], 4096 * k))
    a("v_bfe_u32 v4, v5, 7, 1")
    a("v_lshlrev_b32 v4, 9, v4")
    a("v_bfe_u32 v7, v5, 3, 3")
    a("v_lshl_add_u32 v4, v7, 6, v4")
    a("v_bfe_u32 v7, v5, 6, 1")
    a("v_lshl_add_u32 v4, v7, 5, v4")
    a("v_and_b32 v7, 7, v5")
    a("v_lshl_add_u32 v4, v7, 1, v4")
    a("v_add_u32 v4, %d, v4" % QL)
    lds_wait("s1own", W_S1P, 4)
    stamp(11)
    if args.dly1: a("s_sleep %d" % args.dly1)
    if args.h1local:
        a("v_add_u32 v8, %d, v6" % (Q1L - Q1))
        a("v_mov_b32 v9, v6")
        a("v_mov_b32 v6, v8")
    a("s_mov_b32 s47, 0")
    a("s_lshl_b32 s46, %s, 14" % sW)
    a("v_lshlrev_b32 v10, 4, %s" % vLane)
    a("v_add_u32 v10, s46, v10")
    def h1_next():
        c("between attempts: pull w_uk out of the LDS staging as soon as it has landed")
        a("s_cmp_lg_u32 s47, 0")
        a("s_cbranch_scc1 L_h1_ukdone")
        a("ds_read_b32 v121, %s offset:%d" % (vSYw, 4 * W_PROG))
        a("s_waitcnt lgkmcnt(0)")
        a("v_readfirstlane_b32 s46, v121")
        a("s_cmp_lt_u32 s46, 2")
        a("s_cbranch_scc1 L_h1_ukdone")
        for s_ in range(8):
            a("ds_read_b128 %s, v10 offset:%d" % (v(16 + 4 * s_, 4), 8192 + 1024 * s_))
        a("s_waitcnt lgkmcnt(0)")
        lds_set_w(W_S2C, 1)
        a("s_mov_b32 s47, 1")
        lab("L_h1_ukdone")
        if args.h1local:
            c("every 4th attempt reads the write-through copy")
            a("s_and_b32 s46, s59, 3")
            a("s_cmp_eq_u32 s46, 1")
            a("s_cselect_b64 vcc, -1, 0")
            a("s_nop 1")
            a("v_cndmask_b32 v6, v8, v9, vcc")
    poll_masked("h1", [(lambda k=k: a("buffer_load_dwordx4 %s, v6, %s, s%d offen sc1" % (v(88 + 4 * k, 4), SWS, [48, 49, 51, 52, 53, 54, 55][k])), list(range(88 + 4 * k, 92 + 4 * k)), 't') for k in range(7)], again=h1_next, slp=2)
    stamp(2)
    for e in range(2):
        a("v_add_f32 %s, %s, %s" % (v(88 + e), v(88 + e), v(92 + e)))
        a("v_add_f32 %s, %s, %s" % (v(96 + e), v(96 + e), v(100 + e)))
        a("v_add_f32 %s, %s, %s" % (v(104 + e), v(104 + e), v(108 + e)))
        a("v_add_f32 %s, %s, %s" % (v(88 + e), v(88 + e), v(96 + e)))
        a("v_add_f32 %s, %s, %s" % (v(104 + e), v(104 + e), v(112 + e)))
        a("v_add_f32 %s, %s, %s" % (v(88 + e), v(88 + e), v(104 + e)))
    a("v_cvt_pk_bf16_f32 v88, v88, v89")
    a("ds_write_b16 v4, v88")
    a("ds_write_b16_d16_hi v4, v88 offset:16")
    a("s_waitcnt lgkmcnt(0)")
    lds_add(W_Q)
    a("s_branch L_s1done2")
    lab("L_s1done")
    a("s_mov_b32 s47, 0")
    lab("L_s1done2")
    stamp(1)
    c("w_uk operand from LDS staging")
    a("s_lshl_b32 s46, %s, 14" % sW)
    a("v_lshlrev_b32 v7, 4, %s" % vLane)
    a("v_add_u32 v7, s46, v7")
    a("v_and_b32 v6, 1, %s" % vR)
    a("v_lshlrev_b32 v6, 9, v6")
    a("v_lshl_add_u32 v6, %s, 4, v6" % vG)
    a("v_add_u32 v6, %d, v6" % QL)
    a("s_cmp_lg_u32 s47, 0")
    a("s_cbranch_scc1 L_ukdone")
    lds_wait("uk", W_PROG, 2, vSYw)
    for s_ in range(8):
        a("ds_read_b128 %s, v7 offset:%d" % (v(16 + 4 * s_, 4), 8192 + 1024 * s_))
    a("s_waitcnt lgkmcnt(0)")
    lds_set_w(W_S2C, 1)
    lab("L_ukdone")
    lds_wait("q", W_Q, 4)
    stamp(3)
    c("S2")
    for s in range(8):
        a("ds_read_b128 %s, v6 offset:%d" % (v(48 + 4 * s, 4), 64 * s))
    a("v_lshlrev_b32 v6, 16, %s" % vR)
    a("v_lshl_add_u32 v6, %s, 10, v6" % vG)
    a("s_lshl_b32 s48, %s, 17" % sP)
    a("s_lshl_b32 s49, %s, 13" % sCs)
    a("s_add_u32 s48, s48, s49")
    a("s_lshl_b32 s49, %s, 6" % sH)
    a("s_add_u32 s48, s48, s49")
    a("s_and_b32 s49, %s, 1" % sW)
    a("s_lshl_b32 s49, s49, 12")
    a("s_add_u32 s48, s48, s49")
    a("s_lshr_b32 s49, %s, 1" % sW)
    a("s_lshl_b32 s49, s49, 4")
    a("s_add_u32 s48, s48, s49")
    a("s_mov_b32 s49, 0x3db8aa3b")
    a("s_waitcnt lgkmcnt(0)")
    for s in range(8):
        a("v_mfma_f32_16x16x32_bf16 v[88:91], %s, %s, %s" % (v(16 + 4 * s, 4), v(48 + 4 * s, 4), "0" if s == 0 else "v[88:91]"))
    a("s_nop 7")
    for k in range(4):
        a("v_mul_f32 %s, s49, %s" % (v(88 + k), v(88 + k)))
    a("v_cvt_pk_bf16_f32 v88, v88, v89")
    a("v_cvt_pk_bf16_f32 v89, v90, v91")
    a("v_mov_b32 v90, %s" % sN0)
    a("v_mov_b32 v91, %s" % sN1)
    exec_n2()
    a("buffer_store_dwordx4 v[88:91], v6, %s, s48 offen sc1" % SWS)
    exec_all()
    stamp(4)
    c("================ S3 address setup")
    a("s_lshl_b32 s51, %s, 14" % sW)
    a("v_and_b32 v8, 7, %s" % vR)
    a("v_lshlrev_b32 v8, 1, v8")
    a("v_lshrrev_b32 v9, 3, %s" % vR)
    a("v_or_b32 v8, v8, v9")
    a("v_lshlrev_b32 v9, 2, %s" % vG)
    a("v_xor_b32 v8, v8, v9")
    a("v_lshlrev_b32 v9, 8, %s" % vR)
    a("v_add_u32 v9, s51, v9")
    for s in range(4):
        a("v_xor_b32 v10, %d, v8" % s)
        a("v_lshl_add_u32 %s, v10, 4, v9" % v(4 + s))
    a("v_lshrrev_b32 v112, 2, %s" % vR)
    a("v_lshl_add_u32 v112, %s, 2, v112" % vG)
    a("v_and_b32 v113, 7, v112")
    a("v_lshlrev_b32 v113, 1, v113")
    a("v_lshrrev_b32 v114, 3, v112")
    a("v_or_b32 v113, v113, v114")
    a("v_bfe_u32 v114, %s, 1, 1" % vR)
    a("v_xor_b32 v113, v113, v114")
    a("v_lshlrev_b32 v113, 4, v113")
    a("v_and_b32 v114, 1, %s" % vR)
    a("v_lshl_add_u32 v113, v114, 3, v113")
    a("v_lshl_add_u32 v113, v112, 8, v113")
    a("v_add_u32 v113, s51, v113")
    for t in range(8):
        a("v_xor_b32 %s, %d, v113" % (v(8 + t), 32 * t))
    a("v_lshlrev_b32 v113, 4, %s" % vLane)
    a("v_add_u32 v114, 65536, v113")
    a("v_add_u32 v112, s51, v113")
    c("H2 gather: 8 x 1KB tagged granules; lane (h,g) gets c = 32g + 4*s2..")
    a("s_lshr_b32 s48, %s, 6" % sJ)
    a("s_lshl_b32 s49, %s, 1" % sP)
    a("s_add_u32 s48, s48, s49")
    a("s_lshl_b32 s48, s48, 3")
    a("s_add_u32 s48, s48, %s" % sW)
    a("s_lshl_b32 s48, s48, 13")
    a("s_add_u32 s49, s48, 4096")
    a("v_lshlrev_b32 v124, 6, %s" % vR)
    a("v_lshl_add_u32 v124, %s, 4, v124" % vG)
    if args.dly2: a("s_sleep %d" % args.dly2)
    poll_masked("h2", [(lambda k=k: a("buffer_load_dwordx4 %s, v124, %s, %s offen offset:%d sc1" % (v(80 + 4 * k, 4), SWS, "s48" if k < 4 else "s49", QA + 1024 * (k & 3))), list(range(80 + 4 * k, 84 + 4 * k)), 't') for k in range(8)], slp=args.sleep2)
    for k in range(8):
        a("v_mov_b32 %s, %s" % (v(16 + 2 * k), v(80 + 4 * k)))
        a("v_mov_b32 %s, %s" % (v(17 + 2 * k), v(81 + 4 * k)))
    lds_add(W_GO2)
    stamp(5)
    for T in range(4):
        lds_wait("tile%d" % T, W_PROG, T + 3, vSYw)
        for s_ in range(4):
            a("ds_read_b128 %s, %s offset:%d" % (v(32 + 4 * s_, 4), v(4 + s_), 4096 * T))
        if T == 1:
            c("V^T operands for u=0 (tiles 0,1) -> v[80:111]")
            for t in range(4):
                for jh in range(2):
                    a("ds_read_b64_tr_b16 %s, %s offset:%d" % (v(80 + 4 * t + 2 * jh, 2), v(8 + t), 4096 * jh))
            a("s_waitcnt lgkmcnt(8)")
        elif T == 2:
            for t in range(4, 8):
                for jh in range(2):
                    a("ds_read_b64_tr_b16 %s, %s offset:%d" % (v(80 + 4 * t + 2 * jh, 2), v(8 + t), 4096 * jh))
            a("s_waitcnt lgkmcnt(8)")
        else:
            a("s_waitcnt lgkmcnt(0)")
        for s_ in range(4):
            a("v_mfma_f32_16x16x32_bf16 %s, %s, %s, %s" % (v(64 + 4 * T, 4), v(32 + 4 * s_, 4), v(16 + 4 * s_, 4), "0" if s_ == 0 else v(64 + 4 * T, 4)))
    c("partial scores of all 4 tiles -> own slab's tile-0 region (fully consumed)")
    a("s_nop 7")
    for T in range(4):
        a("ds_write_b128 v112, %s offset:%d" % (v(64 + 4 * T, 4), 1024 * T))
    a("s_waitcnt lgkmcnt(0)")
    lds_add(W_SC)
    lds_wait("sc", W_SC, 8)
    stamp(6)
    def rd(T, base):
        for k in range(8):
            a("ds_read_b128 %s, %s offset:%d" % (v(base + 4 * k, 4), "v113" if k < 4 else "v114", 16384 * (k & 3) + 1024 * T))
    def sm(T, base):
        for k in range(4):
            a("v_add_f32 %s, %s, %s" % (v(base + k), v(base + k), v(base + 4 + k)))
            a("v_add_f32 %s, %s, %s" % (v(base + 8 + k), v(base + 8 + k), v(base + 12 + k)))
            a("v_add_f32 %s, %s, %s" % (v(base + 16 + k), v(base + 16 + k), v(base + 20 + k)))
            a("v_add_f32 %s, %s, %s" % (v(base + 24 + k), v(base + 24 + k), v(base + 28 + k)))
        for k in range(4):
            a("v_add_f32 %s, %s, %s" % (v(base + k), v(base + k), v(base + 8 + k)))
            a("v_add_f32 %s, %s, %s" % (v(base + 16 + k), v(base + 16 + k), v(base + 24 + k)))
        for k in range(4):
            a("v_add_f32 %s, %s, %s" % (v(64 + 4 * T + k), v(base + k), v(base + 16 + k)))
    for T in range(4):
        rd(T, 16)
        a("s_waitcnt lgkmcnt(0)")
        sm(T, 16)
    a("v_max3_f32 v48, v64, v65, v66")
    for k in range(67, 79, 2):
        a("v_max3_f32 v48, v48, %s, %s" % (v(k), v(k + 1)))
    a("v_max_f32 v48, v48, v79")
    for op in ("v_permlane32_swap_b32", "v_permlane16_swap_b32"):
        a("v_mov_b32 v49, v48")
        a("s_nop 1")
        a("%s v48, v49" % op)
        a("s_nop 1")
        a("v_max_f32 v48, v48, v49")
    for k in range(16):
        a("v_sub_f32 %s, %s, v48" % (v(64 + k), v(64 + k)))
    for k in range(16):
        a("v_exp_f32 %s, %s" % (v(64 + k), v(64 + k)))
    a("s_nop 0")
    for u in range(2):
        for q in range(4):
            a("v_cvt_pk_bf16_f32 %s, %s, %s" % (v(52 + 4 * u + q), v(64 + 8 * u + 2 * q), v(64 + 8 * u + 2 * q + 1)))
    a("s_nop 1")
    for t in range(8):
        a("v_mfma_f32_16x16x32_bf16 %s, %s, v[52:55], 0" % (v(16 + 4 * t, 4), v(80 + 4 * t, 4)))
        for jh in range(2):
            a("ds_read_b64_tr_b16 %s, %s offset:%d" % (v(80 + 4 * t + 2 * jh, 2), v(8 + t), 8192 + 4096 * jh))
    c("row sum while the u=1 operands arrive")
    a("v_add_f32 v49, v64, v65")
    for k in range(66, 80):
        a("v_add_f32 v49, v49, %s" % v(k))
    for op in ("v_permlane32_swap_b32", "v_permlane16_swap_b32"):
        a("v_mov_b32 v50, v49")
        a("s_nop 1")
        a("%s v49, v50" % op)
        a("s_nop 1")
        a("v_add_f32 v49, v49, v50")
    if args.pcl == 0:
        a("v_lshlrev_b32 v6, 18, %s" % vR)
        a("v_lshl_add_u32 v6, %s, 4, v6" % vG)
        a("s_lshl_b32 s48, %s, 22" % sP)
        a("s_lshl_b32 s49, %s, 15" % sW)
        a("s_add_u32 s48, s48, s49")
        a("s_lshl_b32 s49, %s, 6" % sJ)
        a("s_add_u32 s48, s48, s49")
        a("s_add_u32 s48, s48, %d" % PC)
    else:
        a("v_lshlrev_b32 v6, 6, %s" % vR)
        a("v_lshl_add_u32 v6, %s, 4, v6" % vG)
        a("s_lshl_b32 s48, %s, 22" % sP)
        a("s_lshl_b32 s49, %s, 15" % sJ)
        a("s_add_u32 s48, s48, s49")
        a("s_lshl_b32 s49, %s, 12" % sW)
        a("s_add_u32 s48, s48, s49")
        a("s_add_u32 s48, s48, %d" % PC)
    a("s_waitcnt lgkmcnt(0)")
    for t in range(8):
        a("v_mfma_f32_16x16x32_bf16 %s, %s, v[56:59], %s" % (v(16 + 4 * t, 4), v(80 + 4 * t, 4), v(16 + 4 * t, 4)))
    a("s_nop 7")
    for up in range(4):
        for q in range(4):
            a("v_cvt_pk_bf16_f32 %s, %s, %s" % (v(80 + 4 * up + q), v(16 + 8 * up + 2 * q), v(16 + 8 * up + 2 * q + 1)))
        a("buffer_store_dwordx4 %s, v6, %s, s48 offen sc1" % (v(80 + 4 * up, 4), SWS))
        a("s_add_u32 s48, s48, %d" % (8192 if args.pcl == 0 else 1024))
    c("payload addresses for the H3 gather: wave w' = (u' = w'>>1, b = w'&1)")
    a("s_lshl_b32 s52, %s, 22" % sP)
    a("s_and_b32 s49, %s, 1" % sW)
    a("s_lshl_b32 s49, s49, 21")
    a("s_add_u32 s52, s52, s49")
    a("s_lshl_b32 s49, %s, 2" % sCs)
    a("s_lshr_b32 s53, %s, 1" % sW)
    a("s_add_u32 s49, s49, s53")
    a("s_lshl_b32 s49, s49, 10")
    a("s_add_u32 s52, s52, s49")
    a("s_lshl_b32 s49, %s, 6" % sH)
    a("s_add_u32 s52, s52, s49")
    a("s_add_u32 s52, s52, %d" % PC)
    a("v_lshrrev_b32 v5, 2, %s" % vLane)
    a("v_lshlrev_b32 v7, 2, v5")
    a("v_lshlrev_b32 v5, 15, v5")
    a("v_and_b32 v4, 3, %s" % vLane)
    a("v_lshl_add_u32 v5, v4, 4, v5")
    a("s_and_b32 s49, %s, 1" % sW)
    a("s_lshl_b32 s49, s49, 8")
    a("s_add_u32 s49, s49, %d" % SCL)
    a("v_add_u32 v7, s49, v7")
    a("v_lshlrev_b32 v6, 4, %s" % vLane)
    a("s_waitcnt vmcnt(0)")
    lds_add(W_PCD)
    stamp(7)
    a("s_cmp_lg_u32 %s, 0" % sW)
    a("s_cbranch_scc1 L_s3_nostat")
    c("wave 0: all partial-ctx stores drained -> stats granules {m,l,nonce} double as the H3 flags")
    a("v_lshlrev_b32 v8, 11, %s" % vR)
    a("s_lshl_b32 s48, %s, 15" % sP)
    a("s_lshl_b32 s49, %s, 4" % sJ)
    a("s_add_u32 s48, s48, s49")
    a("s_add_u32 s48, s48, %d" % ST)
    a("v_mov_b32 v50, %s" % sN0)
    a("v_mov_b32 v51, %s" % sN1)
    lds_wait("pcd", W_PCD, 8)
    a("s_mov_b64 exec, 0xffff")
    a("buffer_store_dwordx4 v[48:51], v8, %s, s48 offen sc1" % SWS)
    exec_all()
    lab("L_s3_nostat")
    a("s_cmp_lg_u32 %s, 7" % sW)
    a("s_cbranch_scc1 L_nopoll3")
    c("wave 7: poll the 128 stats granules of head h; lane l has producers l (b=0) and 64+l (b=1)")
    a("s_lshl_b32 s48, %s, 4" % sP)
    a("s_add_u32 s48, s48, %s" % sH)
    a("s_lshl_b32 s48, s48, 11")
    a("s_add_u32 s48, s48, %d" % ST)
    poll_masked("h3s", [(lambda k=k: a("buffer_load_dwordx4 %s, v6, %s, s48 offen offset:%d sc1" % (v(64 + 4 * k, 4), SWS, 1024 * k)), list(range(64 + 4 * k, 68 + 4 * k)), 't') for k in range(2)], slp=args.sleep3)
    lds_add(W_GO3)
    lab("L_nopoll3")
    lds_wait("go3", W_GO3, 1)
    stamp(8)
    for k in range(4):
        a("buffer_load_dwordx4 %s, v5, %s, s52 offen sc1" % (v(16 + 4 * k, 4), SWS))
        a("s_add_u32 s52, s52, %d" % (16 * 32768))
    a("s_cmp_lg_u32 %s, 7" % sW)
    a("s_cbranch_scc1 L_noscl")
    c("wave 7: scales 2^(m-M)/L for all 128 producers -> LDS")
    for b in range(2):
        m = 64 + 4 * b
        a("v_mov_b32 v80, %s" % v(m))
        for q in ("quad_perm:[1,0,3,2]", "quad_perm:[2,3,0,1]"):
            a("s_nop 1")
            a("v_max_f32_dpp v80, v80, v80 %s row_mask:0xf bank_mask:0xf" % q)
        xlane_reduce_2to5(80, 84, "v_max_f32")
        a("v_sub_f32 %s, %s, v80" % (v(m), v(m)))
        a("v_exp_f32 %s, %s" % (v(m), v(m)))
        a("s_nop 0")
        a("v_mul_f32 v81, %s, %s" % (v(m), v(m + 1)))
        for q in ("quad_perm:[1,0,3,2]", "quad_perm:[2,3,0,1]"):
            a("s_nop 1")
            a("v_add_f32_dpp v81, v81, v81 %s row_mask:0xf bank_mask:0xf" % q)
        xlane_reduce_2to5(81, 84, "v_add_f32")
        a("v_rcp_f32 v81, v81")
        a("s_nop 0")
        a("v_mul_f32 %s, %s, v81" % (v(m), v(m)))
    a("v_lshlrev_b32 v8, 2, %s" % vLane)
    a("v_add_u32 v8, %d, v8" % SCL)
    a("ds_write_b32 v8, v64")
    a("ds_write_b32 v8, v68 offset:256")
    a("s_waitcnt lgkmcnt(0)")
    lds_add(W_SCL)
    lab("L_noscl")
    lds_wait("scl", W_SCL, 1)
    for k in range(4):
        a("ds_read_b32 %s, v7 offset:%d" % (v(64 + k), 64 * k))
    a("v_and_b32 v6, 3, %s" % vLane)
    a("v_lshlrev_b32 v6, 4, v6")
    a("v_bfe_u32 v7, %s, 5, 1" % vLane)
    a("v_lshl_add_u32 v6, v7, 3, v6")
    a("v_bfe_u32 v7, %s, 4, 1" % vLane)
    a("v_lshl_add_u32 v6, v7, 2, v6")
    a("s_lshl_b32 s48, %s, 6" % sW)
    a("s_add_u32 s48, s48, %d" % CL)
    a("v_add_u32 v6, s48, v6")
    a("s_lshr_b32 s46, %s, 1" % sW)
    a("s_lshl_b32 s46, s46, 2")
    a("s_add_u32 s46, s46, %d" % SY)
    a("v_mov_b32 v122, s46")
    a("s_waitcnt vmcnt(0) lgkmcnt(0)")
    stamp(9)
    for k in range(4):
        for q in range(4):
            a("v_lshlrev_b32 v84, 16, %s" % v(16 + 4 * k + q))
            a("v_and_b32 v85, 0xffff0000, %s" % v(16 + 4 * k + q))
            op = "v_mul_f32" if k == 0 else "v_fmac_f32"
            a("%s %s, v84, %s" % (op, v(88 + 2 * q), v(64 + k)))
            a("%s %s, v85, %s" % (op, v(88 + 2 * q + 1), v(64 + k)))
    a("s_nop 1")
    for j in range(4):
        a("v_permlane32_swap_b32 %s, %s" % (v(88 + j), v(92 + j)))
    a("s_nop 1")
    for j in range(4):
        a("v_add_f32 %s, %s, %s" % (v(88 + j), v(88 + j), v(92 + j)))
    a("s_nop 1")
    for j in range(2):
        a("v_permlane16_swap_b32 %s, %s" % (v(88 + j), v(90 + j)))
    a("s_nop 1")
    for j in range(2):
        a("v_add_f32 %s, %s, %s" % (v(88 + j), v(88 + j), v(90 + j)))
    for ror in (4, 8):
        a("s_nop 1")
        for j in range(2):
            a("v_add_f32_dpp %s, %s, %s row_ror:%d row_mask:0xf bank_mask:0xf" % (v(88 + j), v(88 + j), v(88 + j), ror))
    a("v_cvt_pk_bf16_f32 v88, v88, v89")
    a("s_mov_b32 exec_lo, 0x000f000f"); a("s_mov_b32 exec_hi, 0x000f000f")
    a("ds_write_b32 v6, v88")
    exec_all()
    a("s_waitcnt lgkmcnt(0)")
    a("v_mov_b32 v121, 1")
    a("s_mov_b64 exec, 1")
    a("ds_add_u32 v122, v121 offset:%d" % (4 * W_CL))
    exec_all()
    stamp(10)
    a("s_endpgm")

def back():
    c("================ BACK waves 8..15")
    bulk_loader()
    nonce_ready()
    stamp(2)
    a("v_and_b32 v6, 1, %s" % vR)
    a("v_lshlrev_b32 v6, 6, v6")
    a("v_lshl_add_u32 v6, %s, 4, v6" % vG)
    a("s_lshr_b32 s46, %s, 1" % sWb)
    a("s_lshl_b32 s48, s46, 7")
    a("s_add_u32 s48, s48, %d" % CL)
    a("v_add_u32 v6, s48, v6")
    a("s_lshl_b32 s46, s46, 2")
    a("s_add_u32 s46, s46, %d" % SY)
    a("v_mov_b32 v122, s46")
    a("v_lshlrev_b32 v8, 9, %s" % vR)
    a("v_lshl_add_u32 v8, %s, 7, v8" % vG)
    a("s_lshl_b32 s48, %s, 10" % sWb)
    a("s_add_u32 s48, s48, %d" % P4)
    a("v_add_u32 v8, s48, v8")
    c("H4 addresses")
    a("s_lshl_b32 s52, %s, 4" % sP)
    a("s_add_u32 s52, s52, %s" % sH)
    a("s_lshl_b32 s52, s52, 15")
    lds_wait("cl", W_CL, 2, "v122")
    stamp(3)
    c("================ S4")
    a("ds_read_b128 v[4:7], v6")
    a("s_waitcnt lgkmcnt(0)")
    for i in range(8):
        a("v_mfma_f32_16x16x32_bf16 %s, %s, v[4:7], 0" % (v(80 + 4 * i, 4), v(16 + 4 * i, 4)))
    a("s_nop 7")
    exec_n2()
    for i in range(8):
        a("ds_write_b128 v8, %s offset:%d" % (v(80 + 4 * i, 4), 16 * i))
    exec_all()
    a("s_waitcnt lgkmcnt(0)")
    a("s_barrier")
    a("s_cmp_ge_u32 %s, 4" % sWb)
    a("s_cbranch_scc1 L_s5")
    c("waves 0..3: thread t<256 = granule (dhalf,g,b,i,half): sum 4 k-blocks, publish both copies")
    a("v_subrev_u32 v5, 512, v0")
    a("v_bfe_u32 v6, v5, 7, 1")
    a("v_lshlrev_b32 v6, 10, v6")
    a("v_bfe_u32 v7, v5, 4, 1")
    a("v_lshl_add_u32 v6, v7, 9, v6")
    a("v_bfe_u32 v7, v5, 5, 2")
    a("v_lshl_add_u32 v6, v7, 7, v6")
    a("v_and_b32 v7, 15, v5")
    a("v_lshl_add_u32 v6, v7, 3, v6")
    a("v_add_u32 v6, %d, v6" % P4)
    for k in range(4):
        a("ds_read_b64 %s, v6 offset:%d" % (v(16 + 2 * k, 2), 2048 * k))
    a("v_lshlrev_b32 v5, 4, v5")
    a("s_lshl_b32 s48, %s, 12" % sCs)
    a("s_add_u32 s48, s48, s52")
    a("s_add_u32 s49, s48, %d" % C4L)
    a("s_add_u32 s48, s48, %d" % C4)
    a("v_mov_b32 v26, %s" % sN0); a("v_mov_b32 v27, %s" % sN1)
    a("s_waitcnt lgkmcnt(0)")
    a("v_add_f32 v16, v16, v18"); a("v_add_f32 v17, v17, v19")
    a("v_add_f32 v20, v20, v22"); a("v_add_f32 v21, v21, v23")
    a("v_add_f32 v24, v16, v20"); a("v_add_f32 v25, v17, v21")
    a("buffer_store_dwordx4 v[24:27], v5, %s, s49 offen" % SWS)
    a("buffer_store_dwordx4 v[24:27], v5, %s, s48 offen sc1" % SWS)
    stamp(4)
    a("s_cmp_lg_u32 %s, 0" % sWb)
    a("s_cbranch_scc1 L_end")
    a("s_cmp_ge_u32 %s, 56" % sJ)
    a("s_cbranch_scc1 L_end")
    a("s_branch L_final")
    lab("L_s5")
    c("================ waves 4..7: H4 gather (8 producers x 512B for d-slice cs), S5 for m-block mb")
    a("v_lshrrev_b32 v6, 5, %s" % vLane)
    a("v_lshlrev_b32 v6, 12, v6")
    a("v_and_b32 v7, 31, %s" % vLane)
    a("v_lshl_add_u32 v6, v7, 4, v6")
    a("v_add_u32 v8, %d, v6" % (C4L - C4))
    a("v_mov_b32 v9, v6")
    a("v_mov_b32 v6, v8")
    a("s_lshl_b32 s48, %s, 9" % sCs)
    a("s_add_u32 s48, s48, s52")
    a("s_add_u32 s48, s48, %d" % C4)
    for k in range(1, 4): a("s_add_u32 s%d, s48, %d" % ([0, 49, 51, 53][k], 8192 * k))
    a("s_and_b32 s46, %s, 3" % sWb)
    a("s_lshl_b32 s47, s46, 7")
    a("s_add_u32 s47, s47, %d" % CB)
    a("v_lshlrev_b32 v10, 2, v7")
    a("v_add_u32 v10, s47, v10")
    a("v_and_b32 v11, 1, %s" % vR)
    a("v_lshlrev_b32 v11, 6, v11")
    a("v_lshl_add_u32 v11, %s, 4, v11" % vG)
    a("v_add_u32 v11, s47, v11")
    a("s_lshl_b32 s47, s46, 10")
    a("s_add_u32 s47, s47, %d" % P5)
    a("v_lshlrev_b32 v12, 9, %s" % vR)
    a("v_lshl_add_u32 v12, %s, 7, v12" % vG)
    a("v_add_u32 v12, s47, v12")
    a("v_lshlrev_b32 v13, 4, %s" % vLane)
    a("v_add_u32 v13, s47, v13")
    a("s_lshl_b32 s47, s46, 5")
    a("v_add_u32 v14, s47, v7")
    a("v_cmp_gt_u32 vcc, 112, v14")
    a("v_lshrrev_b32 v15, 5, %s" % vLane)
    a("v_mul_u32_u24 v15, 112, v15")
    a("v_add_u32 v14, v14, v15")
    a("v_lshlrev_b32 v14, 5, v14")
    a("v_mov_b32 v15, 0x7fff0000")
    a("v_cndmask_b32 v14, v15, v14, vcc")
    a("s_lshl_b32 s54, %s, 7" % sP)
    a("s_add_u32 s54, s54, %s" % sJ)
    a("s_mul_i32 s54, s54, 7168")
    a("s_add_u32 s54, s54, %d" % PO)
    if args.dly4: a("s_sleep %d" % args.dly4)
    def h4_next():
        a("s_and_b32 s46, s59, 3")
        a("s_cmp_eq_u32 s46, 1")
        a("s_cselect_b64 vcc, -1, 0")
        a("s_nop 1")
        a("v_cndmask_b32 v6, v8, v9, vcc")
    poll_masked("h4", [(lambda k=k: a("buffer_load_dwordx4 %s, v6, %s, s%d offen sc1" % (v(16 + 4 * k, 4), SWS, [48, 49, 51, 53][k])), list(range(16 + 4 * k, 20 + 4 * k)), 't') for k in range(4)], again=h4_next, slp=2)
    stamp(5)
    for e in range(2):
        a("v_add_f32 %s, %s, %s" % (v(16 + e), v(16 + e), v(20 + e)))
        a("v_add_f32 %s, %s, %s" % (v(24 + e), v(24 + e), v(28 + e)))
        a("v_add_f32 %s, %s, %s" % (v(16 + e), v(16 + e), v(24 + e)))
        a("v_mov_b32 v20, %s" % v(16 + e))
        a("s_nop 1")
        a("v_permlane32_swap_b32 %s, v20" % v(16 + e))
        a("s_nop 1")
        a("v_add_f32 %s, %s, v20" % (v(16 + e), v(16 + e)))
    a("v_cvt_pk_bf16_f32 v16, v16, v17")
    a("ds_write_b32 v10, v16")
    a("s_waitcnt lgkmcnt(0)")
    a("ds_read_b128 v[4:7], v11")
    a("s_waitcnt lgkmcnt(0)")
    for i in range(8):
        a("v_mfma_f32_16x16x32_bf16 %s, %s, v[4:7], 0" % (v(80 + 4 * i, 4), v(48 + 4 * i, 4)))
    a("v_mov_b32 v34, %s" % sN0); a("v_mov_b32 v35, %s" % sN1)
    a("v_mov_b32 v38, %s" % sN0); a("v_mov_b32 v39, %s" % sN1)
    a("s_nop 5")
    exec_n2()
    for i in range(8):
        a("ds_write_b128 v12, %s offset:%d" % (v(80 + 4 * i, 4), 16 * i))
    exec_all()
    a("s_waitcnt lgkmcnt(0)")
    a("ds_read_b128 v[16:19], v13")
    a("s_waitcnt lgkmcnt(0)")
    a("v_mov_b32 v32, v16"); a("v_mov_b32 v33, v17"); a("v_mov_b32 v36, v18"); a("v_mov_b32 v37, v19")
    a("buffer_store_dwordx4 v[32:35], v14, %s, s54 offen sc1" % SWS)
    a("buffer_store_dwordx4 v[36:39], v14, %s, s54 offen offset:16 sc1" % SWS)
    stamp(6)
    a("s_endpgm")
    lab("L_final")
    c("lane = (producer sub 8, granule 8); 16 loads x 8 producers; 128B per producer")
    a("v_lshrrev_b32 v6, 3, %s" % vLane)
    a("v_mul_u32_u24 v6, 7168, v6")
    a("v_and_b32 v7, 7, %s" % vLane)
    a("v_lshl_add_u32 v6, v7, 4, v6")
    a("s_mul_i32 s48, %s, %d" % (sP, 128 * 7168))
    a("s_lshl_b32 s49, %s, 7" % sJ)
    a("s_add_u32 s48, s48, s49")
    a("s_add_u32 s48, s48, %d" % PO)
    a("s_cmp_ge_u32 %s, 28" % sJ)
    a("s_cselect_b32 s49, 28, 0")
    a("s_cselect_b32 s51, 896, 0")
    a("s_sub_u32 s49, %s, s49" % sJ)
    a("s_lshl_b32 s49, s49, 4")
    a("s_and_b32 s52, s49, 0xffe0")
    a("s_lshr_b32 s49, s49, 2")
    a("s_and_b32 s49, s49, 7")
    a("s_add_u32 s52, s52, s49")
    a("s_add_u32 s52, s52, s51")
    a("s_mul_i32 s49, %s, 448" % sP)
    a("s_add_u32 s52, s52, s49")
    a("s_lshl_b32 s52, s52, 1")
    a("v_lshrrev_b32 v8, 1, v7")
    a("v_lshlrev_b32 v8, 1, v8")
    a("v_and_b32 v7, 1, v7")
    a("v_lshl_add_u32 v7, v7, 5, v8")
    def ld5(k):
        a("s_add_u32 s49, s48, %d" % (8 * 7168 * k))
        a("buffer_load_dwordx4 %s, v6, %s, s49 offen sc1" % (v(16 + 4 * k, 4), SWS))
    if args.dly5: a("s_sleep %d" % args.dly5)
    poll_masked("h5", [(lambda k=k: ld5(k), list(range(16 + 4 * k, 20 + 4 * k)), 't') for k in range(16)], slp=args.sleep5)
    stamp(5)
    for st in (8, 4, 2, 1):
        for k in range(st):
            for e in range(2):
                a("v_add_f32 %s, %s, %s" % (v(16 + 4 * k + e), v(16 + 4 * k + e), v(16 + 4 * (k + st) + e)))
    for e in range(2):
        a("s_nop 1")
        a("v_add_f32_dpp %s, %s, %s row_ror:8 row_mask:0xf bank_mask:0xf" % (v(16 + e), v(16 + e), v(16 + e)))
        for pop in ("v_permlane16_swap_b32", "v_permlane32_swap_b32"):
            a("v_mov_b32 v20, %s" % v(16 + e))
            a("s_nop 1")
            a("%s %s, v20" % (pop, v(16 + e)))
            a("s_nop 1")
            a("v_add_f32 %s, %s, v20" % (v(16 + e), v(16 + e)))
    a("v_cvt_pk_bf16_f32 v16, v16, v17")
    a("s_mov_b64 exec, 0xff")
    a("buffer_store_short v16, v7, %s, s52 offen" % SOUT)
    a("buffer_store_short_d16_hi v16, v7, %s, s52 offen offset:16" % SOUT)
    a("s_cmp_lg_u32 %s, 0" % sJ)
    a("s_cbranch_scc1 L_noep")
    c("advance the epoch word for a later launch on the same workspace")
    a("s_lshl_b32 s46, %s, 7" % sP)
    a("s_add_u32 s46, s46, %d" % EP)
    a("v_mov_b32 v20, %s" % sN0)
    a("v_mov_b32 v21, %s" % sN1)
    a("v_mov_b32 v22, 0")
    a("s_mov_b64 exec, 1")
    a("buffer_store_dwordx2 v[20:21], v22, %s, s46 offen sc1" % SWS)
    lab("L_noep")
    exec_all()
    stamp(6)

hdr = [l for l in open("concat_heads__compressed_kv_cla__compressed_kv_cla__decode.s.ref").read().split("\n") if l.startswith(";") and "@launch" not in l]
out.extend(hdr)
out.append("; @launch grid=(256,1,1) block=(1024,1,1) lds=%d" % LDS_BYTES)
out.extend(['.amdgcn_target "amdgcn-amd-amdhsa--gfx950"', ".text"])
out.extend([".globl %s" % KN, ".p2align 8", ".type %s,@function" % KN, KN + ":"])
prologue(256)
stamp(0)
a("s_cmp_ge_u32 %s, 8" % sW)
a("s_cbranch_scc1 L_back")
front()
lab("L_back")
back()
lab("L_end"); a("s_endpgm")
out.extend(['.section .rodata,"a"', ".p2align 6", ".amdhsa_kernel %s" % KN,
    "  .amdhsa_next_free_vgpr 128", "  .amdhsa_next_free_sgpr 96", "  .amdhsa_accum_offset 128",
    "  .amdhsa_group_segment_fixed_size 0", "  .amdhsa_kernarg_size 120", "  .amdhsa_user_sgpr_count 2",
    "  .amdhsa_user_sgpr_kernarg_segment_ptr 1", "  .amdhsa_system_sgpr_workgroup_id_x 1", ".end_amdhsa_kernel"])
print("\n".join(out))
```

```python
import sys, argparse
ap = argparse.ArgumentParser()
ap.add_argument("--stamp", type=int, default=0)
ap.add_argument("--spin", type=int, default=200000)
ap.add_argument("--sleep", type=int, default=4)
ap.add_argument("--ntq", type=int, default=1)
ap.add_argument("--depth", type=int, default=3)
ap.add_argument("--depth2", type=int, default=0)
ap.add_argument("--h1local", type=int, default=1)
ap.add_argument("--sleep3", type=int, default=4)
ap.add_argument("--sleep5", type=int, default=4)
ap.add_argument("--dly5", type=int, default=0)
ap.add_argument("--sleep2", type=int, default=8)
ap.add_argument("--stp", default="sc1")
ap.add_argument("--ldp", default="sc1")
ap.add_argument("--touch", type=int, default=0)
ap.add_argument("--slowmask", type=int, default=3)
ap.add_argument("--slp1", type=int, default=2)
ap.add_argument("--loadonly", type=int, default=0)
ap.add_argument("--adapt", type=int, default=0)
ap.add_argument("--wwait", type=int, default=0)
ap.add_argument("--dww", type=int, default=0)
ap.add_argument("--h2prog", type=int, default=0)
ap.add_argument("--hold", type=int, default=0)
ap.add_argument("--dwo", type=int, default=0)
ap.add_argument("--wpos", type=int, default=16)
ap.add_argument("--dly4", type=int, default=4)
ap.add_argument("--pause", type=int, default=-1)
ap.add_argument("--dly1", type=int, default=16)
ap.add_argument("--dly2", type=int, default=16)
ap.add_argument("--pcl", type=int, default=1)
ap.add_argument("--dense", type=int, default=1)
ap.add_argument("--prio", type=int, default=0)
ap.add_argument("--clrpos", type=int, default=8)
args = ap.parse_args()
NT = " nt"
NTQ = " nt" if args.ntq else ""

KN = "concat_heads__compressed_kv_cla__compressed_kv_cla__decode_kernel"
out = []
def a(s): out.append("    " + s)
def lab(s): out.append(s + ":")
def c(s): out.append("    ; " + s)

QA = 0
PC = 1 << 20
Q1 = 9 << 20
C4 = 16 << 20
C4L = 17 << 20
Q1L = 15 << 20
ST = 10 << 20
FL = (10 << 20) + (256 << 10)
EP = (10 << 20) + (512 << 10)
PO = 13 << 20
STAMP = 12 << 20
WS_USED = 18 << 20
X0 = 131072
P1 = X0
QL = X0 + 16384
SY = QL + 1024
W_S1P, W_Q, W_GO2, W_S1C, W_SC, W_PROG, W_CL, W_S2C, W_QAD, W_GO3, W_PCD, W_SCL, W_HOLD = 0, 1, 2, 3, 4, 8, 16, 24, 32, 33, 34, 35, 36
SCL = SY + 256
CL = X0
P4 = X0 + 4096
CB = X0 + 12288
P5 = 16384
LDS_BYTES = 163840

sW, sP, sH, sCs, sJ = "s3", "s4", "s5", "s6", "s7"
SX, SKV, SWQ, SUK, SUV, SWO, SWS, SOUT, SDBG = ["s[%d:%d]" % (i, i + 3) for i in range(8, 44, 4)]
sSel0, sSel1 = "s44", "s45"
sWb = "s50"
sN0, sN1 = "s92", "s93"
sSent = "s94"
vLane, vR, vG = "v1", "v2", "v3"
vSY, vSYw = "v123", "v125"
def v(i, n=1): return "v%d" % i if n == 1 else "v[%d:%d]" % (i, i + n - 1)
def exec_n2():
    a("s_mov_b32 exec_lo, 0x00030003"); a("s_mov_b32 exec_hi, 0x00030003")
def exec_all(): a("s_mov_b64 exec, -1")

FINAL = [False]
def stamp(idx):
    if not args.stamp: return
    if args.stamp == 2 and not (idx == 0 or (idx == 8 and FINAL[0])): return
    a("s_memrealtime s[56:57]")
    a("s_lshl_b32 s58, s2, 4")
    a("s_add_u32 s58, s58, %s" % sW)
    a("s_lshl_b32 s58, s58, 6")
    a("s_add_u32 s58, s58, %d" % (STAMP + 4 * idx))
    a("s_waitcnt lgkmcnt(0)")
    a("v_mov_b32 v127, s56")
    a("v_mov_b32 v126, 0")
    a("s_mov_b64 s[56:57], exec")
    a("s_mov_b64 exec, 1")
    a("buffer_store_dword v127, v126, %s, s58 offen" % SWS)
    a("s_mov_b64 exec, s[56:57]")

def cnt_stamp(idx):
    if args.stamp != 1: return
    a("s_lshl_b32 s58, s2, 4")
    a("s_add_u32 s58, s58, %s" % sW)
    a("s_lshl_b32 s58, s58, 6")
    a("s_add_u32 s58, s58, %d" % (STAMP + 4 * idx))
    a("s_sub_u32 s56, %d, s59" % args.spin)
    a("v_mov_b32 v127, s56")
    a("v_mov_b32 v126, 0")
    a("s_mov_b64 exec, 1")
    a("buffer_store_dword v127, v126, %s, s58 offen" % SWS)
    a("s_mov_b64 exec, -1")

def prologue(nwg):
    a("s_cmp_ge_u32 s2, %d" % nwg)
    a("s_cbranch_scc1 L_end")
    a("s_load_dwordx16 s[60:75], s[0:1], 0")
    a("s_load_dwordx8 s[76:83], s[0:1], 64")
    a("s_load_dwordx4 s[84:87], s[0:1], 96")
    a("s_load_dwordx2 s[88:89], s[0:1], 112")
    a("v_and_b32 %s, 63, v0" % vLane)
    a("v_lshrrev_b32 v4, 6, v0")
    a("v_and_b32 %s, 15, v0" % vR)
    a("v_readfirstlane_b32 %s, v4" % sW)
    a("v_bfe_u32 %s, v0, 4, 2" % vG)
    a("s_and_b32 s46, s2, 7")
    a("s_lshr_b32 s47, s2, 3")
    a("s_lshr_b32 %s, s46, 2" % sP)
    a("s_and_b32 s46, s46, 3")
    a("s_lshl_b32 %s, s46, 2" % sH)
    a("s_lshr_b32 s48, s47, 3")
    a("s_add_u32 %s, %s, s48" % (sH, sH))
    a("s_and_b32 %s, s47, 7" % sCs)
    a("s_lshl_b32 %s, s46, 5" % sJ)
    a("s_add_u32 %s, %s, s47" % (sJ, sJ))
    a("s_mov_b32 %s, 0x05040100" % sSel0)
    a("s_mov_b32 %s, 0x07060302" % sSel1)
    sizes = [1792, 16777216, 3670016, 8388608, 8388608, 3670016]
    for k in range(6):
        a("s_mov_b32 s%d, %d" % (8 + 4 * k + 2, sizes[k]))
        a("s_mov_b32 s%d, 0x20000" % (8 + 4 * k + 3))
    a("s_mov_b32 s34, %d" % WS_USED); a("s_mov_b32 s35, 0x20000")
    a("s_mov_b32 s38, 3584"); a("s_mov_b32 s39, 0x20000")
    a("s_mov_b32 s42, 256"); a("s_mov_b32 s43, 0x20000")
    a("s_sub_u32 %s, %s, 8" % (sWb, sW))
    a("s_mov_b32 %s, 0xfffffffe" % sSent)
    a("v_mov_b32 %s, %d" % (vSY, SY))
    a("s_and_b32 s46, %s, 7" % sW)
    a("s_lshl_b32 s46, s46, 2")
    a("s_add_u32 s46, s46, %d" % SY)
    a("v_mov_b32 %s, s46" % vSYw)
    a("s_cmp_lg_u32 %s, 7" % sW)
    a("s_cbranch_scc1 L_noinit")
    a("v_lshl_add_u32 v4, %s, 2, %s" % (vLane, vSY))
    a("v_mov_b32 v5, 0")
    a("ds_write_b32 v4, v5")
    lab("L_noinit")
    a("s_cmp_eq_u32 %s, 0" % sP)
    a("s_waitcnt lgkmcnt(0)")
    for k in range(6):
        a("s_cselect_b64 s[%d:%d], s[%d:%d], s[%d:%d]" % (8 + 4 * k, 9 + 4 * k, 60 + 2 * k, 61 + 2 * k, 72 + 2 * k, 73 + 2 * k))
    a("s_mov_b64 s[32:33], s[88:89]")
    a("s_mov_b64 s[36:37], s[84:85]")
    a("s_mov_b64 s[40:41], s[86:87]")
    c("launch nonce = epoch word found in d_ws + 1 (only tells this launch's tags/flags from stale ones)")
    a("s_lshl_b32 s46, %s, 7" % sP)
    a("s_add_u32 s46, s46, %d" % EP)
    a("s_load_dwordx2 s[92:93], s[88:89], s46")

def nonce_ready():
    a("s_waitcnt lgkmcnt(0)")
    a("s_add_u32 %s, %s, 1" % (sN0, sN0))
    a("s_addc_u32 %s, %s, 0" % (sN1, sN1))

def perms(T, L, i):
    k, e = i >> 1, i & 1
    for jj in range(4):
        a("v_perm_b32 %s, %s, %s, %s" % (v(T + jj), v(L + 4 * (2 * jj + 1) + k), v(L + 4 * (2 * jj) + k), sSel1 if e else sSel0))

def block_mfma(L, B, D, first, T0=80, T1=84):
    Ts = [T0, T1]
    perms(Ts[0], L, 0)
    for i in range(8):
        if i < 7: perms(Ts[(i + 1) & 1], L, i + 1)
        else: a("s_nop 1")
        a("v_mfma_f32_16x16x32_bf16 %s, %s, %s, %s" % (v(D + 4 * i, 4), v(Ts[i & 1], 4), v(B, 4), "0" if first else v(D + 4 * i, 4)))

def transpose_inplace(L, t0, t1):
    def pr(jj, k): return (L + 8 * jj + k, L + 8 * jj + 4 + k)
    for jj in range(4):
        lo, hi = pr(jj, jj)
        a("v_perm_b32 %s, %s, %s, %s" % (v(t0), v(hi), v(lo), sSel0))
        a("v_perm_b32 %s, %s, %s, %s" % (v(hi), v(hi), v(lo), sSel1))
        a("v_mov_b32 %s, %s" % (v(lo), v(t0)))
    for jj in range(4):
        for k in range(jj + 1, 4):
            A0, A1 = pr(jj, k); B0, B1 = pr(k, jj)
            a("v_perm_b32 %s, %s, %s, %s" % (v(t0), v(A1), v(A0), sSel0))
            a("v_perm_b32 %s, %s, %s, %s" % (v(t1), v(A1), v(A0), sSel1))
            a("v_perm_b32 %s, %s, %s, %s" % (v(A0), v(B1), v(B0), sSel0))
            a("v_perm_b32 %s, %s, %s, %s" % (v(A1), v(B1), v(B0), sSel1))
            a("v_mov_b32 %s, %s" % (v(B0), v(t0)))
            a("v_mov_b32 %s, %s" % (v(B1), v(t1)))

def desent(regs):
    for r in regs: a("v_min_u32 %s, %s, %s" % (v(r), sSent, v(r)))

def poll_masked(name, loads, tmp=120, again=None, slp=None, adapt=0):
    n = len(loads)
    assert n <= 16
    M = lambda k: "s[%d:%d]" % (60 + 2 * k, 61 + 2 * k)
    for k in range(n): a("s_mov_b64 %s, -1" % M(k))
    a("s_mov_b32 s59, %d" % args.spin)
    lab("L_pm_%s" % name)
    for k, (emit, regs, kind) in enumerate(loads):
        a("s_mov_b64 exec, %s" % M(k))
        if n > 2: a("s_cbranch_execz L_pmsk_%s_%d" % (name, k))
        emit()
        if n > 2: lab("L_pmsk_%s_%d" % (name, k))
    exec_all()
    a("s_waitcnt vmcnt(0)")
    for k, (emit, regs, kind) in enumerate(loads):
        rs = list(regs)
        if kind == 's':
            if len(rs) == 1:
                a("v_cmp_eq_u32 %s, -1, %s" % (M(k), v(rs[0])))
            elif len(rs) == 2:
                a("v_max_u32 %s, %s, %s" % (v(tmp), v(rs[0]), v(rs[1])))
                a("v_cmp_eq_u32 %s, -1, %s" % (M(k), v(tmp)))
            else:
                a("v_max3_u32 %s, %s, %s, %s" % (v(tmp), v(rs[0]), v(rs[1]), v(rs[2])))
                a("v_max_u32 %s, %s, %s" % (v(tmp), v(tmp), v(rs[3])))
                a("v_cmp_eq_u32 %s, -1, %s" % (M(k), v(tmp)))
        else:
            a("v_xor_b32 %s, %s, %s" % (v(tmp), sN0, v(rs[-2])))
            a("v_xor_b32 %s, %s, %s" % (v(tmp + 1), sN1, v(rs[-1])))
            a("v_or_b32 %s, %s, %s" % (v(tmp), v(tmp), v(tmp + 1)))
            a("v_cmp_ne_u32 %s, 0, %s" % (M(k), v(tmp)))
    a("s_nop 1")
    if n == 1:
        a("s_cmp_eq_u64 %s, 0" % M(0))
    else:
        a("s_or_b64 s[56:57], %s, %s" % (M(0), M(1)))
        for k in range(2, n): a("s_or_b64 s[56:57], s[56:57], %s" % M(k))
        a("s_cmp_eq_u64 s[56:57], 0")
    a("s_cbranch_scc1 L_pmok_%s" % name)
    if slp is None: slp = args.sleep
    if adapt:
        a("s_bcnt1_i32_b64 s56, %s" % M(0))
        a("s_bcnt1_i32_b64 s57, %s" % M(1))
        a("s_add_u32 s56, s56, s57")
        a("s_cmp_le_u32 s56, %d" % adapt)
        a("s_cbranch_scc1 L_pmsh_%s" % name)
    if slp: a("s_sleep %d" % slp)
    if adapt:
        lab("L_pmsh_%s" % name)
        a("s_sleep 2")
    if again: again()
    a("s_sub_u32 s59, s59, 1")
    a("s_cmp_lg_u32 s59, 0")
    a("s_cbranch_scc1 L_pm_%s" % name)
    lab("L_pmok_%s" % name)

def lds_wait(name, word, target, areg=vSY, sreg="s58"):
    a("s_mov_b32 s59, 4000000")
    lab("L_lw_%s" % name)
    a("ds_read_b32 v121, %s offset:%d" % (areg, 4 * word))
    a("s_waitcnt lgkmcnt(0)")
    a("v_readfirstlane_b32 %s, v121" % sreg)
    a("s_cmp_ge_u32 %s, %d" % (sreg, target))
    a("s_cbranch_scc1 L_lwok_%s" % name)
    a("s_sleep 1")
    a("s_sub_u32 s59, s59, 1")
    a("s_cmp_lg_u32 s59, 0")
    a("s_cbranch_scc1 L_lw_%s" % name)
    lab("L_lwok_%s" % name)
def lds_add(word):
    a("v_mov_b32 v121, 1")
    a("s_mov_b64 exec, 1")
    a("ds_add_u32 %s, v121 offset:%d" % (vSY, 4 * word))
    exec_all()
def hold(bit, on):
    if not (args.hold >> bit) & 1: return
    a("v_mov_b32 v121, %d" % (1 if on else -1))
    a("s_mov_b64 exec, 1")
    a("ds_add_u32 %s, v121 offset:%d" % (vSY, 4 * W_HOLD))
    exec_all()
HC = [0]
def hold_check():
    if not args.hold: return
    HC[0] += 1
    n = HC[0]
    a("s_mov_b32 s59, 100000")
    lab("L_hc%d" % n)
    a("ds_read_b32 v121, %s offset:%d" % (vSY, 4 * W_HOLD))
    a("s_waitcnt lgkmcnt(0)")
    a("v_readfirstlane_b32 s58, v121")
    a("s_cmp_eq_u32 s58, 0")
    a("s_cbranch_scc1 L_hcok%d" % n)
    a("s_sleep 1")
    a("s_sub_u32 s59, s59, 1")
    a("s_cmp_lg_u32 s59, 0")
    a("s_cbranch_scc1 L_hc%d" % n)
    lab("L_hcok%d" % n)
def lds_set_w(word, val):
    a("v_mov_b32 v121, %d" % val)
    a("s_mov_b64 exec, 1")
    a("ds_write_b32 %s, v121 offset:%d" % (vSYw, 4 * word))
    exec_all()

def flag_store(off):
    a("s_lshl_b32 s48, %s, 7" % sP)
    a("s_add_u32 s48, s48, %s" % sJ)
    a("s_lshl_b32 s48, s48, 7")
    a("s_add_u32 s48, s48, %d" % FL)
    a("v_mov_b32 v122, 0")
    a("v_mov_b32 v120, %s" % sN0)
    a("v_mov_b32 v121, %s" % sN1)
    a("s_mov_b64 exec, 1")
    a("buffer_store_dwordx2 v[120:121], v122, %s, s48 offen offset:%d sc1" % (SWS, off))
    exec_all()
def flag_poll_all(name, off):
    a("s_lshl_b32 s48, %s, 14" % sP)
    a("s_add_u32 s48, s48, %d" % FL)
    a("s_add_u32 s49, s48, 8192")
    a("v_lshlrev_b32 v122, 7, %s" % vLane)
    poll_masked(name, [
        (lambda: a("buffer_load_dwordx2 v[116:117], v122, %s, s48 offen offset:%d sc1" % (SWS, off)), [116, 117], 't'),
        (lambda: a("buffer_load_dwordx2 v[118:119], v122, %s, s49 offen offset:%d sc1" % (SWS, off)), [118, 119], 't')])

def xlane_reduce_2to5(reg, tmp, op):
    for ror in (4, 8):
        a("s_nop 1")
        a("%s_dpp %s, %s, %s row_ror:%d row_mask:0xf bank_mask:0xf" % (op, v(reg), v(reg), v(reg), ror))
    for pop in ("v_permlane16_swap_b32", "v_permlane32_swap_b32"):
        a("v_mov_b32 %s, %s" % (v(tmp), v(reg)))
        a("s_nop 1")
        a("%s %s, %s" % (pop, v(reg), v(tmp)))
        a("s_nop 1")
        a("%s %s, %s, %s" % (op, v(reg), v(reg), v(tmp)))

def bulk_loader():
    D = args.depth
    c("w_q first (most urgent), waves 0..3: i = wb: blk = i>>1, dh = i&1 ; v4 = g*65536 + r*16 ; s63")
    a("s_lshl_b32 s51, %s, 14" % sWb)
    a("s_lshl_b32 s65, %s, 15" % sWb)
    a("v_lshlrev_b32 v4, 16, %s" % vG)
    a("v_lshl_add_u32 v4, %s, 4, v4" % vR)
    a("s_lshl_b32 s63, %s, 19" % sCs)
    a("s_bfe_u32 s49, %s, 0x10001" % sWb)
    a("s_lshl_b32 s49, s49, 18")
    a("s_add_u32 s63, s63, s49")
    a("s_lshl_b32 s49, %s, 9" % sH)
    a("s_add_u32 s63, s63, s49")
    a("s_and_b32 s49, %s, 1" % sWb)
    a("s_lshl_b32 s49, s49, 8")
    a("s_add_u32 s63, s63, s49")
    a("s_cmp_ge_u32 %s, 4" % sWb)
    a("s_cbranch_scc1 L_nowq")
    for j in range(8):
        a("s_add_u32 s49, s65, %d" % (16384 * (j >> 2) + 4096 + 1024 * (j & 3)))
        a("s_mov_b32 m0, s49")
        a("s_nop 0")
        a("buffer_load_dwordx4 v4, %s, s63 offen%s lds" % (SWQ, NT))
        a("s_add_u32 s63, s63, 8192")
    lab("L_nowq")
    def rest_addr():
        for tq in range(4):
            a("v_add_u32 v120, %d, %s" % (4 * tq, vG))
            a("v_and_b32 v121, 7, v120")
            a("v_lshlrev_b32 v121, 1, v121")
            a("v_lshrrev_b32 v126, 3, v120")
            a("v_or_b32 v121, v121, v126")
            a("v_xor_b32 v121, v121, %s" % vR)
            a("v_lshlrev_b32 v121, 4, v121")
            a("v_lshl_add_u32 %s, v120, 11, v121" % v(116 + tq))
        a("s_lshl_b32 s62, %s, 17" % sJ)
        a("s_lshl_b32 s49, %s, 8" % sWb)
        a("s_add_u32 s62, s62, s49")
        a("v_lshlrev_b32 v5, 13, %s" % vR)
        a("v_lshl_add_u32 v5, %s, 4, v5" % vG)
        a("s_lshl_b32 s64, %s, 20" % sCs)
        a("s_lshl_b32 s49, %s, 17" % sWb)
        a("s_add_u32 s64, s64, s49")
        a("s_lshl_b32 s49, %s, 9" % sH)
        a("s_add_u32 s64, s64, s49")
        a("v_lshlrev_b32 v6, 15, %s" % vG)
        a("v_lshl_add_u32 v6, %s, 4, v6" % vR)
        a("s_lshl_b32 s60, %s, 20" % sCs)
        a("s_lshr_b32 s49, %s, 1" % sWb)
        a("s_lshl_b32 s49, s49, 18")
        a("s_add_u32 s60, s60, s49")
        a("s_lshl_b32 s49, %s, 9" % sH)
        a("s_add_u32 s60, s60, s49")
        a("s_and_b32 s49, %s, 1" % sWb)
        a("s_lshl_b32 s49, s49, 8")
        a("s_add_u32 s60, s60, s49")
        a("v_mul_u32_u24 v7, 1792, %s" % vG)
        a("v_lshl_add_u32 v7, %s, 4, v7" % vR)
        a("s_lshl_b32 s61, %s, 8" % sH)
        a("s_lshl_b32 s49, %s, 5" % sCs)
        a("s_add_u32 s61, s61, s49")
        a("s_mul_i32 s61, s61, 896")
        a("s_and_b32 s53, %s, 3" % sWb)
        a("s_lshl_b32 s49, s53, 8")
        a("s_add_u32 s61, s61, s49")
        a("v_mov_b32 v9, 0x7fff0000")
        a("s_cmp_eq_u32 %s, 7" % sWb)
        a("s_cbranch_scc0 L_nomask")
        a("v_cmp_lt_u32 vcc, 7, %s" % vR)
        a("s_nop 1")
        a("v_cndmask_b32 v7, v7, v9, vcc")
        lab("L_nomask")
        a("s_barrier")

    items = []
    len_before = 0
    def dma(srd, vaddr, soff, ldsoff, post=None, inst_off=0):
        def f():
            a("s_add_u32 s49, s51, %d" % (ldsoff - inst_off))
            a("s_mov_b32 m0, s49")
            a("s_nop 0")
            a("buffer_load_dwordx4 %s, %s, %s offen%s%s lds" % (vaddr, srd, soff, (" offset:%d" % inst_off) if inst_off else "", NT))
            if post: a(post)
        return f
    rest_addr()
    c("waves 0..3: w_q landed -> progress 1")
    a("s_cmp_ge_u32 %s, 4" % sWb)
    a("s_cbranch_scc1 L_nowq2")
    a("s_waitcnt vmcnt(0)")
    lds_set_w(W_PROG, 1)
    lab("L_nowq2")
    for s_ in range(8):
        items.append([dma(SUK, "v5", "s64", 8192 + 1024 * s_, None, 64 * s_), (lambda: lds_set_w(W_PROG, 2)) if s_ == 7 else None, None])
    def clr_items():
        for up in range(4):
            def f():
                a("buffer_store_dwordx4 v[112:115], v10, %s, s65 offen sc1" % SWS)
                a("s_add_u32 s65, s65, 8192")
            items.append([f, None, None])
        items.append([lambda: a("buffer_store_dwordx4 v[112:115], v11, %s, s66 offen sc1" % SWS), None, None])
        items.append([lambda: a("buffer_store_dwordx2 v[112:113], v12, %s, s67 offen sc1" % SWS), lambda: lds_add(W_CLR), None])
    def weight_items():
        nonlocal len_before
        len_before = len(items)
        for j in range(8):
            def f(j=j):
                a("buffer_load_dwordx4 %s, v6, %s, s60 offen%s" % (v(16 + 4 * j, 4), SUV, NT))
                a("s_add_u32 s60, s60, %d" % (8192 if j != 3 else 13 * 8192))
            bf = None
            if j == 0 and args.wwait:
                def bf():
                    a("s_waitcnt vmcnt(0)")
                    complete_upto(len_before - 1)
                    if args.wwait == 1: lds_wait("wwait", W_PCD, 8)
                    else: lds_wait("wwait", W_SC, 8)
            items.append([f, (lambda: transpose_inplace(16, 112, 113)) if j == 7 else None, bf])
        for j in range(8):
            def f(j=j):
                c("w_o only for waves 4..7")
                a("s_cmp_lt_u32 %s, 4" % sWb)
                a("s_cbranch_scc1 L_nowo%d" % j)
                a("buffer_load_dwordx4 %s, v7, %s, s61 offen%s" % (v(48 + 4 * j, 4), SWO, NT))
                lab("L_nowo%d" % j)
                if j < 7:
                    a("s_add_u32 s61, s61, %d" % (8 * 896 if j != 3 else (896 - 24 * 896) & 0xffffffff))
            items.append([f, (lambda: transpose_inplace(48, 112, 113)) if j == 7 else None, None, "opt"])
    for t in range(16):
        if t == args.wpos: weight_items()
        post = "s_add_u32 s62, s62, 32768" if (t & 3 == 3 and t < 15) else None
        def done(t=t):
            lds_set_w(W_PROG, 3 + t // 4)
            if t == 15: stamp(1)
        before = None
        if t == 4: before = lambda: lds_wait("s1c", W_S1C, 4)
        if t == 8: before = lambda: lds_wait("s2c", W_S2C, 1, vSYw)
        items.append([dma(SKV, v(116 + (t & 3)), "s62", 1024 * t, post), done if t & 3 == 3 else None, before])
    if args.wpos >= 16: weight_items()
    nkv = 1 << 30
    n = len(items)
    done = -1
    def complete_upto(k):
        nonlocal done
        for q in range(done + 1, k + 1):
            if items[q][1]: items[q][1]()
        done = max(done, k)
    def youngest_cover(k, N):
        cnt = 0; q = k
        while q >= 0 and cnt < N:
            if len(items[q]) < 4: cnt += 1
            q -= 1
        return q
    for k in range(n):
        if items[k][2]: items[k][2]()
        hold_check()
        items[k][0]()
        Dk = args.dwo if (args.dwo and len(items[k]) == 4) else D
        if args.dww and len_before <= k < len_before + 8: Dk = args.dww
        if k >= D - 1:
            a("s_waitcnt vmcnt(%d)" % (Dk - 1))
            complete_upto(youngest_cover(k, Dk - 1))
    for N in range(max(D, args.dwo, args.dww) - 2, -1, -1):
        a("s_waitcnt vmcnt(%d)" % N)
        complete_upto(youngest_cover(n - 1, N))

def front():
    c("================ FRONT waves 0..7")
    if args.prio: a("s_setprio %d" % args.prio)
    a("s_barrier")
    nonce_ready()
    if args.loadonly:
        lds_add(W_S1C)
        lds_set_w(W_S2C, 1)
        a("s_endpgm")
    a("s_cmp_ge_u32 %s, 4" % sW)
    a("s_cbranch_scc1 L_nos1")
    c("S1 (waves 0..3): rows 64cs+32blk.., cols 128dh..")
    a("v_and_b32 v5, 1, %s" % vR)
    a("v_mul_u32_u24 v5, 896, v5")
    a("v_lshl_add_u32 v5, %s, 4, v5" % vG)
    a("s_lshl_b32 s46, %s, 1" % sCs)
    a("s_lshr_b32 s47, %s, 1" % sW)
    a("s_add_u32 s46, s46, s47")
    a("s_lshl_b32 s48, s46, 6")
    a("buffer_load_dwordx4 v[8:11], v5, %s, s48 offen" % SX)
    a("s_lshl_b32 s46, %s, 15" % sW)
    a("v_lshlrev_b32 v6, 4, %s" % vLane)
    a("v_add_u32 v6, s46, v6")
    a("s_lshl_b32 s48, %s, 10" % sW)
    a("s_add_u32 s48, s48, %d" % P1)
    a("v_lshlrev_b32 v7, 9, %s" % vR)
    a("v_lshl_add_u32 v7, %s, 7, v7" % vG)
    a("v_add_u32 v7, s48, v7")
    lds_wait("wq0", W_PROG, 1, vSYw)
    for j in range(4):
        a("ds_read_b128 %s, v6 offset:%d" % (v(48 + 4 * j, 4), 4096 + 1024 * j))
    for j in range(4, 8):
        a("ds_read_b128 %s, v6 offset:%d" % (v(48 + 4 * j, 4), 16384 + 4096 + 1024 * (j & 3)))
    a("s_waitcnt vmcnt(0) lgkmcnt(0)")
    stamp(14)
    lds_add(W_S1C)
    block_mfma(48, 8, 88, True)
    a("s_nop 7")
    exec_n2()
    for i in range(8):
        a("ds_write_b128 v7, %s offset:%d" % (v(88 + 4 * i, 4), 16 * i))
    exec_all()
    a("s_waitcnt lgkmcnt(0)")
    lds_add(W_S1P)
    c("waves 0,1: batch b = w: sum the two row blocks, publish 2 x 1KB of tagged granules")
    a("s_cmp_ge_u32 %s, 2" % sW)
    a("s_cbranch_scc1 L_s1done")
    a("v_bfe_u32 v6, %s, 5, 1" % vLane)
    a("v_lshlrev_b32 v6, 10, v6")
    a("v_and_b32 v7, 31, %s" % vLane)
    a("v_lshl_add_u32 v6, v7, 4, v6")
    a("s_lshl_b32 s46, %s, 9" % sW)
    a("s_add_u32 s46, s46, %d" % P1)
    a("v_add_u32 v6, s46, v6")
    a("v_lshlrev_b32 v7, 4, %s" % vLane)
    a("s_lshl_b32 s48, %s, 4" % sP)
    a("s_add_u32 s48, s48, %s" % sH)
    a("s_lshl_b32 s48, s48, 3")
    a("s_add_u32 s48, s48, %s" % sCs)
    a("s_lshl_b32 s48, s48, 12")
    a("s_lshl_b32 s46, %s, 11" % sW)
    a("s_add_u32 s48, s48, s46")
    a("s_add_u32 s48, s48, %d" % Q1)
    a("v_mov_b32 v98, %s" % sN0); a("v_mov_b32 v99, %s" % sN1)
    a("v_mov_b32 v102, %s" % sN0); a("v_mov_b32 v103, %s" % sN1)
    lds_wait("s1p", W_S1P, 4)
    a("ds_read_b128 v[88:91], v6")
    a("ds_read_b128 v[92:95], v6 offset:2048")
    a("s_waitcnt lgkmcnt(0)")
    a("v_add_f32 v96, v88, v92"); a("v_add_f32 v97, v89, v93")
    a("v_add_f32 v100, v90, v94"); a("v_add_f32 v101, v91, v95")
    if args.h1local:
        a("s_add_u32 s46, s48, %d" % (Q1L - Q1))
        a("buffer_store_dwordx4 v[96:99], v7, %s, s46 offen" % SWS)
        a("buffer_store_dwordx4 v[100:103], v7, %s, s46 offen offset:1024" % SWS)
    a("buffer_store_dwordx4 v[96:99], v7, %s, s48 offen sc1" % SWS)
    a("buffer_store_dwordx4 v[100:103], v7, %s, s48 offen offset:1024 sc1" % SWS)
    stamp(15)
    a("s_branch L_s1done")
    lab("L_nos1")
    if args.touch:
        c("pre-touch this workgroup's share of the hand-off regions (brings the lines into the memory-side cache early)")
        a("v_subrev_u32 v5, 256, v0")
        a("v_lshlrev_b32 v6, 4, v5")
        a("s_lshl_b32 s46, s2, 12")
        a("s_add_u32 s47, s46, %d" % Q1)
        a("buffer_load_dwordx4 v[88:91], v6, %s, s47 offen" % SWS)
        a("s_add_u32 s47, s46, %d" % C4)
        a("buffer_load_dwordx4 v[88:91], v6, %s, s47 offen" % SWS)
        a("s_mul_i32 s47, s2, 7168")
        a("s_add_u32 s47, s47, %d" % PO)
        a("buffer_load_dwordx4 v[88:91], v6, %s, s47 offen" % SWS)
        a("buffer_load_dwordx4 v[88:91], v6, %s, s47 offen offset:3072" % SWS)
        a("v_lshlrev_b32 v7, 2, v5")
        a("s_lshl_b32 s46, s2, 10")
        a("buffer_load_dword v88, v7, %s, s46 offen offset:%d" % (SWS, QA))
        a("s_lshl_b32 s46, s2, 8")
        a("s_add_u32 s46, s46, %d" % ST)
        a("v_and_b32 v7, 0xfc, v7")
        a("buffer_load_dword v88, v7, %s, s46 offen" % SWS)
        if args.touch >= 2:
            a("s_lshl_b32 s46, %s, 22" % sP)
            a("s_lshl_b32 s47, %s, 15" % sJ)
            a("s_add_u32 s46, s46, s47")
            a("s_add_u32 s46, s46, %d" % PC)
            for k in range(8):
                a("buffer_load_dwordx4 v[88:91], v6, %s, s46 offen" % SWS)
                a("s_add_u32 s46, s46, 4096")
    c("H1 gather by waves 4..7: thread t = tid-256 -> granule t of each of 7 partials")
    a("v_subrev_u32 v5, 256, v0")
    a("v_lshlrev_b32 v6, 4, v5")
    a("s_lshl_b32 s48, %s, 4" % sP)
    a("s_add_u32 s48, s48, %s" % sH)
    a("s_lshl_b32 s48, s48, 15")
    a("s_add_u32 s48, s48, %d" % Q1)
    for k in range(1, 7): a("s_add_u32 s%d, s48, %d" % ([0, 49, 51, 52, 53, 54, 55][k], 4096 * k))
    a("v_bfe_u32 v4, v5, 7, 1")
    a("v_lshlrev_b32 v4, 9, v4")
    a("v_bfe_u32 v7, v5, 3, 3")
    a("v_lshl_add_u32 v4, v7, 6, v4")
    a("v_bfe_u32 v7, v5, 6, 1")
    a("v_lshl_add_u32 v4, v7, 5, v4")
    a("v_and_b32 v7, 7, v5")
    a("v_lshl_add_u32 v4, v7, 1, v4")
    a("v_add_u32 v4, %d, v4" % QL)
    lds_wait("s1own", W_S1P, 4)
    stamp(11)
    if args.dly1: a("s_sleep %d" % args.dly1)
    if args.h1local:
        a("v_add_u32 v8, %d, v6" % (Q1L - Q1))
        a("v_mov_b32 v9, v6")
        a("v_mov_b32 v6, v8")
    a("s_mov_b32 s47, 0")
    a("s_lshl_b32 s46, %s, 14" % sW)
    a("v_lshlrev_b32 v10, 4, %s" % vLane)
    a("v_add_u32 v10, s46, v10")
    def h1_next():
        c("between attempts: pull w_uk out of the LDS staging as soon as it has landed")
        a("s_cmp_lg_u32 s47, 0")
        a("s_cbranch_scc1 L_h1_ukdone")
        a("ds_read_b32 v121, %s offset:%d" % (vSYw, 4 * W_PROG))
        a("s_waitcnt lgkmcnt(0)")
        a("v_readfirstlane_b32 s46, v121")
        a("s_cmp_lt_u32 s46, 2")
        a("s_cbranch_scc1 L_h1_ukdone")
        for s_ in range(8):
            a("ds_read_b128 %s, v10 offset:%d" % (v(16 + 4 * s_, 4), 8192 + 1024 * s_))
        a("s_waitcnt lgkmcnt(0)")
        lds_set_w(W_S2C, 1)
        a("s_mov_b32 s47, 1")
        lab("L_h1_ukdone")
        if args.h1local:
            c("every 4th attempt reads the write-through copy")
            a("s_and_b32 s46, s59, %d" % args.slowmask)
            a("s_cmp_eq_u32 s46, 1")
            a("s_cselect_b64 vcc, -1, 0")
            a("s_nop 1")
            a("v_cndmask_b32 v6, v8, v9, vcc")
    hold(0, True)
    poll_masked("h1", [(lambda k=k: a("buffer_load_dwordx4 %s, v6, %s, s%d offen sc1" % (v(88 + 4 * k, 4), SWS, [48, 49, 51, 52, 53, 54, 55][k])), list(range(88 + 4 * k, 92 + 4 * k)), 't') for k in range(7)], again=h1_next, slp=args.slp1)
    hold(0, False)
    cnt_stamp(12)
    stamp(2)
    for e in range(2):
        a("v_add_f32 %s, %s, %s" % (v(88 + e), v(88 + e), v(92 + e)))
        a("v_add_f32 %s, %s, %s" % (v(96 + e), v(96 + e), v(100 + e)))
        a("v_add_f32 %s, %s, %s" % (v(104 + e), v(104 + e), v(108 + e)))
        a("v_add_f32 %s, %s, %s" % (v(88 + e), v(88 + e), v(96 + e)))
        a("v_add_f32 %s, %s, %s" % (v(104 + e), v(104 + e), v(112 + e)))
        a("v_add_f32 %s, %s, %s" % (v(88 + e), v(88 + e), v(104 + e)))
    a("v_cvt_pk_bf16_f32 v88, v88, v89")
    a("ds_write_b16 v4, v88")
    a("ds_write_b16_d16_hi v4, v88 offset:16")
    a("s_waitcnt lgkmcnt(0)")
    lds_add(W_Q)
    a("s_branch L_s1done2")
    lab("L_s1done")
    a("s_mov_b32 s47, 0")
    lab("L_s1done2")
    stamp(1)
    c("w_uk operand from LDS staging")
    a("s_lshl_b32 s46, %s, 14" % sW)
    a("v_lshlrev_b32 v7, 4, %s" % vLane)
    a("v_add_u32 v7, s46, v7")
    a("v_and_b32 v6, 1, %s" % vR)
    a("v_lshlrev_b32 v6, 9, v6")
    a("v_lshl_add_u32 v6, %s, 4, v6" % vG)
    a("v_add_u32 v6, %d, v6" % QL)
    a("s_cmp_lg_u32 s47, 0")
    a("s_cbranch_scc1 L_ukdone")
    lds_wait("uk", W_PROG, 2, vSYw)
    for s_ in range(8):
        a("ds_read_b128 %s, v7 offset:%d" % (v(16 + 4 * s_, 4), 8192 + 1024 * s_))
    a("s_waitcnt lgkmcnt(0)")
    lds_set_w(W_S2C, 1)
    lab("L_ukdone")
    lds_wait("q", W_Q, 4)
    stamp(3)
    c("S2")
    for s in range(8):
        a("ds_read_b128 %s, v6 offset:%d" % (v(48 + 4 * s, 4), 64 * s))
    a("v_lshlrev_b32 v6, 16, %s" % vR)
    a("v_lshl_add_u32 v6, %s, 10, v6" % vG)
    a("s_lshl_b32 s48, %s, 17" % sP)
    a("s_lshl_b32 s49, %s, 13" % sCs)
    a("s_add_u32 s48, s48, s49")
    a("s_lshl_b32 s49, %s, 6" % sH)
    a("s_add_u32 s48, s48, s49")
    a("s_and_b32 s49, %s, 1" % sW)
    a("s_lshl_b32 s49, s49, 12")
    a("s_add_u32 s48, s48, s49")
    a("s_lshr_b32 s49, %s, 1" % sW)
    a("s_lshl_b32 s49, s49, 4")
    a("s_add_u32 s48, s48, s49")
    a("s_mov_b32 s49, 0x3db8aa3b")
    a("s_waitcnt lgkmcnt(0)")
    for s in range(8):
        a("v_mfma_f32_16x16x32_bf16 v[88:91], %s, %s, %s" % (v(16 + 4 * s, 4), v(48 + 4 * s, 4), "0" if s == 0 else "v[88:91]"))
    a("s_nop 7")
    for k in range(4):
        a("v_mul_f32 %s, s49, %s" % (v(88 + k), v(88 + k)))
    a("v_cvt_pk_bf16_f32 v88, v88, v89")
    a("v_cvt_pk_bf16_f32 v89, v90, v91")
    a("v_mov_b32 v90, %s" % sN0)
    a("v_mov_b32 v91, %s" % sN1)
    exec_n2()
    a("buffer_store_dwordx4 v[88:91], v6, %s, s48 offen sc1" % SWS)
    exec_all()
    stamp(4)
    c("================ S3 address setup")
    a("s_lshl_b32 s51, %s, 14" % sW)
    a("v_and_b32 v8, 7, %s" % vR)
    a("v_lshlrev_b32 v8, 1, v8")
    a("v_lshrrev_b32 v9, 3, %s" % vR)
    a("v_or_b32 v8, v8, v9")
    a("v_lshlrev_b32 v9, 2, %s" % vG)
    a("v_xor_b32 v8, v8, v9")
    a("v_lshlrev_b32 v9, 8, %s" % vR)
    a("v_add_u32 v9, s51, v9")
    for s in range(4):
        a("v_xor_b32 v10, %d, v8" % s)
        a("v_lshl_add_u32 %s, v10, 4, v9" % v(4 + s))
    a("v_lshrrev_b32 v112, 2, %s" % vR)
    a("v_lshl_add_u32 v112, %s, 2, v112" % vG)
    a("v_and_b32 v113, 7, v112")
    a("v_lshlrev_b32 v113, 1, v113")
    a("v_lshrrev_b32 v114, 3, v112")
    a("v_or_b32 v113, v113, v114")
    a("v_bfe_u32 v114, %s, 1, 1" % vR)
    a("v_xor_b32 v113, v113, v114")
    a("v_lshlrev_b32 v113, 4, v113")
    a("v_and_b32 v114, 1, %s" % vR)
    a("v_lshl_add_u32 v113, v114, 3, v113")
    a("v_lshl_add_u32 v113, v112, 8, v113")
    a("v_add_u32 v113, s51, v113")
    for t in range(8):
        a("v_xor_b32 %s, %d, v113" % (v(8 + t), 32 * t))
    a("v_lshlrev_b32 v113, 4, %s" % vLane)
    a("v_add_u32 v114, 65536, v113")
    a("v_add_u32 v112, s51, v113")
    c("H2 gather: 8 x 1KB tagged granules; lane (h,g) gets c = 32g + 4*s2..")
    a("s_lshr_b32 s48, %s, 6" % sJ)
    a("s_lshl_b32 s49, %s, 1" % sP)
    a("s_add_u32 s48, s48, s49")
    a("s_lshl_b32 s48, s48, 3")
    a("s_add_u32 s48, s48, %s" % sW)
    a("s_lshl_b32 s48, s48, 13")
    a("s_add_u32 s49, s48, 4096")
    a("v_lshlrev_b32 v124, 6, %s" % vR)
    a("v_lshl_add_u32 v124, %s, 4, v124" % vG)
    if args.dly2: a("s_sleep %d" % args.dly2)
    if args.h2prog: lds_wait("h2p", W_PROG, args.h2prog, vSYw)
    hold(1, True)
    poll_masked("h2", [(lambda k=k: a("buffer_load_dwordx4 %s, v124, %s, %s offen offset:%d sc1" % (v(80 + 4 * k, 4), SWS, "s48" if k < 4 else "s49", QA + 1024 * (k & 3))), list(range(80 + 4 * k, 84 + 4 * k)), 't') for k in range(8)], slp=args.sleep2)
    hold(1, False)
    cnt_stamp(13)
    for k in range(8):
        a("v_mov_b32 %s, %s" % (v(16 + 2 * k), v(80 + 4 * k)))
        a("v_mov_b32 %s, %s" % (v(17 + 2 * k), v(81 + 4 * k)))
    lds_add(W_GO2)
    stamp(5)
    for T in range(4):
        lds_wait("tile%d" % T, W_PROG, T + 3, vSYw)
        for s_ in range(4):
            a("ds_read_b128 %s, %s offset:%d" % (v(32 + 4 * s_, 4), v(4 + s_), 4096 * T))
        if T == 1:
            c("V^T operands for u=0 (tiles 0,1) -> v[80:111]")
            for t in range(4):
                for jh in range(2):
                    a("ds_read_b64_tr_b16 %s, %s offset:%d" % (v(80 + 4 * t + 2 * jh, 2), v(8 + t), 4096 * jh))
            a("s_waitcnt lgkmcnt(8)")
        elif T == 2:
            for t in range(4, 8):
                for jh in range(2):
                    a("ds_read_b64_tr_b16 %s, %s offset:%d" % (v(80 + 4 * t + 2 * jh, 2), v(8 + t), 4096 * jh))
            a("s_waitcnt lgkmcnt(8)")
        else:
            a("s_waitcnt lgkmcnt(0)")
        for s_ in range(4):
            a("v_mfma_f32_16x16x32_bf16 %s, %s, %s, %s" % (v(64 + 4 * T, 4), v(32 + 4 * s_, 4), v(16 + 4 * s_, 4), "0" if s_ == 0 else v(64 + 4 * T, 4)))
    c("partial scores of all 4 tiles -> own slab's tile-0 region (fully consumed)")
    a("s_nop 7")
    for T in range(4):
        a("ds_write_b128 v112, %s offset:%d" % (v(64 + 4 * T, 4), 1024 * T))
    a("s_waitcnt lgkmcnt(0)")
    lds_add(W_SC)
    lds_wait("sc", W_SC, 8)
    stamp(6)
    c("reduce-scatter: wave w sums (tile w>>1, reg pair w&1) over the 8 partials; then all-gather")
    a("s_lshr_b32 s46, %s, 1" % sW)
    a("s_lshl_b32 s46, s46, 10")
    a("s_and_b32 s47, %s, 1" % sW)
    a("s_lshl_b32 s47, s47, 3")
    a("s_add_u32 s46, s46, s47")
    a("v_add_u32 v115, s46, v113")
    a("v_add_u32 v116, s46, v114")
    for k in range(8):
        a("ds_read_b64 %s, %s offset:%d" % (v(16 + 2 * k, 2), "v115" if k < 4 else "v116", 16384 * (k & 3)))
    a("v_add_u32 v117, %d, v115" % X0)
    a("v_add_u32 v118, %d, v113" % X0)
    a("s_waitcnt lgkmcnt(0)")
    for e in range(2):
        a("v_add_f32 %s, %s, %s" % (v(16 + e), v(16 + e), v(18 + e)))
        a("v_add_f32 %s, %s, %s" % (v(20 + e), v(20 + e), v(22 + e)))
        a("v_add_f32 %s, %s, %s" % (v(24 + e), v(24 + e), v(26 + e)))
        a("v_add_f32 %s, %s, %s" % (v(28 + e), v(28 + e), v(30 + e)))
        a("v_add_f32 %s, %s, %s" % (v(16 + e), v(16 + e), v(20 + e)))
        a("v_add_f32 %s, %s, %s" % (v(24 + e), v(24 + e), v(28 + e)))
        a("v_add_f32 %s, %s, %s" % (v(16 + e), v(16 + e), v(24 + e)))
    a("ds_write_b64 v117, v[16:17]")
    a("s_waitcnt lgkmcnt(0)")
    lds_add(W_SC + 1)
    lds_wait("sc2", W_SC + 1, 8)
    for T in range(4):
        a("ds_read_b128 %s, v118 offset:%d" % (v(64 + 4 * T, 4), 1024 * T))
    a("s_waitcnt lgkmcnt(0)")
    a("v_max3_f32 v48, v64, v65, v66")
    for k in range(67, 79, 2):
        a("v_max3_f32 v48, v48, %s, %s" % (v(k), v(k + 1)))
    a("v_max_f32 v48, v48, v79")
    for op in ("v_permlane32_swap_b32", "v_permlane16_swap_b32"):
        a("v_mov_b32 v49, v48")
        a("s_nop 1")
        a("%s v48, v49" % op)
        a("s_nop 1")
        a("v_max_f32 v48, v48, v49")
    for k in range(16):
        a("v_sub_f32 %s, %s, v48" % (v(64 + k), v(64 + k)))
    for k in range(16):
        a("v_exp_f32 %s, %s" % (v(64 + k), v(64 + k)))
    a("s_nop 0")
    for u in range(2):
        for q in range(4):
            a("v_cvt_pk_bf16_f32 %s, %s, %s" % (v(52 + 4 * u + q), v(64 + 8 * u + 2 * q), v(64 + 8 * u + 2 * q + 1)))
    a("s_nop 1")
    for t in range(8):
        a("v_mfma_f32_16x16x32_bf16 %s, %s, v[52:55], 0" % (v(16 + 4 * t, 4), v(80 + 4 * t, 4)))
        for jh in range(2):
            a("ds_read_b64_tr_b16 %s, %s offset:%d" % (v(80 + 4 * t + 2 * jh, 2), v(8 + t), 8192 + 4096 * jh))
    c("row sum while the u=1 operands arrive")
    a("v_add_f32 v49, v64, v65")
    for k in range(66, 80):
        a("v_add_f32 v49, v49, %s" % v(k))
    for op in ("v_permlane32_swap_b32", "v_permlane16_swap_b32"):
        a("v_mov_b32 v50, v49")
        a("s_nop 1")
        a("%s v49, v50" % op)
        a("s_nop 1")
        a("v_add_f32 v49, v49, v50")
    if args.pcl == 0:
        a("v_lshlrev_b32 v6, 18, %s" % vR)
        a("v_lshl_add_u32 v6, %s, 4, v6" % vG)
        a("s_lshl_b32 s48, %s, 22" % sP)
        a("s_lshl_b32 s49, %s, 15" % sW)
        a("s_add_u32 s48, s48, s49")
        a("s_lshl_b32 s49, %s, 6" % sJ)
        a("s_add_u32 s48, s48, s49")
        a("s_add_u32 s48, s48, %d" % PC)
    else:
        a("v_lshlrev_b32 v6, 6, %s" % vR)
        a("v_lshl_add_u32 v6, %s, 4, v6" % vG)
        a("s_lshl_b32 s48, %s, 22" % sP)
        a("s_lshl_b32 s49, %s, 15" % sJ)
        a("s_add_u32 s48, s48, s49")
        a("s_lshl_b32 s49, %s, 12" % sW)
        a("s_add_u32 s48, s48, s49")
        a("s_add_u32 s48, s48, %d" % PC)
    a("s_waitcnt lgkmcnt(0)")
    for t in range(8):
        a("v_mfma_f32_16x16x32_bf16 %s, %s, v[56:59], %s" % (v(16 + 4 * t, 4), v(80 + 4 * t, 4), v(16 + 4 * t, 4)))
    hold(2, True)
    a("s_nop 3")
    for up in range(4):
        for q in range(4):
            a("v_cvt_pk_bf16_f32 %s, %s, %s" % (v(80 + 4 * up + q), v(16 + 8 * up + 2 * q), v(16 + 8 * up + 2 * q + 1)))
        a("buffer_store_dwordx4 %s, v6, %s, s48 offen sc1" % (v(80 + 4 * up, 4), SWS))
        a("s_add_u32 s48, s48, %d" % (8192 if args.pcl == 0 else 1024))
    c("payload addresses for the H3 gather: wave w' = (u' = w'>>1, b = w'&1)")
    a("s_lshl_b32 s52, %s, 22" % sP)
    a("s_and_b32 s49, %s, 1" % sW)
    a("s_lshl_b32 s49, s49, 21")
    a("s_add_u32 s52, s52, s49")
    a("s_lshl_b32 s49, %s, 2" % sCs)
    a("s_lshr_b32 s53, %s, 1" % sW)
    a("s_add_u32 s49, s49, s53")
    a("s_lshl_b32 s49, s49, 10")
    a("s_add_u32 s52, s52, s49")
    a("s_lshl_b32 s49, %s, 6" % sH)
    a("s_add_u32 s52, s52, s49")
    a("s_add_u32 s52, s52, %d" % PC)
    a("v_lshrrev_b32 v5, 2, %s" % vLane)
    a("v_lshlrev_b32 v7, 2, v5")
    a("v_lshlrev_b32 v5, 15, v5")
    a("v_and_b32 v4, 3, %s" % vLane)
    a("v_lshl_add_u32 v5, v4, 4, v5")
    a("s_and_b32 s49, %s, 1" % sW)
    a("s_lshl_b32 s49, s49, 8")
    a("s_add_u32 s49, s49, %d" % SCL)
    a("v_add_u32 v7, s49, v7")
    a("v_lshlrev_b32 v6, 4, %s" % vLane)
    a("s_waitcnt vmcnt(0)")
    hold(2, False)
    lds_add(W_PCD)
    stamp(7)
    a("s_cmp_lg_u32 %s, 0" % sW)
    a("s_cbranch_scc1 L_s3_nostat")
    c("wave 0: all partial-ctx stores drained -> stats granules {m,l,nonce} double as the H3 flags")
    a("v_lshlrev_b32 v8, 11, %s" % vR)
    a("s_lshl_b32 s48, %s, 15" % sP)
    a("s_lshl_b32 s49, %s, 4" % sJ)
    a("s_add_u32 s48, s48, s49")
    a("s_add_u32 s48, s48, %d" % ST)
    a("v_mov_b32 v50, %s" % sN0)
    a("v_mov_b32 v51, %s" % sN1)
    lds_wait("pcd", W_PCD, 8)
    a("s_mov_b64 exec, 0xffff")
    a("buffer_store_dwordx4 v[48:51], v8, %s, s48 offen sc1" % SWS)
    exec_all()
    lab("L_s3_nostat")
    a("s_cmp_lg_u32 %s, 7" % sW)
    a("s_cbranch_scc1 L_nopoll3")
    c("wave 7: poll the 128 stats granules of head h; lane l has producers l (b=0) and 64+l (b=1)")
    a("s_lshl_b32 s48, %s, 4" % sP)
    a("s_add_u32 s48, s48, %s" % sH)
    a("s_lshl_b32 s48, s48, 11")
    a("s_add_u32 s48, s48, %d" % ST)
    poll_masked("h3s", [(lambda k=k: a("buffer_load_dwordx4 %s, v6, %s, s48 offen offset:%d sc1" % (v(64 + 4 * k, 4), SWS, 1024 * k)), list(range(64 + 4 * k, 68 + 4 * k)), 't') for k in range(2)], slp=args.sleep3, adapt=args.adapt)
    lds_add(W_GO3)
    lab("L_nopoll3")
    lds_wait("go3", W_GO3, 1)
    stamp(8)
    for k in range(4):
        a("buffer_load_dwordx4 %s, v5, %s, s52 offen sc1" % (v(16 + 4 * k, 4), SWS))
        a("s_add_u32 s52, s52, %d" % (16 * 32768))
    a("s_cmp_lg_u32 %s, 7" % sW)
    a("s_cbranch_scc1 L_noscl")
    c("wave 7: scales 2^(m-M)/L for all 128 producers -> LDS")
    for b in range(2):
        m = 64 + 4 * b
        a("v_mov_b32 v80, %s" % v(m))
        for q in ("quad_perm:[1,0,3,2]", "quad_perm:[2,3,0,1]"):
            a("s_nop 1")
            a("v_max_f32_dpp v80, v80, v80 %s row_mask:0xf bank_mask:0xf" % q)
        xlane_reduce_2to5(80, 84, "v_max_f32")
        a("v_sub_f32 %s, %s, v80" % (v(m), v(m)))
        a("v_exp_f32 %s, %s" % (v(m), v(m)))
        a("s_nop 0")
        a("v_mul_f32 v81, %s, %s" % (v(m), v(m + 1)))
        for q in ("quad_perm:[1,0,3,2]", "quad_perm:[2,3,0,1]"):
            a("s_nop 1")
            a("v_add_f32_dpp v81, v81, v81 %s row_mask:0xf bank_mask:0xf" % q)
        xlane_reduce_2to5(81, 84, "v_add_f32")
        a("v_rcp_f32 v81, v81")
        a("s_nop 0")
        a("v_mul_f32 %s, %s, v81" % (v(m), v(m)))
    a("v_lshlrev_b32 v8, 2, %s" % vLane)
    a("v_add_u32 v8, %d, v8" % SCL)
    a("ds_write_b32 v8, v64")
    a("ds_write_b32 v8, v68 offset:256")
    a("s_waitcnt lgkmcnt(0)")
    lds_add(W_SCL)
    lab("L_noscl")
    lds_wait("scl", W_SCL, 1)
    for k in range(4):
        a("ds_read_b32 %s, v7 offset:%d" % (v(64 + k), 64 * k))
    a("v_and_b32 v6, 3, %s" % vLane)
    a("v_lshlrev_b32 v6, 4, v6")
    a("v_bfe_u32 v7, %s, 5, 1" % vLane)
    a("v_lshl_add_u32 v6, v7, 3, v6")
    a("v_bfe_u32 v7, %s, 4, 1" % vLane)
    a("v_lshl_add_u32 v6, v7, 2, v6")
    a("s_lshl_b32 s48, %s, 6" % sW)
    a("s_add_u32 s48, s48, %d" % CL)
    a("v_add_u32 v6, s48, v6")
    a("s_lshr_b32 s46, %s, 1" % sW)
    a("s_lshl_b32 s46, s46, 2")
    a("s_add_u32 s46, s46, %d" % SY)
    a("v_mov_b32 v122, s46")
    a("s_waitcnt vmcnt(0) lgkmcnt(0)")
    stamp(9)
    for k in range(4):
        for q in range(4):
            a("v_lshlrev_b32 v84, 16, %s" % v(16 + 4 * k + q))
            a("v_and_b32 v85, 0xffff0000, %s" % v(16 + 4 * k + q))
            op = "v_mul_f32" if k == 0 else "v_fmac_f32"
            a("%s %s, v84, %s" % (op, v(88 + 2 * q), v(64 + k)))
            a("%s %s, v85, %s" % (op, v(88 + 2 * q + 1), v(64 + k)))
    a("s_nop 1")
    for j in range(4):
        a("v_permlane32_swap_b32 %s, %s" % (v(88 + j), v(92 + j)))
    a("s_nop 1")
    for j in range(4):
        a("v_add_f32 %s, %s, %s" % (v(88 + j), v(88 + j), v(92 + j)))
    a("s_nop 1")
    for j in range(2):
        a("v_permlane16_swap_b32 %s, %s" % (v(88 + j), v(90 + j)))
    a("s_nop 1")
    for j in range(2):
        a("v_add_f32 %s, %s, %s" % (v(88 + j), v(88 + j), v(90 + j)))
    for ror in (4, 8):
        a("s_nop 1")
        for j in range(2):
            a("v_add_f32_dpp %s, %s, %s row_ror:%d row_mask:0xf bank_mask:0xf" % (v(88 + j), v(88 + j), v(88 + j), ror))
    a("v_cvt_pk_bf16_f32 v88, v88, v89")
    a("s_mov_b32 exec_lo, 0x000f000f"); a("s_mov_b32 exec_hi, 0x000f000f")
    a("ds_write_b32 v6, v88")
    exec_all()
    a("s_waitcnt lgkmcnt(0)")
    a("v_mov_b32 v121, 1")
    a("s_mov_b64 exec, 1")
    a("ds_add_u32 v122, v121 offset:%d" % (4 * W_CL))
    exec_all()
    stamp(10)
    a("s_endpgm")

def back():
    c("================ BACK waves 8..15")
    bulk_loader()
    nonce_ready()
    stamp(2)
    if args.loadonly: a("s_endpgm")
    a("v_and_b32 v6, 1, %s" % vR)
    a("v_lshlrev_b32 v6, 6, v6")
    a("v_lshl_add_u32 v6, %s, 4, v6" % vG)
    a("s_lshr_b32 s46, %s, 1" % sWb)
    a("s_lshl_b32 s48, s46, 7")
    a("s_add_u32 s48, s48, %d" % CL)
    a("v_add_u32 v6, s48, v6")
    a("s_lshl_b32 s46, s46, 2")
    a("s_add_u32 s46, s46, %d" % SY)
    a("v_mov_b32 v122, s46")
    a("v_lshlrev_b32 v8, 9, %s" % vR)
    a("v_lshl_add_u32 v8, %s, 7, v8" % vG)
    a("s_lshl_b32 s48, %s, 10" % sWb)
    a("s_add_u32 s48, s48, %d" % P4)
    a("v_add_u32 v8, s48, v8")
    c("H4 addresses")
    a("s_lshl_b32 s52, %s, 4" % sP)
    a("s_add_u32 s52, s52, %s" % sH)
    a("s_lshl_b32 s52, s52, 15")
    lds_wait("cl", W_CL, 2, "v122")
    stamp(3)
    c("================ S4")
    a("ds_read_b128 v[4:7], v6")
    a("s_waitcnt lgkmcnt(0)")
    for i in range(8):
        a("v_mfma_f32_16x16x32_bf16 %s, %s, v[4:7], 0" % (v(80 + 4 * i, 4), v(16 + 4 * i, 4)))
    a("s_nop 7")
    exec_n2()
    for i in range(8):
        a("ds_write_b128 v8, %s offset:%d" % (v(80 + 4 * i, 4), 16 * i))
    exec_all()
    a("s_waitcnt lgkmcnt(0)")
    a("s_barrier")
    a("s_cmp_ge_u32 %s, 4" % sWb)
    a("s_cbranch_scc1 L_s5")
    c("waves 0..3: thread t<256 = granule (dhalf,g,b,i,half): sum 4 k-blocks, publish both copies")
    a("v_subrev_u32 v5, 512, v0")
    a("v_bfe_u32 v6, v5, 7, 1")
    a("v_lshlrev_b32 v6, 10, v6")
    a("v_bfe_u32 v7, v5, 4, 1")
    a("v_lshl_add_u32 v6, v7, 9, v6")
    a("v_bfe_u32 v7, v5, 5, 2")
    a("v_lshl_add_u32 v6, v7, 7, v6")
    a("v_and_b32 v7, 15, v5")
    a("v_lshl_add_u32 v6, v7, 3, v6")
    a("v_add_u32 v6, %d, v6" % P4)
    for k in range(4):
        a("ds_read_b64 %s, v6 offset:%d" % (v(16 + 2 * k, 2), 2048 * k))
    a("v_lshlrev_b32 v5, 4, v5")
    a("s_lshl_b32 s48, %s, 12" % sCs)
    a("s_add_u32 s48, s48, s52")
    a("s_add_u32 s49, s48, %d" % C4L)
    a("s_add_u32 s48, s48, %d" % C4)
    a("v_mov_b32 v26, %s" % sN0); a("v_mov_b32 v27, %s" % sN1)
    a("s_waitcnt lgkmcnt(0)")
    a("v_add_f32 v16, v16, v18"); a("v_add_f32 v17, v17, v19")
    a("v_add_f32 v20, v20, v22"); a("v_add_f32 v21, v21, v23")
    a("v_add_f32 v24, v16, v20"); a("v_add_f32 v25, v17, v21")
    a("buffer_store_dwordx4 v[24:27], v5, %s, s49 offen" % SWS)
    a("buffer_store_dwordx4 v[24:27], v5, %s, s48 offen sc1" % SWS)
    stamp(4)
    a("s_endpgm")
    lab("L_s5")
    c("================ waves 4..7: H4 gather (8 producers x 512B for d-slice cs), S5 for m-block mb")
    a("v_lshrrev_b32 v6, 5, %s" % vLane)
    a("v_lshlrev_b32 v6, 12, v6")
    a("v_and_b32 v7, 31, %s" % vLane)
    a("v_lshl_add_u32 v6, v7, 4, v6")
    a("v_add_u32 v8, %d, v6" % (C4L - C4))
    a("v_mov_b32 v9, v6")
    a("v_mov_b32 v6, v8")
    a("s_lshl_b32 s48, %s, 9" % sCs)
    a("s_add_u32 s48, s48, s52")
    a("s_add_u32 s48, s48, %d" % C4)
    for k in range(1, 4): a("s_add_u32 s%d, s48, %d" % ([0, 49, 51, 53][k], 8192 * k))
    a("s_and_b32 s46, %s, 3" % sWb)
    a("s_lshl_b32 s47, s46, 7")
    a("s_add_u32 s47, s47, %d" % CB)
    a("v_lshlrev_b32 v10, 2, v7")
    a("v_add_u32 v10, s47, v10")
    a("v_and_b32 v11, 1, %s" % vR)
    a("v_lshlrev_b32 v11, 6, v11")
    a("v_lshl_add_u32 v11, %s, 4, v11" % vG)
    a("v_add_u32 v11, s47, v11")
    a("s_lshl_b32 s47, s46, 10")
    a("s_add_u32 s47, s47, %d" % P5)
    a("v_lshlrev_b32 v12, 9, %s" % vR)
    a("v_lshl_add_u32 v12, %s, 7, v12" % vG)
    a("v_add_u32 v12, s47, v12")
    a("v_lshlrev_b32 v13, 4, %s" % vLane)
    a("v_add_u32 v13, s47, v13")
    a("s_lshl_b32 s47, s46, 5")
    a("v_add_u32 v14, s47, v7")
    a("v_cmp_gt_u32 vcc, 112, v14")
    a("v_lshrrev_b32 v15, 5, %s" % vLane)
    a("v_mul_u32_u24 v15, 112, v15")
    a("v_add_u32 v14, v14, v15")
    a("v_lshlrev_b32 v14, 5, v14")
    a("v_mov_b32 v15, 0x7fff0000")
    a("v_cndmask_b32 v14, v15, v14, vcc")
    a("s_lshl_b32 s54, %s, 7" % sP)
    a("s_add_u32 s54, s54, %s" % sJ)
    a("s_mul_i32 s54, s54, 7168")
    a("s_add_u32 s54, s54, %d" % PO)
    if args.dly4: a("s_sleep %d" % args.dly4)
    def h4_next():
        a("s_and_b32 s46, s59, %d" % args.slowmask)
        a("s_cmp_eq_u32 s46, 1")
        a("s_cselect_b64 vcc, -1, 0")
        a("s_nop 1")
        a("v_cndmask_b32 v6, v8, v9, vcc")
    poll_masked("h4", [(lambda k=k: a("buffer_load_dwordx4 %s, v6, %s, s%d offen sc1" % (v(16 + 4 * k, 4), SWS, [48, 49, 51, 53][k])), list(range(16 + 4 * k, 20 + 4 * k)), 't') for k in range(4)], again=h4_next, slp=args.slp1)
    stamp(5)
    for e in range(2):
        a("v_add_f32 %s, %s, %s" % (v(16 + e), v(16 + e), v(20 + e)))
        a("v_add_f32 %s, %s, %s" % (v(24 + e), v(24 + e), v(28 + e)))
        a("v_add_f32 %s, %s, %s" % (v(16 + e), v(16 + e), v(24 + e)))
        a("v_mov_b32 v20, %s" % v(16 + e))
        a("s_nop 1")
        a("v_permlane32_swap_b32 %s, v20" % v(16 + e))
        a("s_nop 1")
        a("v_add_f32 %s, %s, v20" % (v(16 + e), v(16 + e)))
    a("v_cvt_pk_bf16_f32 v16, v16, v17")
    a("ds_write_b32 v10, v16")
    a("s_waitcnt lgkmcnt(0)")
    a("ds_read_b128 v[4:7], v11")
    a("s_waitcnt lgkmcnt(0)")
    for i in range(8):
        a("v_mfma_f32_16x16x32_bf16 %s, %s, v[4:7], 0" % (v(80 + 4 * i, 4), v(48 + 4 * i, 4)))
    a("v_mov_b32 v34, %s" % sN0); a("v_mov_b32 v35, %s" % sN1)
    a("v_mov_b32 v38, %s" % sN0); a("v_mov_b32 v39, %s" % sN1)
    a("s_nop 5")
    exec_n2()
    for i in range(8):
        a("ds_write_b128 v12, %s offset:%d" % (v(80 + 4 * i, 4), 16 * i))
    exec_all()
    a("s_waitcnt lgkmcnt(0)")
    a("ds_read_b128 v[16:19], v13")
    a("s_waitcnt lgkmcnt(0)")
    a("v_mov_b32 v32, v16"); a("v_mov_b32 v33, v17"); a("v_mov_b32 v36, v18"); a("v_mov_b32 v37, v19")
    a("buffer_store_dwordx4 v[32:35], v14, %s, s54 offen sc1" % SWS)
    a("buffer_store_dwordx4 v[36:39], v14, %s, s54 offen offset:16 sc1" % SWS)
    stamp(6)
    a("s_cmp_lg_u32 %s, 7" % sWb)
    a("s_cbranch_scc1 L_end")
    a("s_cmp_ge_u32 %s, 56" % sJ)
    a("s_cbranch_scc1 L_end")
    FINAL[0] = True
    c("lane = (producer sub 8, granule 8); 16 loads x 8 producers; 128B per producer")
    a("v_lshrrev_b32 v6, 3, %s" % vLane)
    a("v_mul_u32_u24 v6, 7168, v6")
    a("v_and_b32 v7, 7, %s" % vLane)
    a("v_lshl_add_u32 v6, v7, 4, v6")
    a("s_mul_i32 s48, %s, %d" % (sP, 128 * 7168))
    a("s_lshl_b32 s49, %s, 7" % sJ)
    a("s_add_u32 s48, s48, s49")
    a("s_add_u32 s48, s48, %d" % PO)
    a("s_cmp_ge_u32 %s, 28" % sJ)
    a("s_cselect_b32 s49, 28, 0")
    a("s_cselect_b32 s51, 896, 0")
    a("s_sub_u32 s49, %s, s49" % sJ)
    a("s_lshl_b32 s49, s49, 4")
    a("s_and_b32 s52, s49, 0xffe0")
    a("s_lshr_b32 s49, s49, 2")
    a("s_and_b32 s49, s49, 7")
    a("s_add_u32 s52, s52, s49")
    a("s_add_u32 s52, s52, s51")
    a("s_mul_i32 s49, %s, 448" % sP)
    a("s_add_u32 s52, s52, s49")
    a("s_lshl_b32 s52, s52, 1")
    a("v_lshrrev_b32 v8, 1, v7")
    a("v_lshlrev_b32 v8, 1, v8")
    a("v_and_b32 v7, 1, v7")
    a("v_lshl_add_u32 v7, v7, 5, v8")
    def ld5(k):
        a("s_add_u32 s49, s48, %d" % (8 * 7168 * k))
        a("buffer_load_dwordx4 %s, v6, %s, s49 offen sc1" % (v(16 + 4 * k, 4), SWS))
    d5 = args.dly5
    while d5 > 0:
        a("s_sleep %d" % min(d5, 127)); d5 -= 127
    poll_masked("h5", [(lambda k=k: ld5(k), list(range(16 + 4 * k, 20 + 4 * k)), 't') for k in range(16)], slp=args.sleep5)
    stamp(7)
    for st in (8, 4, 2, 1):
        for k in range(st):
            for e in range(2):
                a("v_add_f32 %s, %s, %s" % (v(16 + 4 * k + e), v(16 + 4 * k + e), v(16 + 4 * (k + st) + e)))
    for e in range(2):
        a("s_nop 1")
        a("v_add_f32_dpp %s, %s, %s row_ror:8 row_mask:0xf bank_mask:0xf" % (v(16 + e), v(16 + e), v(16 + e)))
        for pop in ("v_permlane16_swap_b32", "v_permlane32_swap_b32"):
            a("v_mov_b32 v20, %s" % v(16 + e))
            a("s_nop 1")
            a("%s %s, v20" % (pop, v(16 + e)))
            a("s_nop 1")
            a("v_add_f32 %s, %s, v20" % (v(16 + e), v(16 + e)))
    a("v_cvt_pk_bf16_f32 v16, v16, v17")
    a("s_mov_b64 exec, 0xff")
    a("buffer_store_short v16, v7, %s, s52 offen" % SOUT)
    a("buffer_store_short_d16_hi v16, v7, %s, s52 offen offset:16" % SOUT)
    a("s_cmp_lg_u32 %s, 0" % sJ)
    a("s_cbranch_scc1 L_noep")
    c("advance the epoch word for a later launch on the same workspace")
    a("s_lshl_b32 s46, %s, 7" % sP)
    a("s_add_u32 s46, s46, %d" % EP)
    a("v_mov_b32 v20, %s" % sN0)
    a("v_mov_b32 v21, %s" % sN1)
    a("v_mov_b32 v22, 0")
    a("s_mov_b64 exec, 1")
    a("buffer_store_dwordx2 v[20:21], v22, %s, s46 offen sc1" % SWS)
    lab("L_noep")
    exec_all()
    stamp(8)

hdr = [l for l in open("concat_heads__compressed_kv_cla__compressed_kv_cla__decode.s.ref").read().split("\n") if l.startswith(";") and "@launch" not in l]
out.extend(hdr)
out.append("; @launch grid=(256,1,1) block=(1024,1,1) lds=%d" % LDS_BYTES)
out.extend(['.amdgcn_target "amdgcn-amd-amdhsa--gfx950"', ".text"])
out.extend([".globl %s" % KN, ".p2align 8", ".type %s,@function" % KN, KN + ":"])
prologue(256)
stamp(0)
a("s_cmp_ge_u32 %s, 8" % sW)
a("s_cbranch_scc1 L_back")
front()
lab("L_back")
back()
lab("L_end"); a("s_endpgm")
out.extend(['.section .rodata,"a"', ".p2align 6", ".amdhsa_kernel %s" % KN,
    "  .amdhsa_next_free_vgpr 128", "  .amdhsa_next_free_sgpr 96", "  .amdhsa_accum_offset 128",
    "  .amdhsa_group_segment_fixed_size 0", "  .amdhsa_kernarg_size 120", "  .amdhsa_user_sgpr_count 2",
    "  .amdhsa_user_sgpr_kernarg_segment_ptr 1", "  .amdhsa_system_sgpr_workgroup_id_x 1", ".end_amdhsa_kernel"])
txt = "\n".join(out)
import re
if args.stp != "sc1":
    txt = re.sub(r"(buffer_store_\w+ [^\n]*) sc1", lambda m: m.group(1) + " " + args.stp.replace("_", " "), txt)
if args.ldp != "sc1":
    txt = re.sub(r"(buffer_load_\w+ [^\n]*) sc1", lambda m: m.group(1) + " " + args.ldp.replace("_", " "), txt)
print(txt)
```

```python
import sys, argparse
ap = argparse.ArgumentParser()
ap.add_argument("--stamp", type=int, default=0)
ap.add_argument("--spin", type=int, default=200000)
ap.add_argument("--sleep", type=int, default=4)
ap.add_argument("--ntq", type=int, default=1)
ap.add_argument("--depth", type=int, default=3)
ap.add_argument("--depth2", type=int, default=0)
ap.add_argument("--h1local", type=int, default=1)
ap.add_argument("--sleep3", type=int, default=4)
ap.add_argument("--sleep5", type=int, default=4)
ap.add_argument("--dly5", type=int, default=0)
ap.add_argument("--sleep2", type=int, default=8)
ap.add_argument("--stp", default="sc1")
ap.add_argument("--ldp", default="sc1")
ap.add_argument("--touch", type=int, default=0)
ap.add_argument("--slowmask", type=int, default=3)
ap.add_argument("--slp1", type=int, default=2)
ap.add_argument("--loadonly", type=int, default=0)
ap.add_argument("--adapt", type=int, default=0)
ap.add_argument("--wwait", type=int, default=0)
ap.add_argument("--dww", type=int, default=0)
ap.add_argument("--h2prog", type=int, default=0)
ap.add_argument("--hold", type=int, default=0)
ap.add_argument("--dwo", type=int, default=0)
ap.add_argument("--wpos", type=int, default=16)
ap.add_argument("--dly4", type=int, default=4)
ap.add_argument("--pause", type=int, default=-1)
ap.add_argument("--dly1", type=int, default=16)
ap.add_argument("--dly2", type=int, default=16)
ap.add_argument("--pcl", type=int, default=1)
ap.add_argument("--dense", type=int, default=1)
ap.add_argument("--prio", type=int, default=0)
ap.add_argument("--clrpos", type=int, default=8)
args = ap.parse_args()
NT = " nt"
NTQ = " nt" if args.ntq else ""

KN = "concat_heads__compressed_kv_cla__compressed_kv_cla__decode_kernel"
out = []
def a(s): out.append("    " + s)
def lab(s): out.append(s + ":")
def c(s): out.append("    ; " + s)

QA = 0
PC = 1 << 20
Q1 = 9 << 20
C4 = 16 << 20
C4L = 17 << 20
Q1L = 15 << 20
ST = 10 << 20
FL = (10 << 20) + (256 << 10)
EP = (10 << 20) + (512 << 10)
PO = 13 << 20
STAMP = 12 << 20
WS_USED = 18 << 20
X0 = 131072
P1 = X0
QL = X0 + 16384
SY = QL + 1024
W_S1P, W_Q, W_GO2, W_S1C, W_SC, W_PROG, W_CL, W_S2C, W_QAD, W_GO3, W_PCD, W_SCL, W_HOLD = 0, 1, 2, 3, 4, 8, 16, 24, 32, 33, 34, 35, 36
SCL = SY + 256
CL = X0
P4 = X0 + 4096
CB = X0 + 12288
P5 = 16384
LDS_BYTES = 163840

sW, sP, sH, sCs, sJ = "s3", "s4", "s5", "s6", "s7"
SX, SKV, SWQ, SUK, SUV, SWO, SWS, SOUT, SDBG = ["s[%d:%d]" % (i, i + 3) for i in range(8, 44, 4)]
sSel0, sSel1 = "s44", "s45"
sWb = "s50"
sN0, sN1 = "s92", "s93"
sSent = "s94"
vLane, vR, vG = "v1", "v2", "v3"
vSY, vSYw = "v123", "v125"
def v(i, n=1): return "v%d" % i if n == 1 else "v[%d:%d]" % (i, i + n - 1)
def exec_n2():
    a("s_mov_b32 exec_lo, 0x00030003"); a("s_mov_b32 exec_hi, 0x00030003")
def exec_all(): a("s_mov_b64 exec, -1")

FINAL = [False]
ROLE = ["x"]
DS = [0]
def stamp(idx):
    if not args.stamp: return
    if args.stamp == 2 and not (idx == 0 or (idx == 8 and FINAL[0])): return
    if args.stamp == 3:
        role = ROLE[0]
        slot = {("x", 0): 0, ("f", 15): 1, ("f", 4): 2, ("f", 5): 3, ("f", 6): 4, ("f", 7): 5, ("f", 8): 6, ("f", 10): 7, ("b", 1): 8, ("b", 2): 9, ("b", 3): 10, ("b", 5): 11, ("b", 6): 12, ("b", 7): 13, ("b", 8): 14}.get((role, idx))
        if slot is None: return
        DS[0] += 1
        a("s_cmp_lg_u32 s2, 0")
        a("s_cbranch_scc1 L_ds%d" % DS[0])
        a("s_cmp_lg_u32 %s, %d" % (sW, 15 if role == "b" else 0))
        a("s_cbranch_scc1 L_ds%d" % DS[0])
        a("s_memrealtime s[56:57]")
        a("s_waitcnt lgkmcnt(0)")
        a("v_mov_b32 v127, s56")
        a("v_mov_b32 v126, 0")
        a("s_mov_b64 s[56:57], exec")
        a("s_mov_b64 exec, 1")
        a("buffer_store_dword v127, v126, %s, 0 offen offset:%d" % (SDBG, 4 * slot))
        a("s_mov_b64 exec, s[56:57]")
        lab("L_ds%d" % DS[0])
        return
    a("s_memrealtime s[56:57]")
    a("s_lshl_b32 s58, s2, 4")
    a("s_add_u32 s58, s58, %s" % sW)
    a("s_lshl_b32 s58, s58, 6")
    a("s_add_u32 s58, s58, %d" % (STAMP + 4 * idx))
    a("s_waitcnt lgkmcnt(0)")
    a("v_mov_b32 v127, s56")
    a("v_mov_b32 v126, 0")
    a("s_mov_b64 s[56:57], exec")
    a("s_mov_b64 exec, 1")
    a("buffer_store_dword v127, v126, %s, s58 offen" % SWS)
    a("s_mov_b64 exec, s[56:57]")

def cnt_stamp(idx):
    if args.stamp != 1: return
    a("s_lshl_b32 s58, s2, 4")
    a("s_add_u32 s58, s58, %s" % sW)
    a("s_lshl_b32 s58, s58, 6")
    a("s_add_u32 s58, s58, %d" % (STAMP + 4 * idx))
    a("s_sub_u32 s56, %d, s59" % args.spin)
    a("v_mov_b32 v127, s56")
    a("v_mov_b32 v126, 0")
    a("s_mov_b64 exec, 1")
    a("buffer_store_dword v127, v126, %s, s58 offen" % SWS)
    a("s_mov_b64 exec, -1")

def prologue(nwg):
    a("s_cmp_ge_u32 s2, %d" % nwg)
    a("s_cbranch_scc1 L_end")
    a("s_load_dwordx16 s[60:75], s[0:1], 0")
    a("s_load_dwordx8 s[76:83], s[0:1], 64")
    a("s_load_dwordx4 s[84:87], s[0:1], 96")
    a("s_load_dwordx2 s[88:89], s[0:1], 112")
    a("v_and_b32 %s, 63, v0" % vLane)
    a("v_lshrrev_b32 v4, 6, v0")
    a("v_and_b32 %s, 15, v0" % vR)
    a("v_readfirstlane_b32 %s, v4" % sW)
    a("v_bfe_u32 %s, v0, 4, 2" % vG)
    a("s_and_b32 s46, s2, 7")
    a("s_lshr_b32 s47, s2, 3")
    a("s_lshr_b32 %s, s46, 2" % sP)
    a("s_and_b32 s46, s46, 3")
    a("s_lshl_b32 %s, s46, 2" % sH)
    a("s_lshr_b32 s48, s47, 3")
    a("s_add_u32 %s, %s, s48" % (sH, sH))
    a("s_and_b32 %s, s47, 7" % sCs)
    a("s_lshl_b32 %s, s46, 5" % sJ)
    a("s_add_u32 %s, %s, s47" % (sJ, sJ))
    a("s_mov_b32 %s, 0x05040100" % sSel0)
    a("s_mov_b32 %s, 0x07060302" % sSel1)
    sizes = [1792, 16777216, 3670016, 8388608, 8388608, 3670016]
    for k in range(6):
        a("s_mov_b32 s%d, %d" % (8 + 4 * k + 2, sizes[k]))
        a("s_mov_b32 s%d, 0x20000" % (8 + 4 * k + 3))
    a("s_mov_b32 s34, %d" % WS_USED); a("s_mov_b32 s35, 0x20000")
    a("s_mov_b32 s38, 3584"); a("s_mov_b32 s39, 0x20000")
    a("s_mov_b32 s42, 256"); a("s_mov_b32 s43, 0x20000")
    a("s_sub_u32 %s, %s, 8" % (sWb, sW))
    a("s_mov_b32 %s, 0xfffffffe" % sSent)
    a("v_mov_b32 %s, %d" % (vSY, SY))
    a("s_and_b32 s46, %s, 7" % sW)
    a("s_lshl_b32 s46, s46, 2")
    a("s_add_u32 s46, s46, %d" % SY)
    a("v_mov_b32 %s, s46" % vSYw)
    a("s_cmp_lg_u32 %s, 7" % sW)
    a("s_cbranch_scc1 L_noinit")
    a("v_lshl_add_u32 v4, %s, 2, %s" % (vLane, vSY))
    a("v_mov_b32 v5, 0")
    a("ds_write_b32 v4, v5")
    lab("L_noinit")
    a("s_cmp_eq_u32 %s, 0" % sP)
    a("s_waitcnt lgkmcnt(0)")
    for k in range(6):
        a("s_cselect_b64 s[%d:%d], s[%d:%d], s[%d:%d]" % (8 + 4 * k, 9 + 4 * k, 60 + 2 * k, 61 + 2 * k, 72 + 2 * k, 73 + 2 * k))
    a("s_mov_b64 s[32:33], s[88:89]")
    a("s_mov_b64 s[36:37], s[84:85]")
    a("s_mov_b64 s[40:41], s[86:87]")
    c("launch nonce = epoch word found in d_ws + 1 (only tells this launch's tags/flags from stale ones)")
    a("s_lshl_b32 s46, %s, 7" % sP)
    a("s_add_u32 s46, s46, %d" % EP)
    a("s_load_dwordx2 s[92:93], s[88:89], s46")

def nonce_ready():
    a("s_waitcnt lgkmcnt(0)")
    a("s_add_u32 %s, %s, 1" % (sN0, sN0))
    a("s_addc_u32 %s, %s, 0" % (sN1, sN1))

def perms(T, L, i):
    k, e = i >> 1, i & 1
    for jj in range(4):
        a("v_perm_b32 %s, %s, %s, %s" % (v(T + jj), v(L + 4 * (2 * jj + 1) + k), v(L + 4 * (2 * jj) + k), sSel1 if e else sSel0))

def block_mfma(L, B, D, first, T0=80, T1=84):
    Ts = [T0, T1]
    perms(Ts[0], L, 0)
    for i in range(8):
        if i < 7: perms(Ts[(i + 1) & 1], L, i + 1)
        else: a("s_nop 1")
        a("v_mfma_f32_16x16x32_bf16 %s, %s, %s, %s" % (v(D + 4 * i, 4), v(Ts[i & 1], 4), v(B, 4), "0" if first else v(D + 4 * i, 4)))

def transpose_inplace(L, t0, t1):
    def pr(jj, k): return (L + 8 * jj + k, L + 8 * jj + 4 + k)
    for jj in range(4):
        lo, hi = pr(jj, jj)
        a("v_perm_b32 %s, %s, %s, %s" % (v(t0), v(hi), v(lo), sSel0))
        a("v_perm_b32 %s, %s, %s, %s" % (v(hi), v(hi), v(lo), sSel1))
        a("v_mov_b32 %s, %s" % (v(lo), v(t0)))
    for jj in range(4):
        for k in range(jj + 1, 4):
            A0, A1 = pr(jj, k); B0, B1 = pr(k, jj)
            a("v_perm_b32 %s, %s, %s, %s" % (v(t0), v(A1), v(A0), sSel0))
            a("v_perm_b32 %s, %s, %s, %s" % (v(t1), v(A1), v(A0), sSel1))
            a("v_perm_b32 %s, %s, %s, %s" % (v(A0), v(B1), v(B0), sSel0))
            a("v_perm_b32 %s, %s, %s, %s" % (v(A1), v(B1), v(B0), sSel1))
            a("v_mov_b32 %s, %s" % (v(B0), v(t0)))
            a("v_mov_b32 %s, %s" % (v(B1), v(t1)))

def desent(regs):
    for r in regs: a("v_min_u32 %s, %s, %s" % (v(r), sSent, v(r)))

def poll_masked(name, loads, tmp=120, again=None, slp=None, adapt=0):
    n = len(loads)
    assert n <= 16
    M = lambda k: "s[%d:%d]" % (60 + 2 * k, 61 + 2 * k)
    for k in range(n): a("s_mov_b64 %s, -1" % M(k))
    a("s_mov_b32 s59, %d" % args.spin)
    lab("L_pm_%s" % name)
    for k, (emit, regs, kind) in enumerate(loads):
        a("s_mov_b64 exec, %s" % M(k))
        if n > 2: a("s_cbranch_execz L_pmsk_%s_%d" % (name, k))
        emit()
        if n > 2: lab("L_pmsk_%s_%d" % (name, k))
    exec_all()
    a("s_waitcnt vmcnt(0)")
    for k, (emit, regs, kind) in enumerate(loads):
        rs = list(regs)
        if kind == 's':
            if len(rs) == 1:
                a("v_cmp_eq_u32 %s, -1, %s" % (M(k), v(rs[0])))
            elif len(rs) == 2:
                a("v_max_u32 %s, %s, %s" % (v(tmp), v(rs[0]), v(rs[1])))
                a("v_cmp_eq_u32 %s, -1, %s" % (M(k), v(tmp)))
            else:
                a("v_max3_u32 %s, %s, %s, %s" % (v(tmp), v(rs[0]), v(rs[1]), v(rs[2])))
                a("v_max_u32 %s, %s, %s" % (v(tmp), v(tmp), v(rs[3])))
                a("v_cmp_eq_u32 %s, -1, %s" % (M(k), v(tmp)))
        else:
            a("v_xor_b32 %s, %s, %s" % (v(tmp), sN0, v(rs[-2])))
            a("v_xor_b32 %s, %s, %s" % (v(tmp + 1), sN1, v(rs[-1])))
            a("v_or_b32 %s, %s, %s" % (v(tmp), v(tmp), v(tmp + 1)))
            a("v_cmp_ne_u32 %s, 0, %s" % (M(k), v(tmp)))
    a("s_nop 1")
    if n == 1:
        a("s_cmp_eq_u64 %s, 0" % M(0))
    else:
        a("s_or_b64 s[56:57], %s, %s" % (M(0), M(1)))
        for k in range(2, n): a("s_or_b64 s[56:57], s[56:57], %s" % M(k))
        a("s_cmp_eq_u64 s[56:57], 0")
    a("s_cbranch_scc1 L_pmok_%s" % name)
    if slp is None: slp = args.sleep
    if adapt:
        a("s_bcnt1_i32_b64 s56, %s" % M(0))
        a("s_bcnt1_i32_b64 s57, %s" % M(1))
        a("s_add_u32 s56, s56, s57")
        a("s_cmp_le_u32 s56, %d" % adapt)
        a("s_cbranch_scc1 L_pmsh_%s" % name)
    if slp: a("s_sleep %d" % slp)
    if adapt:
        lab("L_pmsh_%s" % name)
        a("s_sleep 2")
    if again: again()
    a("s_sub_u32 s59, s59, 1")
    a("s_cmp_lg_u32 s59, 0")
    a("s_cbranch_scc1 L_pm_%s" % name)
    lab("L_pmok_%s" % name)

def lds_wait(name, word, target, areg=vSY, sreg="s58"):
    a("s_mov_b32 s59, 4000000")
    lab("L_lw_%s" % name)
    a("ds_read_b32 v121, %s offset:%d" % (areg, 4 * word))
    a("s_waitcnt lgkmcnt(0)")
    a("v_readfirstlane_b32 %s, v121" % sreg)
    a("s_cmp_ge_u32 %s, %d" % (sreg, target))
    a("s_cbranch_scc1 L_lwok_%s" % name)
    a("s_sleep 1")
    a("s_sub_u32 s59, s59, 1")
    a("s_cmp_lg_u32 s59, 0")
    a("s_cbranch_scc1 L_lw_%s" % name)
    lab("L_lwok_%s" % name)
def lds_add(word):
    a("v_mov_b32 v121, 1")
    a("s_mov_b64 exec, 1")
    a("ds_add_u32 %s, v121 offset:%d" % (vSY, 4 * word))
    exec_all()
def hold(bit, on):
    if not (args.hold >> bit) & 1: return
    a("v_mov_b32 v121, %d" % (1 if on else -1))
    a("s_mov_b64 exec, 1")
    a("ds_add_u32 %s, v121 offset:%d" % (vSY, 4 * W_HOLD))
    exec_all()
HC = [0]
def hold_check():
    if not args.hold: return
    HC[0] += 1
    n = HC[0]
    a("s_mov_b32 s59, 100000")
    lab("L_hc%d" % n)
    a("ds_read_b32 v121, %s offset:%d" % (vSY, 4 * W_HOLD))
    a("s_waitcnt lgkmcnt(0)")
    a("v_readfirstlane_b32 s58, v121")
    a("s_cmp_eq_u32 s58, 0")
    a("s_cbranch_scc1 L_hcok%d" % n)
    a("s_sleep 1")
    a("s_sub_u32 s59, s59, 1")
    a("s_cmp_lg_u32 s59, 0")
    a("s_cbranch_scc1 L_hc%d" % n)
    lab("L_hcok%d" % n)
def lds_set_w(word, val):
    a("v_mov_b32 v121, %d" % val)
    a("s_mov_b64 exec, 1")
    a("ds_write_b32 %s, v121 offset:%d" % (vSYw, 4 * word))
    exec_all()

def flag_store(off):
    a("s_lshl_b32 s48, %s, 7" % sP)
    a("s_add_u32 s48, s48, %s" % sJ)
    a("s_lshl_b32 s48, s48, 7")
    a("s_add_u32 s48, s48, %d" % FL)
    a("v_mov_b32 v122, 0")
    a("v_mov_b32 v120, %s" % sN0)
    a("v_mov_b32 v121, %s" % sN1)
    a("s_mov_b64 exec, 1")
    a("buffer_store_dwordx2 v[120:121], v122, %s, s48 offen offset:%d sc1" % (SWS, off))
    exec_all()
def flag_poll_all(name, off):
    a("s_lshl_b32 s48, %s, 14" % sP)
    a("s_add_u32 s48, s48, %d" % FL)
    a("s_add_u32 s49, s48, 8192")
    a("v_lshlrev_b32 v122, 7, %s" % vLane)
    poll_masked(name, [
        (lambda: a("buffer_load_dwordx2 v[116:117], v122, %s, s48 offen offset:%d sc1" % (SWS, off)), [116, 117], 't'),
        (lambda: a("buffer_load_dwordx2 v[118:119], v122, %s, s49 offen offset:%d sc1" % (SWS, off)), [118, 119], 't')])

def xlane_reduce_2to5(reg, tmp, op):
    for ror in (4, 8):
        a("s_nop 1")
        a("%s_dpp %s, %s, %s row_ror:%d row_mask:0xf bank_mask:0xf" % (op, v(reg), v(reg), v(reg), ror))
    for pop in ("v_permlane16_swap_b32", "v_permlane32_swap_b32"):
        a("v_mov_b32 %s, %s" % (v(tmp), v(reg)))
        a("s_nop 1")
        a("%s %s, %s" % (pop, v(reg), v(tmp)))
        a("s_nop 1")
        a("%s %s, %s, %s" % (op, v(reg), v(reg), v(tmp)))

def bulk_loader():
    D = args.depth
    c("w_q first (most urgent), waves 0..3: i = wb: blk = i>>1, dh = i&1 ; v4 = g*65536 + r*16 ; s63")
    a("s_lshl_b32 s51, %s, 14" % sWb)
    a("s_lshl_b32 s65, %s, 15" % sWb)
    a("v_lshlrev_b32 v4, 16, %s" % vG)
    a("v_lshl_add_u32 v4, %s, 4, v4" % vR)
    a("s_lshl_b32 s63, %s, 19" % sCs)
    a("s_bfe_u32 s49, %s, 0x10001" % sWb)
    a("s_lshl_b32 s49, s49, 18")
    a("s_add_u32 s63, s63, s49")
    a("s_lshl_b32 s49, %s, 9" % sH)
    a("s_add_u32 s63, s63, s49")
    a("s_and_b32 s49, %s, 1" % sWb)
    a("s_lshl_b32 s49, s49, 8")
    a("s_add_u32 s63, s63, s49")
    a("s_cmp_ge_u32 %s, 4" % sWb)
    a("s_cbranch_scc1 L_nowq")
    for j in range(8):
        a("s_add_u32 s49, s65, %d" % (16384 * (j >> 2) + 4096 + 1024 * (j & 3)))
        a("s_mov_b32 m0, s49")
        a("s_nop 0")
        a("buffer_load_dwordx4 v4, %s, s63 offen%s lds" % (SWQ, NT))
        a("s_add_u32 s63, s63, 8192")
    lab("L_nowq")
    def rest_addr():
        for tq in range(4):
            a("v_add_u32 v120, %d, %s" % (4 * tq, vG))
            a("v_and_b32 v121, 7, v120")
            a("v_lshlrev_b32 v121, 1, v121")
            a("v_lshrrev_b32 v126, 3, v120")
            a("v_or_b32 v121, v121, v126")
            a("v_xor_b32 v121, v121, %s" % vR)
            a("v_lshlrev_b32 v121, 4, v121")
            a("v_lshl_add_u32 %s, v120, 11, v121" % v(116 + tq))
        a("s_lshl_b32 s62, %s, 17" % sJ)
        a("s_lshl_b32 s49, %s, 8" % sWb)
        a("s_add_u32 s62, s62, s49")
        a("v_lshlrev_b32 v5, 13, %s" % vR)
        a("v_lshl_add_u32 v5, %s, 4, v5" % vG)
        a("s_lshl_b32 s64, %s, 20" % sCs)
        a("s_lshl_b32 s49, %s, 17" % sWb)
        a("s_add_u32 s64, s64, s49")
        a("s_lshl_b32 s49, %s, 9" % sH)
        a("s_add_u32 s64, s64, s49")
        a("v_lshlrev_b32 v6, 15, %s" % vG)
        a("v_lshl_add_u32 v6, %s, 4, v6" % vR)
        a("s_lshl_b32 s60, %s, 20" % sCs)
        a("s_lshr_b32 s49, %s, 1" % sWb)
        a("s_lshl_b32 s49, s49, 18")
        a("s_add_u32 s60, s60, s49")
        a("s_lshl_b32 s49, %s, 9" % sH)
        a("s_add_u32 s60, s60, s49")
        a("s_and_b32 s49, %s, 1" % sWb)
        a("s_lshl_b32 s49, s49, 8")
        a("s_add_u32 s60, s60, s49")
        a("v_mul_u32_u24 v7, 1792, %s" % vG)
        a("v_lshl_add_u32 v7, %s, 4, v7" % vR)
        a("s_lshl_b32 s61, %s, 8" % sH)
        a("s_lshl_b32 s49, %s, 5" % sCs)
        a("s_add_u32 s61, s61, s49")
        a("s_mul_i32 s61, s61, 896")
        a("s_and_b32 s53, %s, 3" % sWb)
        a("s_lshl_b32 s49, s53, 8")
        a("s_add_u32 s61, s61, s49")
        a("v_mov_b32 v9, 0x7fff0000")
        a("s_cmp_eq_u32 %s, 7" % sWb)
        a("s_cbranch_scc0 L_nomask")
        a("v_cmp_lt_u32 vcc, 7, %s" % vR)
        a("s_nop 1")
        a("v_cndmask_b32 v7, v7, v9, vcc")
        lab("L_nomask")
        a("s_barrier")

    items = []
    len_before = 0
    def dma(srd, vaddr, soff, ldsoff, post=None, inst_off=0):
        def f():
            a("s_add_u32 s49, s51, %d" % (ldsoff - inst_off))
            a("s_mov_b32 m0, s49")
            a("s_nop 0")
            a("buffer_load_dwordx4 %s, %s, %s offen%s%s lds" % (vaddr, srd, soff, (" offset:%d" % inst_off) if inst_off else "", NT))
            if post: a(post)
        return f
    rest_addr()
    c("waves 0..3: w_q landed -> progress 1")
    a("s_cmp_ge_u32 %s, 4" % sWb)
    a("s_cbranch_scc1 L_nowq2")
    a("s_waitcnt vmcnt(0)")
    lds_set_w(W_PROG, 1)
    lab("L_nowq2")
    for s_ in range(8):
        items.append([dma(SUK, "v5", "s64", 8192 + 1024 * s_, None, 64 * s_), (lambda: lds_set_w(W_PROG, 2)) if s_ == 7 else None, None])
    def clr_items():
        for up in range(4):
            def f():
                a("buffer_store_dwordx4 v[112:115], v10, %s, s65 offen sc1" % SWS)
                a("s_add_u32 s65, s65, 8192")
            items.append([f, None, None])
        items.append([lambda: a("buffer_store_dwordx4 v[112:115], v11, %s, s66 offen sc1" % SWS), None, None])
        items.append([lambda: a("buffer_store_dwordx2 v[112:113], v12, %s, s67 offen sc1" % SWS), lambda: lds_add(W_CLR), None])
    def weight_items():
        nonlocal len_before
        len_before = len(items)
        for j in range(8):
            def f(j=j):
                a("buffer_load_dwordx4 %s, v6, %s, s60 offen%s" % (v(16 + 4 * j, 4), SUV, NT))
                a("s_add_u32 s60, s60, %d" % (8192 if j != 3 else 13 * 8192))
            bf = None
            if j == 0 and args.wwait:
                def bf():
                    a("s_waitcnt vmcnt(0)")
                    complete_upto(len_before - 1)
                    if args.wwait == 1: lds_wait("wwait", W_PCD, 8)
                    else: lds_wait("wwait", W_SC, 8)
            items.append([f, (lambda: transpose_inplace(16, 112, 113)) if j == 7 else None, bf])
        for j in range(8):
            def f(j=j):
                c("w_o only for waves 4..7")
                a("s_cmp_lt_u32 %s, 4" % sWb)
                a("s_cbranch_scc1 L_nowo%d" % j)
                a("buffer_load_dwordx4 %s, v7, %s, s61 offen%s" % (v(48 + 4 * j, 4), SWO, NT))
                lab("L_nowo%d" % j)
                if j < 7:
                    a("s_add_u32 s61, s61, %d" % (8 * 896 if j != 3 else (896 - 24 * 896) & 0xffffffff))
            items.append([f, (lambda: transpose_inplace(48, 112, 113)) if j == 7 else None, None, "opt"])
    for t in range(16):
        if t == args.wpos: weight_items()
        post = "s_add_u32 s62, s62, 32768" if (t & 3 == 3 and t < 15) else None
        def done(t=t):
            lds_set_w(W_PROG, 3 + t // 4)
            if t == 15: stamp(1)
        before = None
        if t == 4: before = lambda: lds_wait("s1c", W_S1C, 4)
        if t == 8: before = lambda: lds_wait("s2c", W_S2C, 1, vSYw)
        items.append([dma(SKV, v(116 + (t & 3)), "s62", 1024 * t, post), done if t & 3 == 3 else None, before])
    if args.wpos >= 16: weight_items()
    nkv = 1 << 30
    n = len(items)
    done = -1
    def complete_upto(k):
        nonlocal done
        for q in range(done + 1, k + 1):
            if items[q][1]: items[q][1]()
        done = max(done, k)
    def youngest_cover(k, N):
        cnt = 0; q = k
        while q >= 0 and cnt < N:
            if len(items[q]) < 4: cnt += 1
            q -= 1
        return q
    for k in range(n):
        if items[k][2]: items[k][2]()
        hold_check()
        items[k][0]()
        Dk = args.dwo if (args.dwo and len(items[k]) == 4) else D
        if args.dww and len_before <= k < len_before + 8: Dk = args.dww
        if k >= D - 1:
            a("s_waitcnt vmcnt(%d)" % (Dk - 1))
            complete_upto(youngest_cover(k, Dk - 1))
    for N in range(max(D, args.dwo, args.dww) - 2, -1, -1):
        a("s_waitcnt vmcnt(%d)" % N)
        complete_upto(youngest_cover(n - 1, N))

def front():
    ROLE[0] = "f"
    c("================ FRONT waves 0..7")
    if args.prio: a("s_setprio %d" % args.prio)
    a("s_barrier")
    nonce_ready()
    if args.loadonly:
        lds_add(W_S1C)
        lds_set_w(W_S2C, 1)
        a("s_endpgm")
    a("s_cmp_ge_u32 %s, 4" % sW)
    a("s_cbranch_scc1 L_nos1")
    c("S1 (waves 0..3): rows 64cs+32blk.., cols 128dh..")
    a("v_and_b32 v5, 1, %s" % vR)
    a("v_mul_u32_u24 v5, 896, v5")
    a("v_lshl_add_u32 v5, %s, 4, v5" % vG)
    a("s_lshl_b32 s46, %s, 1" % sCs)
    a("s_lshr_b32 s47, %s, 1" % sW)
    a("s_add_u32 s46, s46, s47")
    a("s_lshl_b32 s48, s46, 6")
    a("buffer_load_dwordx4 v[8:11], v5, %s, s48 offen" % SX)
    a("s_lshl_b32 s46, %s, 15" % sW)
    a("v_lshlrev_b32 v6, 4, %s" % vLane)
    a("v_add_u32 v6, s46, v6")
    a("s_lshl_b32 s48, %s, 10" % sW)
    a("s_add_u32 s48, s48, %d" % P1)
    a("v_lshlrev_b32 v7, 9, %s" % vR)
    a("v_lshl_add_u32 v7, %s, 7, v7" % vG)
    a("v_add_u32 v7, s48, v7")
    lds_wait("wq0", W_PROG, 1, vSYw)
    for j in range(4):
        a("ds_read_b128 %s, v6 offset:%d" % (v(48 + 4 * j, 4), 4096 + 1024 * j))
    for j in range(4, 8):
        a("ds_read_b128 %s, v6 offset:%d" % (v(48 + 4 * j, 4), 16384 + 4096 + 1024 * (j & 3)))
    a("s_waitcnt vmcnt(0) lgkmcnt(0)")
    stamp(14)
    lds_add(W_S1C)
    block_mfma(48, 8, 88, True)
    a("s_nop 7")
    exec_n2()
    for i in range(8):
        a("ds_write_b128 v7, %s offset:%d" % (v(88 + 4 * i, 4), 16 * i))
    exec_all()
    a("s_waitcnt lgkmcnt(0)")
    lds_add(W_S1P)
    c("waves 0,1: batch b = w: sum the two row blocks, publish 2 x 1KB of tagged granules")
    a("s_cmp_ge_u32 %s, 2" % sW)
    a("s_cbranch_scc1 L_s1done")
    a("v_bfe_u32 v6, %s, 5, 1" % vLane)
    a("v_lshlrev_b32 v6, 10, v6")
    a("v_and_b32 v7, 31, %s" % vLane)
    a("v_lshl_add_u32 v6, v7, 4, v6")
    a("s_lshl_b32 s46, %s, 9" % sW)
    a("s_add_u32 s46, s46, %d" % P1)
    a("v_add_u32 v6, s46, v6")
    a("v_lshlrev_b32 v7, 4, %s" % vLane)
    a("s_lshl_b32 s48, %s, 4" % sP)
    a("s_add_u32 s48, s48, %s" % sH)
    a("s_lshl_b32 s48, s48, 3")
    a("s_add_u32 s48, s48, %s" % sCs)
    a("s_lshl_b32 s48, s48, 12")
    a("s_lshl_b32 s46, %s, 11" % sW)
    a("s_add_u32 s48, s48, s46")
    a("s_add_u32 s48, s48, %d" % Q1)
    a("v_mov_b32 v98, %s" % sN0); a("v_mov_b32 v99, %s" % sN1)
    a("v_mov_b32 v102, %s" % sN0); a("v_mov_b32 v103, %s" % sN1)
    lds_wait("s1p", W_S1P, 4)
    a("ds_read_b128 v[88:91], v6")
    a("ds_read_b128 v[92:95], v6 offset:2048")
    a("s_waitcnt lgkmcnt(0)")
    a("v_add_f32 v96, v88, v92"); a("v_add_f32 v97, v89, v93")
    a("v_add_f32 v100, v90, v94"); a("v_add_f32 v101, v91, v95")
    if args.h1local:
        a("s_add_u32 s46, s48, %d" % (Q1L - Q1))
        a("buffer_store_dwordx4 v[96:99], v7, %s, s46 offen" % SWS)
        a("buffer_store_dwordx4 v[100:103], v7, %s, s46 offen offset:1024" % SWS)
    a("buffer_store_dwordx4 v[96:99], v7, %s, s48 offen sc1" % SWS)
    a("buffer_store_dwordx4 v[100:103], v7, %s, s48 offen offset:1024 sc1" % SWS)
    stamp(15)
    a("s_branch L_s1done")
    lab("L_nos1")
    if args.touch:
        c("pre-touch this workgroup's share of the hand-off regions (brings the lines into the memory-side cache early)")
        a("v_subrev_u32 v5, 256, v0")
        a("v_lshlrev_b32 v6, 4, v5")
        a("s_lshl_b32 s46, s2, 12")
        a("s_add_u32 s47, s46, %d" % Q1)
        a("buffer_load_dwordx4 v[88:91], v6, %s, s47 offen" % SWS)
        a("s_add_u32 s47, s46, %d" % C4)
        a("buffer_load_dwordx4 v[88:91], v6, %s, s47 offen" % SWS)
        a("s_mul_i32 s47, s2, 7168")
        a("s_add_u32 s47, s47, %d" % PO)
        a("buffer_load_dwordx4 v[88:91], v6, %s, s47 offen" % SWS)
        a("buffer_load_dwordx4 v[88:91], v6, %s, s47 offen offset:3072" % SWS)
        a("v_lshlrev_b32 v7, 2, v5")
        a("s_lshl_b32 s46, s2, 10")
        a("buffer_load_dword v88, v7, %s, s46 offen offset:%d" % (SWS, QA))
        a("s_lshl_b32 s46, s2, 8")
        a("s_add_u32 s46, s46, %d" % ST)
        a("v_and_b32 v7, 0xfc, v7")
        a("buffer_load_dword v88, v7, %s, s46 offen" % SWS)
        if args.touch >= 2:
            a("s_lshl_b32 s46, %s, 22" % sP)
            a("s_lshl_b32 s47, %s, 15" % sJ)
            a("s_add_u32 s46, s46, s47")
            a("s_add_u32 s46, s46, %d" % PC)
            for k in range(8):
                a("buffer_load_dwordx4 v[88:91], v6, %s, s46 offen" % SWS)
                a("s_add_u32 s46, s46, 4096")
    c("H1 gather by waves 4..7: thread t = tid-256 -> granule t of each of 7 partials")
    a("v_subrev_u32 v5, 256, v0")
    a("v_lshlrev_b32 v6, 4, v5")
    a("s_lshl_b32 s48, %s, 4" % sP)
    a("s_add_u32 s48, s48, %s" % sH)
    a("s_lshl_b32 s48, s48, 15")
    a("s_add_u32 s48, s48, %d" % Q1)
    for k in range(1, 7): a("s_add_u32 s%d, s48, %d" % ([0, 49, 51, 52, 53, 54, 55][k], 4096 * k))
    a("v_bfe_u32 v4, v5, 7, 1")
    a("v_lshlrev_b32 v4, 9, v4")
    a("v_bfe_u32 v7, v5, 3, 3")
    a("v_lshl_add_u32 v4, v7, 6, v4")
    a("v_bfe_u32 v7, v5, 6, 1")
    a("v_lshl_add_u32 v4, v7, 5, v4")
    a("v_and_b32 v7, 7, v5")
    a("v_lshl_add_u32 v4, v7, 1, v4")
    a("v_add_u32 v4, %d, v4" % QL)
    lds_wait("s1own", W_S1P, 4)
    stamp(11)
    if args.dly1: a("s_sleep %d" % args.dly1)
    if args.h1local:
        a("v_add_u32 v8, %d, v6" % (Q1L - Q1))
        a("v_mov_b32 v9, v6")
        a("v_mov_b32 v6, v8")
    a("s_mov_b32 s47, 0")
    a("s_lshl_b32 s46, %s, 14" % sW)
    a("v_lshlrev_b32 v10, 4, %s" % vLane)
    a("v_add_u32 v10, s46, v10")
    def h1_next():
        c("between attempts: pull w_uk out of the LDS staging as soon as it has landed")
        a("s_cmp_lg_u32 s47, 0")
        a("s_cbranch_scc1 L_h1_ukdone")
        a("ds_read_b32 v121, %s offset:%d" % (vSYw, 4 * W_PROG))
        a("s_waitcnt lgkmcnt(0)")
        a("v_readfirstlane_b32 s46, v121")
        a("s_cmp_lt_u32 s46, 2")
        a("s_cbranch_scc1 L_h1_ukdone")
        for s_ in range(8):
            a("ds_read_b128 %s, v10 offset:%d" % (v(16 + 4 * s_, 4), 8192 + 1024 * s_))
        a("s_waitcnt lgkmcnt(0)")
        lds_set_w(W_S2C, 1)
        a("s_mov_b32 s47, 1")
        lab("L_h1_ukdone")
        if args.h1local:
            c("every 4th attempt reads the write-through copy")
            a("s_and_b32 s46, s59, %d" % args.slowmask)
            a("s_cmp_eq_u32 s46, 1")
            a("s_cselect_b64 vcc, -1, 0")
            a("s_nop 1")
            a("v_cndmask_b32 v6, v8, v9, vcc")
    hold(0, True)
    poll_masked("h1", [(lambda k=k: a("buffer_load_dwordx4 %s, v6, %s, s%d offen sc1" % (v(88 + 4 * k, 4), SWS, [48, 49, 51, 52, 53, 54, 55][k])), list(range(88 + 4 * k, 92 + 4 * k)), 't') for k in range(7)], again=h1_next, slp=args.slp1)
    hold(0, False)
    cnt_stamp(12)
    stamp(2)
    for e in range(2):
        a("v_add_f32 %s, %s, %s" % (v(88 + e), v(88 + e), v(92 + e)))
        a("v_add_f32 %s, %s, %s" % (v(96 + e), v(96 + e), v(100 + e)))
        a("v_add_f32 %s, %s, %s" % (v(104 + e), v(104 + e), v(108 + e)))
        a("v_add_f32 %s, %s, %s" % (v(88 + e), v(88 + e), v(96 + e)))
        a("v_add_f32 %s, %s, %s" % (v(104 + e), v(104 + e), v(112 + e)))
        a("v_add_f32 %s, %s, %s" % (v(88 + e), v(88 + e), v(104 + e)))
    a("v_cvt_pk_bf16_f32 v88, v88, v89")
    a("ds_write_b16 v4, v88")
    a("ds_write_b16_d16_hi v4, v88 offset:16")
    a("s_waitcnt lgkmcnt(0)")
    lds_add(W_Q)
    a("s_branch L_s1done2")
    lab("L_s1done")
    a("s_mov_b32 s47, 0")
    lab("L_s1done2")
    stamp(1)
    c("w_uk operand from LDS staging")
    a("s_lshl_b32 s46, %s, 14" % sW)
    a("v_lshlrev_b32 v7, 4, %s" % vLane)
    a("v_add_u32 v7, s46, v7")
    a("v_and_b32 v6, 1, %s" % vR)
    a("v_lshlrev_b32 v6, 9, v6")
    a("v_lshl_add_u32 v6, %s, 4, v6" % vG)
    a("v_add_u32 v6, %d, v6" % QL)
    a("s_cmp_lg_u32 s47, 0")
    a("s_cbranch_scc1 L_ukdone")
    lds_wait("uk", W_PROG, 2, vSYw)
    for s_ in range(8):
        a("ds_read_b128 %s, v7 offset:%d" % (v(16 + 4 * s_, 4), 8192 + 1024 * s_))
    a("s_waitcnt lgkmcnt(0)")
    lds_set_w(W_S2C, 1)
    lab("L_ukdone")
    lds_wait("q", W_Q, 4)
    stamp(3)
    c("S2")
    for s in range(8):
        a("ds_read_b128 %s, v6 offset:%d" % (v(48 + 4 * s, 4), 64 * s))
    a("v_lshlrev_b32 v6, 16, %s" % vR)
    a("v_lshl_add_u32 v6, %s, 10, v6" % vG)
    a("s_lshl_b32 s48, %s, 17" % sP)
    a("s_lshl_b32 s49, %s, 13" % sCs)
    a("s_add_u32 s48, s48, s49")
    a("s_lshl_b32 s49, %s, 6" % sH)
    a("s_add_u32 s48, s48, s49")
    a("s_and_b32 s49, %s, 1" % sW)
    a("s_lshl_b32 s49, s49, 12")
    a("s_add_u32 s48, s48, s49")
    a("s_lshr_b32 s49, %s, 1" % sW)
    a("s_lshl_b32 s49, s49, 4")
    a("s_add_u32 s48, s48, s49")
    a("s_mov_b32 s49, 0x3db8aa3b")
    a("s_waitcnt lgkmcnt(0)")
    for s in range(8):
        a("v_mfma_f32_16x16x32_bf16 v[88:91], %s, %s, %s" % (v(16 + 4 * s, 4), v(48 + 4 * s, 4), "0" if s == 0 else "v[88:91]"))
    a("s_nop 7")
    for k in range(4):
        a("v_mul_f32 %s, s49, %s" % (v(88 + k), v(88 + k)))
    a("v_cvt_pk_bf16_f32 v88, v88, v89")
    a("v_cvt_pk_bf16_f32 v89, v90, v91")
    a("v_mov_b32 v90, %s" % sN0)
    a("v_mov_b32 v91, %s" % sN1)
    exec_n2()
    a("buffer_store_dwordx4 v[88:91], v6, %s, s48 offen sc1" % SWS)
    exec_all()
    stamp(4)
    c("================ S3 address setup")
    a("s_lshl_b32 s51, %s, 14" % sW)
    a("v_and_b32 v8, 7, %s" % vR)
    a("v_lshlrev_b32 v8, 1, v8")
    a("v_lshrrev_b32 v9, 3, %s" % vR)
    a("v_or_b32 v8, v8, v9")
    a("v_lshlrev_b32 v9, 2, %s" % vG)
    a("v_xor_b32 v8, v8, v9")
    a("v_lshlrev_b32 v9, 8, %s" % vR)
    a("v_add_u32 v9, s51, v9")
    for s in range(4):
        a("v_xor_b32 v10, %d, v8" % s)
        a("v_lshl_add_u32 %s, v10, 4, v9" % v(4 + s))
    a("v_lshrrev_b32 v112, 2, %s" % vR)
    a("v_lshl_add_u32 v112, %s, 2, v112" % vG)
    a("v_and_b32 v113, 7, v112")
    a("v_lshlrev_b32 v113, 1, v113")
    a("v_lshrrev_b32 v114, 3, v112")
    a("v_or_b32 v113, v113, v114")
    a("v_bfe_u32 v114, %s, 1, 1" % vR)
    a("v_xor_b32 v113, v113, v114")
    a("v_lshlrev_b32 v113, 4, v113")
    a("v_and_b32 v114, 1, %s" % vR)
    a("v_lshl_add_u32 v113, v114, 3, v113")
    a("v_lshl_add_u32 v113, v112, 8, v113")
    a("v_add_u32 v113, s51, v113")
    for t in range(8):
        a("v_xor_b32 %s, %d, v113" % (v(8 + t), 32 * t))
    a("v_lshlrev_b32 v113, 4, %s" % vLane)
    a("v_add_u32 v114, 65536, v113")
    a("v_add_u32 v112, s51, v113")
    c("H2 gather: 8 x 1KB tagged granules; lane (h,g) gets c = 32g + 4*s2..")
    a("s_lshr_b32 s48, %s, 6" % sJ)
    a("s_lshl_b32 s49, %s, 1" % sP)
    a("s_add_u32 s48, s48, s49")
    a("s_lshl_b32 s48, s48, 3")
    a("s_add_u32 s48, s48, %s" % sW)
    a("s_lshl_b32 s48, s48, 13")
    a("s_add_u32 s49, s48, 4096")
    a("v_lshlrev_b32 v124, 6, %s" % vR)
    a("v_lshl_add_u32 v124, %s, 4, v124" % vG)
    if args.dly2: a("s_sleep %d" % args.dly2)
    if args.h2prog: lds_wait("h2p", W_PROG, args.h2prog, vSYw)
    hold(1, True)
    poll_masked("h2", [(lambda k=k: a("buffer_load_dwordx4 %s, v124, %s, %s offen offset:%d sc1" % (v(80 + 4 * k, 4), SWS, "s48" if k < 4 else "s49", QA + 1024 * (k & 3))), list(range(80 + 4 * k, 84 + 4 * k)), 't') for k in range(8)], slp=args.sleep2)
    hold(1, False)
    cnt_stamp(13)
    for k in range(8):
        a("v_mov_b32 %s, %s" % (v(16 + 2 * k), v(80 + 4 * k)))
        a("v_mov_b32 %s, %s" % (v(17 + 2 * k), v(81 + 4 * k)))
    lds_add(W_GO2)
    stamp(5)
    for T in range(4):
        lds_wait("tile%d" % T, W_PROG, T + 3, vSYw)
        for s_ in range(4):
            a("ds_read_b128 %s, %s offset:%d" % (v(32 + 4 * s_, 4), v(4 + s_), 4096 * T))
        if T == 1:
            c("V^T operands for u=0 (tiles 0,1) -> v[80:111]")
            for t in range(4):
                for jh in range(2):
                    a("ds_read_b64_tr_b16 %s, %s offset:%d" % (v(80 + 4 * t + 2 * jh, 2), v(8 + t), 4096 * jh))
            a("s_waitcnt lgkmcnt(8)")
        elif T == 2:
            for t in range(4, 8):
                for jh in range(2):
                    a("ds_read_b64_tr_b16 %s, %s offset:%d" % (v(80 + 4 * t + 2 * jh, 2), v(8 + t), 4096 * jh))
            a("s_waitcnt lgkmcnt(8)")
        else:
            a("s_waitcnt lgkmcnt(0)")
        for s_ in range(4):
            a("v_mfma_f32_16x16x32_bf16 %s, %s, %s, %s" % (v(64 + 4 * T, 4), v(32 + 4 * s_, 4), v(16 + 4 * s_, 4), "0" if s_ == 0 else v(64 + 4 * T, 4)))
    c("partial scores of all 4 tiles -> own slab's tile-0 region (fully consumed)")
    a("s_nop 7")
    for T in range(4):
        a("ds_write_b128 v112, %s offset:%d" % (v(64 + 4 * T, 4), 1024 * T))
    a("s_waitcnt lgkmcnt(0)")
    lds_add(W_SC)
    lds_wait("sc", W_SC, 8)
    stamp(6)
    c("reduce-scatter: wave w sums (tile w>>1, reg pair w&1) over the 8 partials; then all-gather")
    a("s_lshr_b32 s46, %s, 1" % sW)
    a("s_lshl_b32 s46, s46, 10")
    a("s_and_b32 s47, %s, 1" % sW)
    a("s_lshl_b32 s47, s47, 3")
    a("s_add_u32 s46, s46, s47")
    a("v_add_u32 v115, s46, v113")
    a("v_add_u32 v116, s46, v114")
    for k in range(8):
        a("ds_read_b64 %s, %s offset:%d" % (v(16 + 2 * k, 2), "v115" if k < 4 else "v116", 16384 * (k & 3)))
    a("v_add_u32 v117, %d, v115" % X0)
    a("v_add_u32 v118, %d, v113" % X0)
    a("s_waitcnt lgkmcnt(0)")
    for e in range(2):
        a("v_add_f32 %s, %s, %s" % (v(16 + e), v(16 + e), v(18 + e)))
        a("v_add_f32 %s, %s, %s" % (v(20 + e), v(20 + e), v(22 + e)))
        a("v_add_f32 %s, %s, %s" % (v(24 + e), v(24 + e), v(26 + e)))
        a("v_add_f32 %s, %s, %s" % (v(28 + e), v(28 + e), v(30 + e)))
        a("v_add_f32 %s, %s, %s" % (v(16 + e), v(16 + e), v(20 + e)))
        a("v_add_f32 %s, %s, %s" % (v(24 + e), v(24 + e), v(28 + e)))
        a("v_add_f32 %s, %s, %s" % (v(16 + e), v(16 + e), v(24 + e)))
    a("ds_write_b64 v117, v[16:17]")
    a("s_waitcnt lgkmcnt(0)")
    lds_add(W_SC + 1)
    lds_wait("sc2", W_SC + 1, 8)
    for T in range(4):
        a("ds_read_b128 %s, v118 offset:%d" % (v(64 + 4 * T, 4), 1024 * T))
    a("s_waitcnt lgkmcnt(0)")
    a("v_max3_f32 v48, v64, v65, v66")
    for k in range(67, 79, 2):
        a("v_max3_f32 v48, v48, %s, %s" % (v(k), v(k + 1)))
    a("v_max_f32 v48, v48, v79")
    for op in ("v_permlane32_swap_b32", "v_permlane16_swap_b32"):
        a("v_mov_b32 v49, v48")
        a("s_nop 1")
        a("%s v48, v49" % op)
        a("s_nop 1")
        a("v_max_f32 v48, v48, v49")
    for k in range(16):
        a("v_sub_f32 %s, %s, v48" % (v(64 + k), v(64 + k)))
    for k in range(16):
        a("v_exp_f32 %s, %s" % (v(64 + k), v(64 + k)))
    a("s_nop 0")
    for u in range(2):
        for q in range(4):
            a("v_cvt_pk_bf16_f32 %s, %s, %s" % (v(52 + 4 * u + q), v(64 + 8 * u + 2 * q), v(64 + 8 * u + 2 * q + 1)))
    a("s_nop 1")
    for t in range(8):
        a("v_mfma_f32_16x16x32_bf16 %s, %s, v[52:55], 0" % (v(16 + 4 * t, 4), v(80 + 4 * t, 4)))
        for jh in range(2):
            a("ds_read_b64_tr_b16 %s, %s offset:%d" % (v(80 + 4 * t + 2 * jh, 2), v(8 + t), 8192 + 4096 * jh))
    c("row sum while the u=1 operands arrive")
    a("v_add_f32 v49, v64, v65")
    for k in range(66, 80):
        a("v_add_f32 v49, v49, %s" % v(k))
    for op in ("v_permlane32_swap_b32", "v_permlane16_swap_b32"):
        a("v_mov_b32 v50, v49")
        a("s_nop 1")
        a("%s v49, v50" % op)
        a("s_nop 1")
        a("v_add_f32 v49, v49, v50")
    if args.pcl == 0:
        a("v_lshlrev_b32 v6, 18, %s" % vR)
        a("v_lshl_add_u32 v6, %s, 4, v6" % vG)
        a("s_lshl_b32 s48, %s, 22" % sP)
        a("s_lshl_b32 s49, %s, 15" % sW)
        a("s_add_u32 s48, s48, s49")
        a("s_lshl_b32 s49, %s, 6" % sJ)
        a("s_add_u32 s48, s48, s49")
        a("s_add_u32 s48, s48, %d" % PC)
    else:
        a("v_lshlrev_b32 v6, 6, %s" % vR)
        a("v_lshl_add_u32 v6, %s, 4, v6" % vG)
        a("s_lshl_b32 s48, %s, 22" % sP)
        a("s_lshl_b32 s49, %s, 15" % sJ)
        a("s_add_u32 s48, s48, s49")
        a("s_lshl_b32 s49, %s, 12" % sW)
        a("s_add_u32 s48, s48, s49")
        a("s_add_u32 s48, s48, %d" % PC)
    a("s_waitcnt lgkmcnt(0)")
    for t in range(8):
        a("v_mfma_f32_16x16x32_bf16 %s, %s, v[56:59], %s" % (v(16 + 4 * t, 4), v(80 + 4 * t, 4), v(16 + 4 * t, 4)))
    hold(2, True)
    a("s_nop 3")
    for up in range(4):
        for q in range(4):
            a("v_cvt_pk_bf16_f32 %s, %s, %s" % (v(80 + 4 * up + q), v(16 + 8 * up + 2 * q), v(16 + 8 * up + 2 * q + 1)))
        a("buffer_store_dwordx4 %s, v6, %s, s48 offen sc1" % (v(80 + 4 * up, 4), SWS))
        a("s_add_u32 s48, s48, %d" % (8192 if args.pcl == 0 else 1024))
    c("payload addresses for the H3 gather: wave w' = (u' = w'>>1, b = w'&1)")
    a("s_lshl_b32 s52, %s, 22" % sP)
    a("s_and_b32 s49, %s, 1" % sW)
    a("s_lshl_b32 s49, s49, 21")
    a("s_add_u32 s52, s52, s49")
    a("s_lshl_b32 s49, %s, 2" % sCs)
    a("s_lshr_b32 s53, %s, 1" % sW)
    a("s_add_u32 s49, s49, s53")
    a("s_lshl_b32 s49, s49, 10")
    a("s_add_u32 s52, s52, s49")
    a("s_lshl_b32 s49, %s, 6" % sH)
    a("s_add_u32 s52, s52, s49")
    a("s_add_u32 s52, s52, %d" % PC)
    a("v_lshrrev_b32 v5, 2, %s" % vLane)
    a("v_lshlrev_b32 v7, 2, v5")
    a("v_lshlrev_b32 v5, 15, v5")
    a("v_and_b32 v4, 3, %s" % vLane)
    a("v_lshl_add_u32 v5, v4, 4, v5")
    a("s_and_b32 s49, %s, 1" % sW)
    a("s_lshl_b32 s49, s49, 8")
    a("s_add_u32 s49, s49, %d" % SCL)
    a("v_add_u32 v7, s49, v7")
    a("v_lshlrev_b32 v6, 4, %s" % vLane)
    a("s_waitcnt vmcnt(0)")
    hold(2, False)
    lds_add(W_PCD)
    stamp(7)
    a("s_cmp_lg_u32 %s, 0" % sW)
    a("s_cbranch_scc1 L_s3_nostat")
    c("wave 0: all partial-ctx stores drained -> stats granules {m,l,nonce} double as the H3 flags")
    a("v_lshlrev_b32 v8, 11, %s" % vR)
    a("s_lshl_b32 s48, %s, 15" % sP)
    a("s_lshl_b32 s49, %s, 4" % sJ)
    a("s_add_u32 s48, s48, s49")
    a("s_add_u32 s48, s48, %d" % ST)
    a("v_mov_b32 v50, %s" % sN0)
    a("v_mov_b32 v51, %s" % sN1)
    lds_wait("pcd", W_PCD, 8)
    a("s_mov_b64 exec, 0xffff")
    a("buffer_store_dwordx4 v[48:51], v8, %s, s48 offen sc1" % SWS)
    exec_all()
    lab("L_s3_nostat")
    a("s_cmp_lg_u32 %s, 7" % sW)
    a("s_cbranch_scc1 L_nopoll3")
    c("wave 7: poll the 128 stats granules of head h; lane l has producers l (b=0) and 64+l (b=1)")
    a("s_lshl_b32 s48, %s, 4" % sP)
    a("s_add_u32 s48, s48, %s" % sH)
    a("s_lshl_b32 s48, s48, 11")
    a("s_add_u32 s48, s48, %d" % ST)
    poll_masked("h3s", [(lambda k=k: a("buffer_load_dwordx4 %s, v6, %s, s48 offen offset:%d sc1" % (v(64 + 4 * k, 4), SWS, 1024 * k)), list(range(64 + 4 * k, 68 + 4 * k)), 't') for k in range(2)], slp=args.sleep3, adapt=args.adapt)
    lds_add(W_GO3)
    lab("L_nopoll3")
    lds_wait("go3", W_GO3, 1)
    stamp(8)
    for k in range(4):
        a("buffer_load_dwordx4 %s, v5, %s, s52 offen sc1" % (v(16 + 4 * k, 4), SWS))
        a("s_add_u32 s52, s52, %d" % (16 * 32768))
    a("s_cmp_lg_u32 %s, 7" % sW)
    a("s_cbranch_scc1 L_noscl")
    c("wave 7: scales 2^(m-M)/L for all 128 producers -> LDS")
    for b in range(2):
        m = 64 + 4 * b
        a("v_mov_b32 v80, %s" % v(m))
        for q in ("quad_perm:[1,0,3,2]", "quad_perm:[2,3,0,1]"):
            a("s_nop 1")
            a("v_max_f32_dpp v80, v80, v80 %s row_mask:0xf bank_mask:0xf" % q)
        xlane_reduce_2to5(80, 84, "v_max_f32")
        a("v_sub_f32 %s, %s, v80" % (v(m), v(m)))
        a("v_exp_f32 %s, %s" % (v(m), v(m)))
        a("s_nop 0")
        a("v_mul_f32 v81, %s, %s" % (v(m), v(m + 1)))
        for q in ("quad_perm:[1,0,3,2]", "quad_perm:[2,3,0,1]"):
            a("s_nop 1")
            a("v_add_f32_dpp v81, v81, v81 %s row_mask:0xf bank_mask:0xf" % q)
        xlane_reduce_2to5(81, 84, "v_add_f32")
        a("v_rcp_f32 v81, v81")
        a("s_nop 0")
        a("v_mul_f32 %s, %s, v81" % (v(m), v(m)))
    a("v_lshlrev_b32 v8, 2, %s" % vLane)
    a("v_add_u32 v8, %d, v8" % SCL)
    a("ds_write_b32 v8, v64")
    a("ds_write_b32 v8, v68 offset:256")
    a("s_waitcnt lgkmcnt(0)")
    lds_add(W_SCL)
    lab("L_noscl")
    lds_wait("scl", W_SCL, 1)
    for k in range(4):
        a("ds_read_b32 %s, v7 offset:%d" % (v(64 + k), 64 * k))
    a("v_and_b32 v6, 3, %s" % vLane)
    a("v_lshlrev_b32 v6, 4, v6")
    a("v_bfe_u32 v7, %s, 5, 1" % vLane)
    a("v_lshl_add_u32 v6, v7, 3, v6")
    a("v_bfe_u32 v7, %s, 4, 1" % vLane)
    a("v_lshl_add_u32 v6, v7, 2, v6")
    a("s_lshl_b32 s48, %s, 6" % sW)
    a("s_add_u32 s48, s48, %d" % CL)
    a("v_add_u32 v6, s48, v6")
    a("s_lshr_b32 s46, %s, 1" % sW)
    a("s_lshl_b32 s46, s46, 2")
    a("s_add_u32 s46, s46, %d" % SY)
    a("v_mov_b32 v122, s46")
    a("s_waitcnt vmcnt(0) lgkmcnt(0)")
    stamp(9)
    for k in range(4):
        for q in range(4):
            a("v_lshlrev_b32 v84, 16, %s" % v(16 + 4 * k + q))
            a("v_and_b32 v85, 0xffff0000, %s" % v(16 + 4 * k + q))
            op = "v_mul_f32" if k == 0 else "v_fmac_f32"
            a("%s %s, v84, %s" % (op, v(88 + 2 * q), v(64 + k)))
            a("%s %s, v85, %s" % (op, v(88 + 2 * q + 1), v(64 + k)))
    a("s_nop 1")
    for j in range(4):
        a("v_permlane32_swap_b32 %s, %s" % (v(88 + j), v(92 + j)))
    a("s_nop 1")
    for j in range(4):
        a("v_add_f32 %s, %s, %s" % (v(88 + j), v(88 + j), v(92 + j)))
    a("s_nop 1")
    for j in range(2):
        a("v_permlane16_swap_b32 %s, %s" % (v(88 + j), v(90 + j)))
    a("s_nop 1")
    for j in range(2):
        a("v_add_f32 %s, %s, %s" % (v(88 + j), v(88 + j), v(90 + j)))
    for ror in (4, 8):
        a("s_nop 1")
        for j in range(2):
            a("v_add_f32_dpp %s, %s, %s row_ror:%d row_mask:0xf bank_mask:0xf" % (v(88 + j), v(88 + j), v(88 + j), ror))
    a("v_cvt_pk_bf16_f32 v88, v88, v89")
    a("s_mov_b32 exec_lo, 0x000f000f"); a("s_mov_b32 exec_hi, 0x000f000f")
    a("ds_write_b32 v6, v88")
    exec_all()
    a("s_waitcnt lgkmcnt(0)")
    a("v_mov_b32 v121, 1")
    a("s_mov_b64 exec, 1")
    a("ds_add_u32 v122, v121 offset:%d" % (4 * W_CL))
    exec_all()
    stamp(10)
    a("s_endpgm")

def back():
    ROLE[0] = "b"
    c("================ BACK waves 8..15")
    bulk_loader()
    nonce_ready()
    stamp(2)
    if args.loadonly: a("s_endpgm")
    a("v_and_b32 v6, 1, %s" % vR)
    a("v_lshlrev_b32 v6, 6, v6")
    a("v_lshl_add_u32 v6, %s, 4, v6" % vG)
    a("s_lshr_b32 s46, %s, 1" % sWb)
    a("s_lshl_b32 s48, s46, 7")
    a("s_add_u32 s48, s48, %d" % CL)
    a("v_add_u32 v6, s48, v6")
    a("s_lshl_b32 s46, s46, 2")
    a("s_add_u32 s46, s46, %d" % SY)
    a("v_mov_b32 v122, s46")
    a("v_lshlrev_b32 v8, 9, %s" % vR)
    a("v_lshl_add_u32 v8, %s, 7, v8" % vG)
    a("s_lshl_b32 s48, %s, 10" % sWb)
    a("s_add_u32 s48, s48, %d" % P4)
    a("v_add_u32 v8, s48, v8")
    c("H4 addresses")
    a("s_lshl_b32 s52, %s, 4" % sP)
    a("s_add_u32 s52, s52, %s" % sH)
    a("s_lshl_b32 s52, s52, 15")
    lds_wait("cl", W_CL, 2, "v122")
    stamp(3)
    c("================ S4")
    a("ds_read_b128 v[4:7], v6")
    a("s_waitcnt lgkmcnt(0)")
    for i in range(8):
        a("v_mfma_f32_16x16x32_bf16 %s, %s, v[4:7], 0" % (v(80 + 4 * i, 4), v(16 + 4 * i, 4)))
    a("s_nop 7")
    exec_n2()
    for i in range(8):
        a("ds_write_b128 v8, %s offset:%d" % (v(80 + 4 * i, 4), 16 * i))
    exec_all()
    a("s_waitcnt lgkmcnt(0)")
    a("s_barrier")
    a("s_cmp_ge_u32 %s, 4" % sWb)
    a("s_cbranch_scc1 L_s5")
    c("waves 0..3: thread t<256 = granule (dhalf,g,b,i,half): sum 4 k-blocks, publish both copies")
    a("v_subrev_u32 v5, 512, v0")
    a("v_bfe_u32 v6, v5, 7, 1")
    a("v_lshlrev_b32 v6, 10, v6")
    a("v_bfe_u32 v7, v5, 4, 1")
    a("v_lshl_add_u32 v6, v7, 9, v6")
    a("v_bfe_u32 v7, v5, 5, 2")
    a("v_lshl_add_u32 v6, v7, 7, v6")
    a("v_and_b32 v7, 15, v5")
    a("v_lshl_add_u32 v6, v7, 3, v6")
    a("v_add_u32 v6, %d, v6" % P4)
    for k in range(4):
        a("ds_read_b64 %s, v6 offset:%d" % (v(16 + 2 * k, 2), 2048 * k))
    a("v_lshlrev_b32 v5, 4, v5")
    a("s_lshl_b32 s48, %s, 12" % sCs)
    a("s_add_u32 s48, s48, s52")
    a("s_add_u32 s49, s48, %d" % C4L)
    a("s_add_u32 s48, s48, %d" % C4)
    a("v_mov_b32 v26, %s" % sN0); a("v_mov_b32 v27, %s" % sN1)
    a("s_waitcnt lgkmcnt(0)")
    a("v_add_f32 v16, v16, v18"); a("v_add_f32 v17, v17, v19")
    a("v_add_f32 v20, v20, v22"); a("v_add_f32 v21, v21, v23")
    a("v_add_f32 v24, v16, v20"); a("v_add_f32 v25, v17, v21")
    a("buffer_store_dwordx4 v[24:27], v5, %s, s49 offen" % SWS)
    a("buffer_store_dwordx4 v[24:27], v5, %s, s48 offen sc1" % SWS)
    stamp(4)
    a("s_endpgm")
    lab("L_s5")
    c("================ waves 4..7: H4 gather (8 producers x 512B for d-slice cs), S5 for m-block mb")
    a("v_lshrrev_b32 v6, 5, %s" % vLane)
    a("v_lshlrev_b32 v6, 12, v6")
    a("v_and_b32 v7, 31, %s" % vLane)
    a("v_lshl_add_u32 v6, v7, 4, v6")
    a("v_add_u32 v8, %d, v6" % (C4L - C4))
    a("v_mov_b32 v9, v6")
    a("v_mov_b32 v6, v8")
    a("s_lshl_b32 s48, %s, 9" % sCs)
    a("s_add_u32 s48, s48, s52")
    a("s_add_u32 s48, s48, %d" % C4)
    for k in range(1, 4): a("s_add_u32 s%d, s48, %d" % ([0, 49, 51, 53][k], 8192 * k))
    a("s_and_b32 s46, %s, 3" % sWb)
    a("s_lshl_b32 s47, s46, 7")
    a("s_add_u32 s47, s47, %d" % CB)
    a("v_lshlrev_b32 v10, 2, v7")
    a("v_add_u32 v10, s47, v10")
    a("v_and_b32 v11, 1, %s" % vR)
    a("v_lshlrev_b32 v11, 6, v11")
    a("v_lshl_add_u32 v11, %s, 4, v11" % vG)
    a("v_add_u32 v11, s47, v11")
    a("s_lshl_b32 s47, s46, 10")
    a("s_add_u32 s47, s47, %d" % P5)
    a("v_lshlrev_b32 v12, 9, %s" % vR)
    a("v_lshl_add_u32 v12, %s, 7, v12" % vG)
    a("v_add_u32 v12, s47, v12")
    a("v_lshlrev_b32 v13, 4, %s" % vLane)
    a("v_add_u32 v13, s47, v13")
    a("s_lshl_b32 s47, s46, 5")
    a("v_add_u32 v14, s47, v7")
    a("v_cmp_gt_u32 vcc, 112, v14")
    a("v_lshrrev_b32 v15, 5, %s" % vLane)
    a("v_mul_u32_u24 v15, 112, v15")
    a("v_add_u32 v14, v14, v15")
    a("v_lshlrev_b32 v14, 5, v14")
    a("v_mov_b32 v15, 0x7fff0000")
    a("v_cndmask_b32 v14, v15, v14, vcc")
    a("s_lshl_b32 s54, %s, 7" % sP)
    a("s_add_u32 s54, s54, %s" % sJ)
    a("s_mul_i32 s54, s54, 7168")
    a("s_add_u32 s54, s54, %d" % PO)
    if args.dly4: a("s_sleep %d" % args.dly4)
    def h4_next():
        a("s_and_b32 s46, s59, %d" % args.slowmask)
        a("s_cmp_eq_u32 s46, 1")
        a("s_cselect_b64 vcc, -1, 0")
        a("s_nop 1")
        a("v_cndmask_b32 v6, v8, v9, vcc")
    poll_masked("h4", [(lambda k=k: a("buffer_load_dwordx4 %s, v6, %s, s%d offen sc1" % (v(16 + 4 * k, 4), SWS, [48, 49, 51, 53][k])), list(range(16 + 4 * k, 20 + 4 * k)), 't') for k in range(4)], again=h4_next, slp=args.slp1)
    stamp(5)
    for e in range(2):
        a("v_add_f32 %s, %s, %s" % (v(16 + e), v(16 + e), v(20 + e)))
        a("v_add_f32 %s, %s, %s" % (v(24 + e), v(24 + e), v(28 + e)))
        a("v_add_f32 %s, %s, %s" % (v(16 + e), v(16 + e), v(24 + e)))
        a("v_mov_b32 v20, %s" % v(16 + e))
        a("s_nop 1")
        a("v_permlane32_swap_b32 %s, v20" % v(16 + e))
        a("s_nop 1")
        a("v_add_f32 %s, %s, v20" % (v(16 + e), v(16 + e)))
    a("v_cvt_pk_bf16_f32 v16, v16, v17")
    a("ds_write_b32 v10, v16")
    a("s_waitcnt lgkmcnt(0)")
    a("ds_read_b128 v[4:7], v11")
    a("s_waitcnt lgkmcnt(0)")
    for i in range(8):
        a("v_mfma_f32_16x16x32_bf16 %s, %s, v[4:7], 0" % (v(80 + 4 * i, 4), v(48 + 4 * i, 4)))
    a("v_mov_b32 v34, %s" % sN0); a("v_mov_b32 v35, %s" % sN1)
    a("v_mov_b32 v38, %s" % sN0); a("v_mov_b32 v39, %s" % sN1)
    a("s_nop 5")
    exec_n2()
    for i in range(8):
        a("ds_write_b128 v12, %s offset:%d" % (v(80 + 4 * i, 4), 16 * i))
    exec_all()
    a("s_waitcnt lgkmcnt(0)")
    a("ds_read_b128 v[16:19], v13")
    a("s_waitcnt lgkmcnt(0)")
    a("v_mov_b32 v32, v16"); a("v_mov_b32 v33, v17"); a("v_mov_b32 v36, v18"); a("v_mov_b32 v37, v19")
    a("buffer_store_dwordx4 v[32:35], v14, %s, s54 offen sc1" % SWS)
    a("buffer_store_dwordx4 v[36:39], v14, %s, s54 offen offset:16 sc1" % SWS)
    stamp(6)
    a("s_cmp_lg_u32 %s, 7" % sWb)
    a("s_cbranch_scc1 L_end")
    a("s_cmp_ge_u32 %s, 56" % sJ)
    a("s_cbranch_scc1 L_end")
    FINAL[0] = True
    c("lane = (producer sub 8, granule 8); 16 loads x 8 producers; 128B per producer")
    a("v_lshrrev_b32 v6, 3, %s" % vLane)
    a("v_mul_u32_u24 v6, 7168, v6")
    a("v_and_b32 v7, 7, %s" % vLane)
    a("v_lshl_add_u32 v6, v7, 4, v6")
    a("s_mul_i32 s48, %s, %d" % (sP, 128 * 7168))
    a("s_lshl_b32 s49, %s, 7" % sJ)
    a("s_add_u32 s48, s48, s49")
    a("s_add_u32 s48, s48, %d" % PO)
    a("s_cmp_ge_u32 %s, 28" % sJ)
    a("s_cselect_b32 s49, 28, 0")
    a("s_cselect_b32 s51, 896, 0")
    a("s_sub_u32 s49, %s, s49" % sJ)
    a("s_lshl_b32 s49, s49, 4")
    a("s_and_b32 s52, s49, 0xffe0")
    a("s_lshr_b32 s49, s49, 2")
    a("s_and_b32 s49, s49, 7")
    a("s_add_u32 s52, s52, s49")
    a("s_add_u32 s52, s52, s51")
    a("s_mul_i32 s49, %s, 448" % sP)
    a("s_add_u32 s52, s52, s49")
    a("s_lshl_b32 s52, s52, 1")
    a("v_lshrrev_b32 v8, 1, v7")
    a("v_lshlrev_b32 v8, 1, v8")
    a("v_and_b32 v7, 1, v7")
    a("v_lshl_add_u32 v7, v7, 5, v8")
    def ld5(k):
        a("s_add_u32 s49, s48, %d" % (8 * 7168 * k))
        a("buffer_load_dwordx4 %s, v6, %s, s49 offen sc1" % (v(16 + 4 * k, 4), SWS))
    d5 = args.dly5
    while d5 > 0:
        a("s_sleep %d" % min(d5, 127)); d5 -= 127
    poll_masked("h5", [(lambda k=k: ld5(k), list(range(16 + 4 * k, 20 + 4 * k)), 't') for k in range(16)], slp=args.sleep5)
    stamp(7)
    for st in (8, 4, 2, 1):
        for k in range(st):
            for e in range(2):
                a("v_add_f32 %s, %s, %s" % (v(16 + 4 * k + e), v(16 + 4 * k + e), v(16 + 4 * (k + st) + e)))
    for e in range(2):
        a("s_nop 1")
        a("v_add_f32_dpp %s, %s, %s row_ror:8 row_mask:0xf bank_mask:0xf" % (v(16 + e), v(16 + e), v(16 + e)))
        for pop in ("v_permlane16_swap_b32", "v_permlane32_swap_b32"):
            a("v_mov_b32 v20, %s" % v(16 + e))
            a("s_nop 1")
            a("%s %s, v20" % (pop, v(16 + e)))
            a("s_nop 1")
            a("v_add_f32 %s, %s, v20" % (v(16 + e), v(16 + e)))
    a("v_cvt_pk_bf16_f32 v16, v16, v17")
    a("s_mov_b64 exec, 0xff")
    a("buffer_store_short v16, v7, %s, s52 offen" % SOUT)
    a("buffer_store_short_d16_hi v16, v7, %s, s52 offen offset:16" % SOUT)
    a("s_cmp_lg_u32 %s, 0" % sJ)
    a("s_cbranch_scc1 L_noep")
    c("advance the epoch word for a later launch on the same workspace")
    a("s_lshl_b32 s46, %s, 7" % sP)
    a("s_add_u32 s46, s46, %d" % EP)
    a("v_mov_b32 v20, %s" % sN0)
    a("v_mov_b32 v21, %s" % sN1)
    a("v_mov_b32 v22, 0")
    a("s_mov_b64 exec, 1")
    a("buffer_store_dwordx2 v[20:21], v22, %s, s46 offen sc1" % SWS)
    lab("L_noep")
    exec_all()
    stamp(8)

hdr = [l for l in open("concat_heads__compressed_kv_cla__compressed_kv_cla__decode.s.ref").read().split("\n") if l.startswith(";") and "@launch" not in l]
out.extend(hdr)
out.append("; @launch grid=(256,1,1) block=(1024,1,1) lds=%d" % LDS_BYTES)
out.extend(['.amdgcn_target "amdgcn-amd-amdhsa--gfx950"', ".text"])
out.extend([".globl %s" % KN, ".p2align 8", ".type %s,@function" % KN, KN + ":"])
prologue(256)
stamp(0)
a("s_cmp_ge_u32 %s, 8" % sW)
a("s_cbranch_scc1 L_back")
front()
lab("L_back")
back()
lab("L_end"); a("s_endpgm")
out.extend(['.section .rodata,"a"', ".p2align 6", ".amdhsa_kernel %s" % KN,
    "  .amdhsa_next_free_vgpr 128", "  .amdhsa_next_free_sgpr 96", "  .amdhsa_accum_offset 128",
    "  .amdhsa_group_segment_fixed_size 0", "  .amdhsa_kernarg_size 120", "  .amdhsa_user_sgpr_count 2",
    "  .amdhsa_user_sgpr_kernarg_segment_ptr 1", "  .amdhsa_system_sgpr_workgroup_id_x 1", ".end_amdhsa_kernel"])
txt = "\n".join(out)
import re
if args.stp != "sc1":
    txt = re.sub(r"(buffer_store_\w+ [^\n]*) sc1", lambda m: m.group(1) + " " + args.stp.replace("_", " "), txt)
if args.ldp != "sc1":
    txt = re.sub(r"(buffer_load_\w+ [^\n]*) sc1", lambda m: m.group(1) + " " + args.ldp.replace("_", " "), txt)
print(txt)
```

```python
import sys, argparse
ap = argparse.ArgumentParser()
ap.add_argument("--stamp", type=int, default=0)
ap.add_argument("--spin", type=int, default=200000)
ap.add_argument("--sleep", type=int, default=4)
ap.add_argument("--ntq", type=int, default=1)
ap.add_argument("--depth", type=int, default=3)
ap.add_argument("--depth2", type=int, default=0)
ap.add_argument("--h1local", type=int, default=1)
ap.add_argument("--sleep3", type=int, default=4)
ap.add_argument("--sleep5", type=int, default=4)
ap.add_argument("--dly5", type=int, default=0)
ap.add_argument("--sleep2", type=int, default=8)
ap.add_argument("--stp", default="sc1")
ap.add_argument("--ldp", default="sc1")
ap.add_argument("--touch", type=int, default=0)
ap.add_argument("--slowmask", type=int, default=3)
ap.add_argument("--slp1", type=int, default=2)
ap.add_argument("--loadonly", type=int, default=0)
ap.add_argument("--inpol", default="nt")
ap.add_argument("--kvpol", default="")
ap.add_argument("--adapt", type=int, default=0)
ap.add_argument("--wwait", type=int, default=0)
ap.add_argument("--dww", type=int, default=0)
ap.add_argument("--h2prog", type=int, default=0)
ap.add_argument("--hold", type=int, default=0)
ap.add_argument("--dwo", type=int, default=0)
ap.add_argument("--wpos", type=int, default=16)
ap.add_argument("--dly4", type=int, default=4)
ap.add_argument("--pause", type=int, default=-1)
ap.add_argument("--dly1", type=int, default=16)
ap.add_argument("--dly2", type=int, default=16)
ap.add_argument("--pcl", type=int, default=1)
ap.add_argument("--dense", type=int, default=1)
ap.add_argument("--prio", type=int, default=0)
ap.add_argument("--clrpos", type=int, default=8)
args = ap.parse_args()
NT = "" if args.inpol == "none" else " " + args.inpol.replace("_", " ")
NTKV = NT if not args.kvpol else ("" if args.kvpol == "none" else " " + args.kvpol.replace("_", " "))
NTQ = " nt" if args.ntq else ""

KN = "concat_heads__compressed_kv_cla__compressed_kv_cla__decode_kernel"
out = []
def a(s): out.append("    " + s)
def lab(s): out.append(s + ":")
def c(s): out.append("    ; " + s)

QA = 0
PC = 1 << 20
Q1 = 9 << 20
C4 = 16 << 20
C4L = 17 << 20
Q1L = 15 << 20
ST = 10 << 20
FL = (10 << 20) + (256 << 10)
EP = (10 << 20) + (512 << 10)
PO = 13 << 20
STAMP = 12 << 20
WS_USED = 18 << 20
X0 = 131072
P1 = X0
QL = X0 + 16384
SY = QL + 1024
W_S1P, W_Q, W_GO2, W_S1C, W_SC, W_PROG, W_CL, W_S2C, W_QAD, W_GO3, W_PCD, W_SCL, W_HOLD = 0, 1, 2, 3, 4, 8, 16, 24, 32, 33, 34, 35, 36
SCL = SY + 256
CL = X0
P4 = X0 + 4096
CB = X0 + 12288
P5 = 16384
LDS_BYTES = 163840

sW, sP, sH, sCs, sJ = "s3", "s4", "s5", "s6", "s7"
SX, SKV, SWQ, SUK, SUV, SWO, SWS, SOUT, SDBG = ["s[%d:%d]" % (i, i + 3) for i in range(8, 44, 4)]
sSel0, sSel1 = "s44", "s45"
sWb = "s50"
sN0, sN1 = "s92", "s93"
sSent = "s94"
vLane, vR, vG = "v1", "v2", "v3"
vSY, vSYw = "v123", "v125"
def v(i, n=1): return "v%d" % i if n == 1 else "v[%d:%d]" % (i, i + n - 1)
def exec_n2():
    a("s_mov_b32 exec_lo, 0x00030003"); a("s_mov_b32 exec_hi, 0x00030003")
def exec_all(): a("s_mov_b64 exec, -1")

FINAL = [False]
ROLE = ["x"]
DS = [0]
def stamp(idx):
    if not args.stamp: return
    if args.stamp == 2 and not (idx == 0 or (idx == 8 and FINAL[0])): return
    if args.stamp == 3:
        role = ROLE[0]
        slot = {("x", 0): 0, ("f", 15): 1, ("f", 4): 2, ("f", 5): 3, ("f", 6): 4, ("f", 7): 5, ("f", 8): 6, ("f", 10): 7, ("b", 1): 8, ("b", 2): 9, ("b", 3): 10, ("b", 5): 11, ("b", 6): 12, ("b", 7): 13, ("b", 8): 14}.get((role, idx))
        if slot is None: return
        DS[0] += 1
        a("s_cmp_lg_u32 s2, 0")
        a("s_cbranch_scc1 L_ds%d" % DS[0])
        a("s_cmp_lg_u32 %s, %d" % (sW, 15 if role == "b" else 0))
        a("s_cbranch_scc1 L_ds%d" % DS[0])
        a("s_memrealtime s[56:57]")
        a("s_waitcnt lgkmcnt(0)")
        a("v_mov_b32 v127, s56")
        a("v_mov_b32 v126, 0")
        a("s_mov_b64 s[56:57], exec")
        a("s_mov_b64 exec, 1")
        a("buffer_store_dword v127, v126, %s, 0 offen offset:%d" % (SDBG, 4 * slot))
        a("s_mov_b64 exec, s[56:57]")
        lab("L_ds%d" % DS[0])
        return
    a("s_memrealtime s[56:57]")
    a("s_lshl_b32 s58, s2, 4")
    a("s_add_u32 s58, s58, %s" % sW)
    a("s_lshl_b32 s58, s58, 6")
    a("s_add_u32 s58, s58, %d" % (STAMP + 4 * idx))
    a("s_waitcnt lgkmcnt(0)")
    a("v_mov_b32 v127, s56")
    a("v_mov_b32 v126, 0")
    a("s_mov_b64 s[56:57], exec")
    a("s_mov_b64 exec, 1")
    a("buffer_store_dword v127, v126, %s, s58 offen" % SWS)
    a("s_mov_b64 exec, s[56:57]")

def cnt_stamp(idx):
    if args.stamp != 1: return
    a("s_lshl_b32 s58, s2, 4")
    a("s_add_u32 s58, s58, %s" % sW)
    a("s_lshl_b32 s58, s58, 6")
    a("s_add_u32 s58, s58, %d" % (STAMP + 4 * idx))
    a("s_sub_u32 s56, %d, s59" % args.spin)
    a("v_mov_b32 v127, s56")
    a("v_mov_b32 v126, 0")
    a("s_mov_b64 exec, 1")
    a("buffer_store_dword v127, v126, %s, s58 offen" % SWS)
    a("s_mov_b64 exec, -1")

def prologue(nwg):
    a("s_cmp_ge_u32 s2, %d" % nwg)
    a("s_cbranch_scc1 L_end")
    a("s_load_dwordx16 s[60:75], s[0:1], 0")
    a("s_load_dwordx8 s[76:83], s[0:1], 64")
    a("s_load_dwordx4 s[84:87], s[0:1], 96")
    a("s_load_dwordx2 s[88:89], s[0:1], 112")
    a("v_and_b32 %s, 63, v0" % vLane)
    a("v_lshrrev_b32 v4, 6, v0")
    a("v_and_b32 %s, 15, v0" % vR)
    a("v_readfirstlane_b32 %s, v4" % sW)
    a("v_bfe_u32 %s, v0, 4, 2" % vG)
    a("s_and_b32 s46, s2, 7")
    a("s_lshr_b32 s47, s2, 3")
    a("s_lshr_b32 %s, s46, 2" % sP)
    a("s_and_b32 s46, s46, 3")
    a("s_lshl_b32 %s, s46, 2" % sH)
    a("s_lshr_b32 s48, s47, 3")
    a("s_add_u32 %s, %s, s48" % (sH, sH))
    a("s_and_b32 %s, s47, 7" % sCs)
    a("s_lshl_b32 %s, s46, 5" % sJ)
    a("s_add_u32 %s, %s, s47" % (sJ, sJ))
    a("s_mov_b32 %s, 0x05040100" % sSel0)
    a("s_mov_b32 %s, 0x07060302" % sSel1)
    sizes = [1792, 16777216, 3670016, 8388608, 8388608, 3670016]
    for k in range(6):
        a("s_mov_b32 s%d, %d" % (8 + 4 * k + 2, sizes[k]))
        a("s_mov_b32 s%d, 0x20000" % (8 + 4 * k + 3))
    a("s_mov_b32 s34, %d" % WS_USED); a("s_mov_b32 s35, 0x20000")
    a("s_mov_b32 s38, 3584"); a("s_mov_b32 s39, 0x20000")
    a("s_mov_b32 s42, 256"); a("s_mov_b32 s43, 0x20000")
    a("s_sub_u32 %s, %s, 8" % (sWb, sW))
    a("s_mov_b32 %s, 0xfffffffe" % sSent)
    a("v_mov_b32 %s, %d" % (vSY, SY))
    a("s_and_b32 s46, %s, 7" % sW)
    a("s_lshl_b32 s46, s46, 2")
    a("s_add_u32 s46, s46, %d" % SY)
    a("v_mov_b32 %s, s46" % vSYw)
    a("s_cmp_lg_u32 %s, 7" % sW)
    a("s_cbranch_scc1 L_noinit")
    a("v_lshl_add_u32 v4, %s, 2, %s" % (vLane, vSY))
    a("v_mov_b32 v5, 0")
    a("ds_write_b32 v4, v5")
    lab("L_noinit")
    a("s_cmp_eq_u32 %s, 0" % sP)
    a("s_waitcnt lgkmcnt(0)")
    for k in range(6):
        a("s_cselect_b64 s[%d:%d], s[%d:%d], s[%d:%d]" % (8 + 4 * k, 9 + 4 * k, 60 + 2 * k, 61 + 2 * k, 72 + 2 * k, 73 + 2 * k))
    a("s_mov_b64 s[32:33], s[88:89]")
    a("s_mov_b64 s[36:37], s[84:85]")
    a("s_mov_b64 s[40:41], s[86:87]")
    c("launch nonce = epoch word found in d_ws + 1 (only tells this launch's tags/flags from stale ones)")
    a("s_lshl_b32 s46, %s, 7" % sP)
    a("s_add_u32 s46, s46, %d" % EP)
    a("s_load_dwordx2 s[92:93], s[88:89], s46")

def nonce_ready():
    a("s_waitcnt lgkmcnt(0)")
    a("s_add_u32 %s, %s, 1" % (sN0, sN0))
    a("s_addc_u32 %s, %s, 0" % (sN1, sN1))

def perms(T, L, i):
    k, e = i >> 1, i & 1
    for jj in range(4):
        a("v_perm_b32 %s, %s, %s, %s" % (v(T + jj), v(L + 4 * (2 * jj + 1) + k), v(L + 4 * (2 * jj) + k), sSel1 if e else sSel0))

def block_mfma(L, B, D, first, T0=80, T1=84):
    Ts = [T0, T1]
    perms(Ts[0], L, 0)
    for i in range(8):
        if i < 7: perms(Ts[(i + 1) & 1], L, i + 1)
        else: a("s_nop 1")
        a("v_mfma_f32_16x16x32_bf16 %s, %s, %s, %s" % (v(D + 4 * i, 4), v(Ts[i & 1], 4), v(B, 4), "0" if first else v(D + 4 * i, 4)))

def transpose_inplace(L, t0, t1):
    def pr(jj, k): return (L + 8 * jj + k, L + 8 * jj + 4 + k)
    for jj in range(4):
        lo, hi = pr(jj, jj)
        a("v_perm_b32 %s, %s, %s, %s" % (v(t0), v(hi), v(lo), sSel0))
        a("v_perm_b32 %s, %s, %s, %s" % (v(hi), v(hi), v(lo), sSel1))
        a("v_mov_b32 %s, %s" % (v(lo), v(t0)))
    for jj in range(4):
        for k in range(jj + 1, 4):
            A0, A1 = pr(jj, k); B0, B1 = pr(k, jj)
            a("v_perm_b32 %s, %s, %s, %s" % (v(t0), v(A1), v(A0), sSel0))
            a("v_perm_b32 %s, %s, %s, %s" % (v(t1), v(A1), v(A0), sSel1))
            a("v_perm_b32 %s, %s, %s, %s" % (v(A0), v(B1), v(B0), sSel0))
            a("v_perm_b32 %s, %s, %s, %s" % (v(A1), v(B1), v(B0), sSel1))
            a("v_mov_b32 %s, %s" % (v(B0), v(t0)))
            a("v_mov_b32 %s, %s" % (v(B1), v(t1)))

def desent(regs):
    for r in regs: a("v_min_u32 %s, %s, %s" % (v(r), sSent, v(r)))

def poll_masked(name, loads, tmp=120, again=None, slp=None, adapt=0):
    n = len(loads)
    assert n <= 16
    M = lambda k: "s[%d:%d]" % (60 + 2 * k, 61 + 2 * k)
    for k in range(n): a("s_mov_b64 %s, -1" % M(k))
    a("s_mov_b32 s59, %d" % args.spin)
    lab("L_pm_%s" % name)
    for k, (emit, regs, kind) in enumerate(loads):
        a("s_mov_b64 exec, %s" % M(k))
        if n > 2: a("s_cbranch_execz L_pmsk_%s_%d" % (name, k))
        emit()
        if n > 2: lab("L_pmsk_%s_%d" % (name, k))
    exec_all()
    a("s_waitcnt vmcnt(0)")
    for k, (emit, regs, kind) in enumerate(loads):
        rs = list(regs)
        if kind == 's':
            if len(rs) == 1:
                a("v_cmp_eq_u32 %s, -1, %s" % (M(k), v(rs[0])))
            elif len(rs) == 2:
                a("v_max_u32 %s, %s, %s" % (v(tmp), v(rs[0]), v(rs[1])))
                a("v_cmp_eq_u32 %s, -1, %s" % (M(k), v(tmp)))
            else:
                a("v_max3_u32 %s, %s, %s, %s" % (v(tmp), v(rs[0]), v(rs[1]), v(rs[2])))
                a("v_max_u32 %s, %s, %s" % (v(tmp), v(tmp), v(rs[3])))
                a("v_cmp_eq_u32 %s, -1, %s" % (M(k), v(tmp)))
        else:
            a("v_xor_b32 %s, %s, %s" % (v(tmp), sN0, v(rs[-2])))
            a("v_xor_b32 %s, %s, %s" % (v(tmp + 1), sN1, v(rs[-1])))
            a("v_or_b32 %s, %s, %s" % (v(tmp), v(tmp), v(tmp + 1)))
            a("v_cmp_ne_u32 %s, 0, %s" % (M(k), v(tmp)))
    a("s_nop 1")
    if n == 1:
        a("s_cmp_eq_u64 %s, 0" % M(0))
    else:
        a("s_or_b64 s[56:57], %s, %s" % (M(0), M(1)))
        for k in range(2, n): a("s_or_b64 s[56:57], s[56:57], %s" % M(k))
        a("s_cmp_eq_u64 s[56:57], 0")
    a("s_cbranch_scc1 L_pmok_%s" % name)
    if slp is None: slp = args.sleep
    if adapt:
        a("s_bcnt1_i32_b64 s56, %s" % M(0))
        a("s_bcnt1_i32_b64 s57, %s" % M(1))
        a("s_add_u32 s56, s56, s57")
        a("s_cmp_le_u32 s56, %d" % adapt)
        a("s_cbranch_scc1 L_pmsh_%s" % name)
    if slp: a("s_sleep %d" % slp)
    if adapt:
        lab("L_pmsh_%s" % name)
        a("s_sleep 2")
    if again: again()
    a("s_sub_u32 s59, s59, 1")
    a("s_cmp_lg_u32 s59, 0")
    a("s_cbranch_scc1 L_pm_%s" % name)
    lab("L_pmok_%s" % name)

def lds_wait(name, word, target, areg=vSY, sreg="s58"):
    a("s_mov_b32 s59, 4000000")
    lab("L_lw_%s" % name)
    a("ds_read_b32 v121, %s offset:%d" % (areg, 4 * word))
    a("s_waitcnt lgkmcnt(0)")
    a("v_readfirstlane_b32 %s, v121" % sreg)
    a("s_cmp_ge_u32 %s, %d" % (sreg, target))
    a("s_cbranch_scc1 L_lwok_%s" % name)
    a("s_sleep 1")
    a("s_sub_u32 s59, s59, 1")
    a("s_cmp_lg_u32 s59, 0")
    a("s_cbranch_scc1 L_lw_%s" % name)
    lab("L_lwok_%s" % name)
def lds_add(word):
    a("v_mov_b32 v121, 1")
    a("s_mov_b64 exec, 1")
    a("ds_add_u32 %s, v121 offset:%d" % (vSY, 4 * word))
    exec_all()
def hold(bit, on):
    if not (args.hold >> bit) & 1: return
    a("v_mov_b32 v121, %d" % (1 if on else -1))
    a("s_mov_b64 exec, 1")
    a("ds_add_u32 %s, v121 offset:%d" % (vSY, 4 * W_HOLD))
    exec_all()
HC = [0]
def hold_check():
    if not args.hold: return
    HC[0] += 1
    n = HC[0]
    a("s_mov_b32 s59, 100000")
    lab("L_hc%d" % n)
    a("ds_read_b32 v121, %s offset:%d" % (vSY, 4 * W_HOLD))
    a("s_waitcnt lgkmcnt(0)")
    a("v_readfirstlane_b32 s58, v121")
    a("s_cmp_eq_u32 s58, 0")
    a("s_cbranch_scc1 L_hcok%d" % n)
    a("s_sleep 1")
    a("s_sub_u32 s59, s59, 1")
    a("s_cmp_lg_u32 s59, 0")
    a("s_cbranch_scc1 L_hc%d" % n)
    lab("L_hcok%d" % n)
def lds_set_w(word, val):
    a("v_mov_b32 v121, %d" % val)
    a("s_mov_b64 exec, 1")
    a("ds_write_b32 %s, v121 offset:%d" % (vSYw, 4 * word))
    exec_all()

def flag_store(off):
    a("s_lshl_b32 s48, %s, 7" % sP)
    a("s_add_u32 s48, s48, %s" % sJ)
    a("s_lshl_b32 s48, s48, 7")
    a("s_add_u32 s48, s48, %d" % FL)
    a("v_mov_b32 v122, 0")
    a("v_mov_b32 v120, %s" % sN0)
    a("v_mov_b32 v121, %s" % sN1)
    a("s_mov_b64 exec, 1")
    a("buffer_store_dwordx2 v[120:121], v122, %s, s48 offen offset:%d sc1" % (SWS, off))
    exec_all()
def flag_poll_all(name, off):
    a("s_lshl_b32 s48, %s, 14" % sP)
    a("s_add_u32 s48, s48, %d" % FL)
    a("s_add_u32 s49, s48, 8192")
    a("v_lshlrev_b32 v122, 7, %s" % vLane)
    poll_masked(name, [
        (lambda: a("buffer_load_dwordx2 v[116:117], v122, %s, s48 offen offset:%d sc1" % (SWS, off)), [116, 117], 't'),
        (lambda: a("buffer_load_dwordx2 v[118:119], v122, %s, s49 offen offset:%d sc1" % (SWS, off)), [118, 119], 't')])

def xlane_reduce_2to5(reg, tmp, op):
    for ror in (4, 8):
        a("s_nop 1")
        a("%s_dpp %s, %s, %s row_ror:%d row_mask:0xf bank_mask:0xf" % (op, v(reg), v(reg), v(reg), ror))
    for pop in ("v_permlane16_swap_b32", "v_permlane32_swap_b32"):
        a("v_mov_b32 %s, %s" % (v(tmp), v(reg)))
        a("s_nop 1")
        a("%s %s, %s" % (pop, v(reg), v(tmp)))
        a("s_nop 1")
        a("%s %s, %s, %s" % (op, v(reg), v(reg), v(tmp)))

def bulk_loader():
    D = args.depth
    c("w_q first (most urgent), waves 0..3: i = wb: blk = i>>1, dh = i&1 ; v4 = g*65536 + r*16 ; s63")
    a("s_lshl_b32 s51, %s, 14" % sWb)
    a("s_lshl_b32 s65, %s, 15" % sWb)
    a("v_lshlrev_b32 v4, 16, %s" % vG)
    a("v_lshl_add_u32 v4, %s, 4, v4" % vR)
    a("s_lshl_b32 s63, %s, 19" % sCs)
    a("s_bfe_u32 s49, %s, 0x10001" % sWb)
    a("s_lshl_b32 s49, s49, 18")
    a("s_add_u32 s63, s63, s49")
    a("s_lshl_b32 s49, %s, 9" % sH)
    a("s_add_u32 s63, s63, s49")
    a("s_and_b32 s49, %s, 1" % sWb)
    a("s_lshl_b32 s49, s49, 8")
    a("s_add_u32 s63, s63, s49")
    a("s_cmp_ge_u32 %s, 4" % sWb)
    a("s_cbranch_scc1 L_nowq")
    for j in range(8):
        a("s_add_u32 s49, s65, %d" % (16384 * (j >> 2) + 4096 + 1024 * (j & 3)))
        a("s_mov_b32 m0, s49")
        a("s_nop 0")
        a("buffer_load_dwordx4 v4, %s, s63 offen%s lds" % (SWQ, NT))
        a("s_add_u32 s63, s63, 8192")
    lab("L_nowq")
    def rest_addr():
        for tq in range(4):
            a("v_add_u32 v120, %d, %s" % (4 * tq, vG))
            a("v_and_b32 v121, 7, v120")
            a("v_lshlrev_b32 v121, 1, v121")
            a("v_lshrrev_b32 v126, 3, v120")
            a("v_or_b32 v121, v121, v126")
            a("v_xor_b32 v121, v121, %s" % vR)
            a("v_lshlrev_b32 v121, 4, v121")
            a("v_lshl_add_u32 %s, v120, 11, v121" % v(116 + tq))
        a("s_lshl_b32 s62, %s, 17" % sJ)
        a("s_lshl_b32 s49, %s, 8" % sWb)
        a("s_add_u32 s62, s62, s49")
        a("v_lshlrev_b32 v5, 13, %s" % vR)
        a("v_lshl_add_u32 v5, %s, 4, v5" % vG)
        a("s_lshl_b32 s64, %s, 20" % sCs)
        a("s_lshl_b32 s49, %s, 17" % sWb)
        a("s_add_u32 s64, s64, s49")
        a("s_lshl_b32 s49, %s, 9" % sH)
        a("s_add_u32 s64, s64, s49")
        a("v_lshlrev_b32 v6, 15, %s" % vG)
        a("v_lshl_add_u32 v6, %s, 4, v6" % vR)
        a("s_lshl_b32 s60, %s, 20" % sCs)
        a("s_lshr_b32 s49, %s, 1" % sWb)
        a("s_lshl_b32 s49, s49, 18")
        a("s_add_u32 s60, s60, s49")
        a("s_lshl_b32 s49, %s, 9" % sH)
        a("s_add_u32 s60, s60, s49")
        a("s_and_b32 s49, %s, 1" % sWb)
        a("s_lshl_b32 s49, s49, 8")
        a("s_add_u32 s60, s60, s49")
        a("v_mul_u32_u24 v7, 1792, %s" % vG)
        a("v_lshl_add_u32 v7, %s, 4, v7" % vR)
        a("s_lshl_b32 s61, %s, 8" % sH)
        a("s_lshl_b32 s49, %s, 5" % sCs)
        a("s_add_u32 s61, s61, s49")
        a("s_mul_i32 s61, s61, 896")
        a("s_and_b32 s53, %s, 3" % sWb)
        a("s_lshl_b32 s49, s53, 8")
        a("s_add_u32 s61, s61, s49")
        a("v_mov_b32 v9, 0x7fff0000")
        a("s_cmp_eq_u32 %s, 7" % sWb)
        a("s_cbranch_scc0 L_nomask")
        a("v_cmp_lt_u32 vcc, 7, %s" % vR)
        a("s_nop 1")
        a("v_cndmask_b32 v7, v7, v9, vcc")
        lab("L_nomask")
        a("s_barrier")

    items = []
    len_before = 0
    def dma(srd, vaddr, soff, ldsoff, post=None, inst_off=0):
        def f():
            a("s_add_u32 s49, s51, %d" % (ldsoff - inst_off))
            a("s_mov_b32 m0, s49")
            a("s_nop 0")
            a("buffer_load_dwordx4 %s, %s, %s offen%s%s lds" % (vaddr, srd, soff, (" offset:%d" % inst_off) if inst_off else "", NTKV if srd == SKV else NT))
            if post: a(post)
        return f
    rest_addr()
    c("waves 0..3: w_q landed -> progress 1")
    a("s_cmp_ge_u32 %s, 4" % sWb)
    a("s_cbranch_scc1 L_nowq2")
    a("s_waitcnt vmcnt(0)")
    lds_set_w(W_PROG, 1)
    lab("L_nowq2")
    for s_ in range(8):
        items.append([dma(SUK, "v5", "s64", 8192 + 1024 * s_, None, 64 * s_), (lambda: lds_set_w(W_PROG, 2)) if s_ == 7 else None, None])
    def clr_items():
        for up in range(4):
            def f():
                a("buffer_store_dwordx4 v[112:115], v10, %s, s65 offen sc1" % SWS)
                a("s_add_u32 s65, s65, 8192")
            items.append([f, None, None])
        items.append([lambda: a("buffer_store_dwordx4 v[112:115], v11, %s, s66 offen sc1" % SWS), None, None])
        items.append([lambda: a("buffer_store_dwordx2 v[112:113], v12, %s, s67 offen sc1" % SWS), lambda: lds_add(W_CLR), None])
    def weight_items():
        nonlocal len_before
        len_before = len(items)
        for j in range(8):
            def f(j=j):
                a("buffer_load_dwordx4 %s, v6, %s, s60 offen%s" % (v(16 + 4 * j, 4), SUV, NT))
                a("s_add_u32 s60, s60, %d" % (8192 if j != 3 else 13 * 8192))
            bf = None
            if j == 0 and args.wwait:
                def bf():
                    a("s_waitcnt vmcnt(0)")
                    complete_upto(len_before - 1)
                    if args.wwait == 1: lds_wait("wwait", W_PCD, 8)
                    else: lds_wait("wwait", W_SC, 8)
            items.append([f, (lambda: transpose_inplace(16, 112, 113)) if j == 7 else None, bf])
        for j in range(8):
            def f(j=j):
                c("w_o only for waves 4..7")
                a("s_cmp_lt_u32 %s, 4" % sWb)
                a("s_cbranch_scc1 L_nowo%d" % j)
                a("buffer_load_dwordx4 %s, v7, %s, s61 offen%s" % (v(48 + 4 * j, 4), SWO, NT))
                lab("L_nowo%d" % j)
                if j < 7:
                    a("s_add_u32 s61, s61, %d" % (8 * 896 if j != 3 else (896 - 24 * 896) & 0xffffffff))
            items.append([f, (lambda: transpose_inplace(48, 112, 113)) if j == 7 else None, None, "opt"])
    for t in range(16):
        if t == args.wpos: weight_items()
        post = "s_add_u32 s62, s62, 32768" if (t & 3 == 3 and t < 15) else None
        def done(t=t):
            lds_set_w(W_PROG, 3 + t // 4)
            if t == 15: stamp(1)
        before = None
        if t == 4: before = lambda: lds_wait("s1c", W_S1C, 4)
        if t == 8: before = lambda: lds_wait("s2c", W_S2C, 1, vSYw)
        items.append([dma(SKV, v(116 + (t & 3)), "s62", 1024 * t, post), done if t & 3 == 3 else None, before])
    if args.wpos >= 16: weight_items()
    nkv = 1 << 30
    n = len(items)
    done = -1
    def complete_upto(k):
        nonlocal done
        for q in range(done + 1, k + 1):
            if items[q][1]: items[q][1]()
        done = max(done, k)
    def youngest_cover(k, N):
        cnt = 0; q = k
        while q >= 0 and cnt < N:
            if len(items[q]) < 4: cnt += 1
            q -= 1
        return q
    for k in range(n):
        if items[k][2]: items[k][2]()
        hold_check()
        items[k][0]()
        Dk = args.dwo if (args.dwo and len(items[k]) == 4) else D
        if args.dww and len_before <= k < len_before + 8: Dk = args.dww
        if k >= D - 1:
            a("s_waitcnt vmcnt(%d)" % (Dk - 1))
            complete_upto(youngest_cover(k, Dk - 1))
    for N in range(max(D, args.dwo, args.dww) - 2, -1, -1):
        a("s_waitcnt vmcnt(%d)" % N)
        complete_upto(youngest_cover(n - 1, N))

def front():
    ROLE[0] = "f"
    c("================ FRONT waves 0..7")
    if args.prio: a("s_setprio %d" % args.prio)
    a("s_barrier")
    nonce_ready()
    if args.loadonly:
        lds_add(W_S1C)
        lds_set_w(W_S2C, 1)
        a("s_endpgm")
    a("s_cmp_ge_u32 %s, 4" % sW)
    a("s_cbranch_scc1 L_nos1")
    c("S1 (waves 0..3): rows 64cs+32blk.., cols 128dh..")
    a("v_and_b32 v5, 1, %s" % vR)
    a("v_mul_u32_u24 v5, 896, v5")
    a("v_lshl_add_u32 v5, %s, 4, v5" % vG)
    a("s_lshl_b32 s46, %s, 1" % sCs)
    a("s_lshr_b32 s47, %s, 1" % sW)
    a("s_add_u32 s46, s46, s47")
    a("s_lshl_b32 s48, s46, 6")
    a("buffer_load_dwordx4 v[8:11], v5, %s, s48 offen" % SX)
    a("s_lshl_b32 s46, %s, 15" % sW)
    a("v_lshlrev_b32 v6, 4, %s" % vLane)
    a("v_add_u32 v6, s46, v6")
    a("s_lshl_b32 s48, %s, 10" % sW)
    a("s_add_u32 s48, s48, %d" % P1)
    a("v_lshlrev_b32 v7, 9, %s" % vR)
    a("v_lshl_add_u32 v7, %s, 7, v7" % vG)
    a("v_add_u32 v7, s48, v7")
    lds_wait("wq0", W_PROG, 1, vSYw)
    for j in range(4):
        a("ds_read_b128 %s, v6 offset:%d" % (v(48 + 4 * j, 4), 4096 + 1024 * j))
    for j in range(4, 8):
        a("ds_read_b128 %s, v6 offset:%d" % (v(48 + 4 * j, 4), 16384 + 4096 + 1024 * (j & 3)))
    a("s_waitcnt vmcnt(0) lgkmcnt(0)")
    stamp(14)
    lds_add(W_S1C)
    block_mfma(48, 8, 88, True)
    a("s_nop 7")
    exec_n2()
    for i in range(8):
        a("ds_write_b128 v7, %s offset:%d" % (v(88 + 4 * i, 4), 16 * i))
    exec_all()
    a("s_waitcnt lgkmcnt(0)")
    lds_add(W_S1P)
    c("waves 0,1: batch b = w: sum the two row blocks, publish 2 x 1KB of tagged granules")
    a("s_cmp_ge_u32 %s, 2" % sW)
    a("s_cbranch_scc1 L_s1done")
    a("v_bfe_u32 v6, %s, 5, 1" % vLane)
    a("v_lshlrev_b32 v6, 10, v6")
    a("v_and_b32 v7, 31, %s" % vLane)
    a("v_lshl_add_u32 v6, v7, 4, v6")
    a("s_lshl_b32 s46, %s, 9" % sW)
    a("s_add_u32 s46, s46, %d" % P1)
    a("v_add_u32 v6, s46, v6")
    a("v_lshlrev_b32 v7, 4, %s" % vLane)
    a("s_lshl_b32 s48, %s, 4" % sP)
    a("s_add_u32 s48, s48, %s" % sH)
    a("s_lshl_b32 s48, s48, 3")
    a("s_add_u32 s48, s48, %s" % sCs)
    a("s_lshl_b32 s48, s48, 12")
    a("s_lshl_b32 s46, %s, 11" % sW)
    a("s_add_u32 s48, s48, s46")
    a("s_add_u32 s48, s48, %d" % Q1)
    a("v_mov_b32 v98, %s" % sN0); a("v_mov_b32 v99, %s" % sN1)
    a("v_mov_b32 v102, %s" % sN0); a("v_mov_b32 v103, %s" % sN1)
    lds_wait("s1p", W_S1P, 4)
    a("ds_read_b128 v[88:91], v6")
    a("ds_read_b128 v[92:95], v6 offset:2048")
    a("s_waitcnt lgkmcnt(0)")
    a("v_add_f32 v96, v88, v92"); a("v_add_f32 v97, v89, v93")
    a("v_add_f32 v100, v90, v94"); a("v_add_f32 v101, v91, v95")
    if args.h1local:
        a("s_add_u32 s46, s48, %d" % (Q1L - Q1))
        a("buffer_store_dwordx4 v[96:99], v7, %s, s46 offen" % SWS)
        a("buffer_store_dwordx4 v[100:103], v7, %s, s46 offen offset:1024" % SWS)
    a("buffer_store_dwordx4 v[96:99], v7, %s, s48 offen sc1" % SWS)
    a("buffer_store_dwordx4 v[100:103], v7, %s, s48 offen offset:1024 sc1" % SWS)
    stamp(15)
    a("s_branch L_s1done")
    lab("L_nos1")
    if args.touch:
        c("pre-touch this workgroup's share of the hand-off regions (brings the lines into the memory-side cache early)")
        a("v_subrev_u32 v5, 256, v0")
        a("v_lshlrev_b32 v6, 4, v5")
        a("s_lshl_b32 s46, s2, 12")
        a("s_add_u32 s47, s46, %d" % Q1)
        a("buffer_load_dwordx4 v[88:91], v6, %s, s47 offen" % SWS)
        a("s_add_u32 s47, s46, %d" % C4)
        a("buffer_load_dwordx4 v[88:91], v6, %s, s47 offen" % SWS)
        a("s_mul_i32 s47, s2, 7168")
        a("s_add_u32 s47, s47, %d" % PO)
        a("buffer_load_dwordx4 v[88:91], v6, %s, s47 offen" % SWS)
        a("buffer_load_dwordx4 v[88:91], v6, %s, s47 offen offset:3072" % SWS)
        a("v_lshlrev_b32 v7, 2, v5")
        a("s_lshl_b32 s46, s2, 10")
        a("buffer_load_dword v88, v7, %s, s46 offen offset:%d" % (SWS, QA))
        a("s_lshl_b32 s46, s2, 8")
        a("s_add_u32 s46, s46, %d" % ST)
        a("v_and_b32 v7, 0xfc, v7")
        a("buffer_load_dword v88, v7, %s, s46 offen" % SWS)
        if args.touch >= 2:
            a("s_lshl_b32 s46, %s, 22" % sP)
            a("s_lshl_b32 s47, %s, 15" % sJ)
            a("s_add_u32 s46, s46, s47")
            a("s_add_u32 s46, s46, %d" % PC)
            for k in range(8):
                a("buffer_load_dwordx4 v[88:91], v6, %s, s46 offen" % SWS)
                a("s_add_u32 s46, s46, 4096")
    c("H1 gather by waves 4..7: thread t = tid-256 -> granule t of each of 7 partials")
    a("v_subrev_u32 v5, 256, v0")
    a("v_lshlrev_b32 v6, 4, v5")
    a("s_lshl_b32 s48, %s, 4" % sP)
    a("s_add_u32 s48, s48, %s" % sH)
    a("s_lshl_b32 s48, s48, 15")
    a("s_add_u32 s48, s48, %d" % Q1)
    for k in range(1, 7): a("s_add_u32 s%d, s48, %d" % ([0, 49, 51, 52, 53, 54, 55][k], 4096 * k))
    a("v_bfe_u32 v4, v5, 7, 1")
    a("v_lshlrev_b32 v4, 9, v4")
    a("v_bfe_u32 v7, v5, 3, 3")
    a("v_lshl_add_u32 v4, v7, 6, v4")
    a("v_bfe_u32 v7, v5, 6, 1")
    a("v_lshl_add_u32 v4, v7, 5, v4")
    a("v_and_b32 v7, 7, v5")
    a("v_lshl_add_u32 v4, v7, 1, v4")
    a("v_add_u32 v4, %d, v4" % QL)
    lds_wait("s1own", W_S1P, 4)
    stamp(11)
    if args.dly1: a("s_sleep %d" % args.dly1)
    if args.h1local:
        a("v_add_u32 v8, %d, v6" % (Q1L - Q1))
        a("v_mov_b32 v9, v6")
        a("v_mov_b32 v6, v8")
    a("s_mov_b32 s47, 0")
    a("s_lshl_b32 s46, %s, 14" % sW)
    a("v_lshlrev_b32 v10, 4, %s" % vLane)
    a("v_add_u32 v10, s46, v10")
    def h1_next():
        c("between attempts: pull w_uk out of the LDS staging as soon as it has landed")
        a("s_cmp_lg_u32 s47, 0")
        a("s_cbranch_scc1 L_h1_ukdone")
        a("ds_read_b32 v121, %s offset:%d" % (vSYw, 4 * W_PROG))
        a("s_waitcnt lgkmcnt(0)")
        a("v_readfirstlane_b32 s46, v121")
        a("s_cmp_lt_u32 s46, 2")
        a("s_cbranch_scc1 L_h1_ukdone")
        for s_ in range(8):
            a("ds_read_b128 %s, v10 offset:%d" % (v(16 + 4 * s_, 4), 8192 + 1024 * s_))
        a("s_waitcnt lgkmcnt(0)")
        lds_set_w(W_S2C, 1)
        a("s_mov_b32 s47, 1")
        lab("L_h1_ukdone")
        if args.h1local:
            c("every 4th attempt reads the write-through copy")
            a("s_and_b32 s46, s59, %d" % args.slowmask)
            a("s_cmp_eq_u32 s46, 1")
            a("s_cselect_b64 vcc, -1, 0")
            a("s_nop 1")
            a("v_cndmask_b32 v6, v8, v9, vcc")
    hold(0, True)
    poll_masked("h1", [(lambda k=k: a("buffer_load_dwordx4 %s, v6, %s, s%d offen sc1" % (v(88 + 4 * k, 4), SWS, [48, 49, 51, 52, 53, 54, 55][k])), list(range(88 + 4 * k, 92 + 4 * k)), 't') for k in range(7)], again=h1_next, slp=args.slp1)
    hold(0, False)
    cnt_stamp(12)
    stamp(2)
    for e in range(2):
        a("v_add_f32 %s, %s, %s" % (v(88 + e), v(88 + e), v(92 + e)))
        a("v_add_f32 %s, %s, %s" % (v(96 + e), v(96 + e), v(100 + e)))
        a("v_add_f32 %s, %s, %s" % (v(104 + e), v(104 + e), v(108 + e)))
        a("v_add_f32 %s, %s, %s" % (v(88 + e), v(88 + e), v(96 + e)))
        a("v_add_f32 %s, %s, %s" % (v(104 + e), v(104 + e), v(112 + e)))
        a("v_add_f32 %s, %s, %s" % (v(88 + e), v(88 + e), v(104 + e)))
    a("v_cvt_pk_bf16_f32 v88, v88, v89")
    a("ds_write_b16 v4, v88")
    a("ds_write_b16_d16_hi v4, v88 offset:16")
    a("s_waitcnt lgkmcnt(0)")
    lds_add(W_Q)
    a("s_branch L_s1done2")
    lab("L_s1done")
    a("s_mov_b32 s47, 0")
    lab("L_s1done2")
    stamp(1)
    c("w_uk operand from LDS staging")
    a("s_lshl_b32 s46, %s, 14" % sW)
    a("v_lshlrev_b32 v7, 4, %s" % vLane)
    a("v_add_u32 v7, s46, v7")
    a("v_and_b32 v6, 1, %s" % vR)
    a("v_lshlrev_b32 v6, 9, v6")
    a("v_lshl_add_u32 v6, %s, 4, v6" % vG)
    a("v_add_u32 v6, %d, v6" % QL)
    a("s_cmp_lg_u32 s47, 0")
    a("s_cbranch_scc1 L_ukdone")
    lds_wait("uk", W_PROG, 2, vSYw)
    for s_ in range(8):
        a("ds_read_b128 %s, v7 offset:%d" % (v(16 + 4 * s_, 4), 8192 + 1024 * s_))
    a("s_waitcnt lgkmcnt(0)")
    lds_set_w(W_S2C, 1)
    lab("L_ukdone")
    lds_wait("q", W_Q, 4)
    stamp(3)
    c("S2")
    for s in range(8):
        a("ds_read_b128 %s, v6 offset:%d" % (v(48 + 4 * s, 4), 64 * s))
    a("v_lshlrev_b32 v6, 16, %s" % vR)
    a("v_lshl_add_u32 v6, %s, 10, v6" % vG)
    a("s_lshl_b32 s48, %s, 17" % sP)
    a("s_lshl_b32 s49, %s, 13" % sCs)
    a("s_add_u32 s48, s48, s49")
    a("s_lshl_b32 s49, %s, 6" % sH)
    a("s_add_u32 s48, s48, s49")
    a("s_and_b32 s49, %s, 1" % sW)
    a("s_lshl_b32 s49, s49, 12")
    a("s_add_u32 s48, s48, s49")
    a("s_lshr_b32 s49, %s, 1" % sW)
    a("s_lshl_b32 s49, s49, 4")
    a("s_add_u32 s48, s48, s49")
    a("s_mov_b32 s49, 0x3db8aa3b")
    a("s_waitcnt lgkmcnt(0)")
    for s in range(8):
        a("v_mfma_f32_16x16x32_bf16 v[88:91], %s, %s, %s" % (v(16 + 4 * s, 4), v(48 + 4 * s, 4), "0" if s == 0 else "v[88:91]"))
    a("s_nop 7")
    for k in range(4):
        a("v_mul_f32 %s, s49, %s" % (v(88 + k), v(88 + k)))
    a("v_cvt_pk_bf16_f32 v88, v88, v89")
    a("v_cvt_pk_bf16_f32 v89, v90, v91")
    a("v_mov_b32 v90, %s" % sN0)
    a("v_mov_b32 v91, %s" % sN1)
    exec_n2()
    a("buffer_store_dwordx4 v[88:91], v6, %s, s48 offen sc1" % SWS)
    exec_all()
    stamp(4)
    c("================ S3 address setup")
    a("s_lshl_b32 s51, %s, 14" % sW)
    a("v_and_b32 v8, 7, %s" % vR)
    a("v_lshlrev_b32 v8, 1, v8")
    a("v_lshrrev_b32 v9, 3, %s" % vR)
    a("v_or_b32 v8, v8, v9")
    a("v_lshlrev_b32 v9, 2, %s" % vG)
    a("v_xor_b32 v8, v8, v9")
    a("v_lshlrev_b32 v9, 8, %s" % vR)
    a("v_add_u32 v9, s51, v9")
    for s in range(4):
        a("v_xor_b32 v10, %d, v8" % s)
        a("v_lshl_add_u32 %s, v10, 4, v9" % v(4 + s))
    a("v_lshrrev_b32 v112, 2, %s" % vR)
    a("v_lshl_add_u32 v112, %s, 2, v112" % vG)
    a("v_and_b32 v113, 7, v112")
    a("v_lshlrev_b32 v113, 1, v113")
    a("v_lshrrev_b32 v114, 3, v112")
    a("v_or_b32 v113, v113, v114")
    a("v_bfe_u32 v114, %s, 1, 1" % vR)
    a("v_xor_b32 v113, v113, v114")
    a("v_lshlrev_b32 v113, 4, v113")
    a("v_and_b32 v114, 1, %s" % vR)
    a("v_lshl_add_u32 v113, v114, 3, v113")
    a("v_lshl_add_u32 v113, v112, 8, v113")
    a("v_add_u32 v113, s51, v113")
    for t in range(8):
        a("v_xor_b32 %s, %d, v113" % (v(8 + t), 32 * t))
    a("v_lshlrev_b32 v113, 4, %s" % vLane)
    a("v_add_u32 v114, 65536, v113")
    a("v_add_u32 v112, s51, v113")
    c("H2 gather: 8 x 1KB tagged granules; lane (h,g) gets c = 32g + 4*s2..")
    a("s_lshr_b32 s48, %s, 6" % sJ)
    a("s_lshl_b32 s49, %s, 1" % sP)
    a("s_add_u32 s48, s48, s49")
    a("s_lshl_b32 s48, s48, 3")
    a("s_add_u32 s48, s48, %s" % sW)
    a("s_lshl_b32 s48, s48, 13")
    a("s_add_u32 s49, s48, 4096")
    a("v_lshlrev_b32 v124, 6, %s" % vR)
    a("v_lshl_add_u32 v124, %s, 4, v124" % vG)
    if args.dly2: a("s_sleep %d" % args.dly2)
    if args.h2prog: lds_wait("h2p", W_PROG, args.h2prog, vSYw)
    hold(1, True)
    poll_masked("h2", [(lambda k=k: a("buffer_load_dwordx4 %s, v124, %s, %s offen offset:%d sc1" % (v(80 + 4 * k, 4), SWS, "s48" if k < 4 else "s49", QA + 1024 * (k & 3))), list(range(80 + 4 * k, 84 + 4 * k)), 't') for k in range(8)], slp=args.sleep2)
    hold(1, False)
    cnt_stamp(13)
    for k in range(8):
        a("v_mov_b32 %s, %s" % (v(16 + 2 * k), v(80 + 4 * k)))
        a("v_mov_b32 %s, %s" % (v(17 + 2 * k), v(81 + 4 * k)))
    lds_add(W_GO2)
    stamp(5)
    for T in range(4):
        lds_wait("tile%d" % T, W_PROG, T + 3, vSYw)
        for s_ in range(4):
            a("ds_read_b128 %s, %s offset:%d" % (v(32 + 4 * s_, 4), v(4 + s_), 4096 * T))
        if T == 1:
            c("V^T operands for u=0 (tiles 0,1) -> v[80:111]")
            for t in range(4):
                for jh in range(2):
                    a("ds_read_b64_tr_b16 %s, %s offset:%d" % (v(80 + 4 * t + 2 * jh, 2), v(8 + t), 4096 * jh))
            a("s_waitcnt lgkmcnt(8)")
        elif T == 2:
            for t in range(4, 8):
                for jh in range(2):
                    a("ds_read_b64_tr_b16 %s, %s offset:%d" % (v(80 + 4 * t + 2 * jh, 2), v(8 + t), 4096 * jh))
            a("s_waitcnt lgkmcnt(8)")
        else:
            a("s_waitcnt lgkmcnt(0)")
        for s_ in range(4):
            a("v_mfma_f32_16x16x32_bf16 %s, %s, %s, %s" % (v(64 + 4 * T, 4), v(32 + 4 * s_, 4), v(16 + 4 * s_, 4), "0" if s_ == 0 else v(64 + 4 * T, 4)))
    c("partial scores of all 4 tiles -> own slab's tile-0 region (fully consumed)")
    a("s_nop 7")
    for T in range(4):
        a("ds_write_b128 v112, %s offset:%d" % (v(64 + 4 * T, 4), 1024 * T))
    a("s_waitcnt lgkmcnt(0)")
    lds_add(W_SC)
    lds_wait("sc", W_SC, 8)
    stamp(6)
    c("reduce-scatter: wave w sums (tile w>>1, reg pair w&1) over the 8 partials; then all-gather")
    a("s_lshr_b32 s46, %s, 1" % sW)
    a("s_lshl_b32 s46, s46, 10")
    a("s_and_b32 s47, %s, 1" % sW)
    a("s_lshl_b32 s47, s47, 3")
    a("s_add_u32 s46, s46, s47")
    a("v_add_u32 v115, s46, v113")
    a("v_add_u32 v116, s46, v114")
    for k in range(8):
        a("ds_read_b64 %s, %s offset:%d" % (v(16 + 2 * k, 2), "v115" if k < 4 else "v116", 16384 * (k & 3)))
    a("v_add_u32 v117, %d, v115" % X0)
    a("v_add_u32 v118, %d, v113" % X0)
    a("s_waitcnt lgkmcnt(0)")
    for e in range(2):
        a("v_add_f32 %s, %s, %s" % (v(16 + e), v(16 + e), v(18 + e)))
        a("v_add_f32 %s, %s, %s" % (v(20 + e), v(20 + e), v(22 + e)))
        a("v_add_f32 %s, %s, %s" % (v(24 + e), v(24 + e), v(26 + e)))
        a("v_add_f32 %s, %s, %s" % (v(28 + e), v(28 + e), v(30 + e)))
        a("v_add_f32 %s, %s, %s" % (v(16 + e), v(16 + e), v(20 + e)))
        a("v_add_f32 %s, %s, %s" % (v(24 + e), v(24 + e), v(28 + e)))
        a("v_add_f32 %s, %s, %s" % (v(16 + e), v(16 + e), v(24 + e)))
    a("ds_write_b64 v117, v[16:17]")
    a("s_waitcnt lgkmcnt(0)")
    lds_add(W_SC + 1)
    lds_wait("sc2", W_SC + 1, 8)
    for T in range(4):
        a("ds_read_b128 %s, v118 offset:%d" % (v(64 + 4 * T, 4), 1024 * T))
    a("s_waitcnt lgkmcnt(0)")
    a("v_max3_f32 v48, v64, v65, v66")
    for k in range(67, 79, 2):
        a("v_max3_f32 v48, v48, %s, %s" % (v(k), v(k + 1)))
    a("v_max_f32 v48, v48, v79")
    for op in ("v_permlane32_swap_b32", "v_permlane16_swap_b32"):
        a("v_mov_b32 v49, v48")
        a("s_nop 1")
        a("%s v48, v49" % op)
        a("s_nop 1")
        a("v_max_f32 v48, v48, v49")
    for k in range(16):
        a("v_sub_f32 %s, %s, v48" % (v(64 + k), v(64 + k)))
    for k in range(16):
        a("v_exp_f32 %s, %s" % (v(64 + k), v(64 + k)))
    a("s_nop 0")
    for u in range(2):
        for q in range(4):
            a("v_cvt_pk_bf16_f32 %s, %s, %s" % (v(52 + 4 * u + q), v(64 + 8 * u + 2 * q), v(64 + 8 * u + 2 * q + 1)))
    a("s_nop 1")
    for t in range(8):
        a("v_mfma_f32_16x16x32_bf16 %s, %s, v[52:55], 0" % (v(16 + 4 * t, 4), v(80 + 4 * t, 4)))
        for jh in range(2):
            a("ds_read_b64_tr_b16 %s, %s offset:%d" % (v(80 + 4 * t + 2 * jh, 2), v(8 + t), 8192 + 4096 * jh))
    c("row sum while the u=1 operands arrive")
    a("v_add_f32 v49, v64, v65")
    for k in range(66, 80):
        a("v_add_f32 v49, v49, %s" % v(k))
    for op in ("v_permlane32_swap_b32", "v_permlane16_swap_b32"):
        a("v_mov_b32 v50, v49")
        a("s_nop 1")
        a("%s v49, v50" % op)
        a("s_nop 1")
        a("v_add_f32 v49, v49, v50")
    if args.pcl == 0:
        a("v_lshlrev_b32 v6, 18, %s" % vR)
        a("v_lshl_add_u32 v6, %s, 4, v6" % vG)
        a("s_lshl_b32 s48, %s, 22" % sP)
        a("s_lshl_b32 s49, %s, 15" % sW)
        a("s_add_u32 s48, s48, s49")
        a("s_lshl_b32 s49, %s, 6" % sJ)
        a("s_add_u32 s48, s48, s49")
        a("s_add_u32 s48, s48, %d" % PC)
    else:
        a("v_lshlrev_b32 v6, 6, %s" % vR)
        a("v_lshl_add_u32 v6, %s, 4, v6" % vG)
        a("s_lshl_b32 s48, %s, 22" % sP)
        a("s_lshl_b32 s49, %s, 15" % sJ)
        a("s_add_u32 s48, s48, s49")
        a("s_lshl_b32 s49, %s, 12" % sW)
        a("s_add_u32 s48, s48, s49")
        a("s_add_u32 s48, s48, %d" % PC)
    a("s_waitcnt lgkmcnt(0)")
    for t in range(8):
        a("v_mfma_f32_16x16x32_bf16 %s, %s, v[56:59], %s" % (v(16 + 4 * t, 4), v(80 + 4 * t, 4), v(16 + 4 * t, 4)))
    hold(2, True)
    a("s_nop 3")
    for up in range(4):
        for q in range(4):
            a("v_cvt_pk_bf16_f32 %s, %s, %s" % (v(80 + 4 * up + q), v(16 + 8 * up + 2 * q), v(16 + 8 * up + 2 * q + 1)))
        a("buffer_store_dwordx4 %s, v6, %s, s48 offen sc1" % (v(80 + 4 * up, 4), SWS))
        a("s_add_u32 s48, s48, %d" % (8192 if args.pcl == 0 else 1024))
    c("payload addresses for the H3 gather: wave w' = (u' = w'>>1, b = w'&1)")
    a("s_lshl_b32 s52, %s, 22" % sP)
    a("s_and_b32 s49, %s, 1" % sW)
    a("s_lshl_b32 s49, s49, 21")
    a("s_add_u32 s52, s52, s49")
    a("s_lshl_b32 s49, %s, 2" % sCs)
    a("s_lshr_b32 s53, %s, 1" % sW)
    a("s_add_u32 s49, s49, s53")
    a("s_lshl_b32 s49, s49, 10")
    a("s_add_u32 s52, s52, s49")
    a("s_lshl_b32 s49, %s, 6" % sH)
    a("s_add_u32 s52, s52, s49")
    a("s_add_u32 s52, s52, %d" % PC)
    a("v_lshrrev_b32 v5, 2, %s" % vLane)
    a("v_lshlrev_b32 v7, 2, v5")
    a("v_lshlrev_b32 v5, 15, v5")
    a("v_and_b32 v4, 3, %s" % vLane)
    a("v_lshl_add_u32 v5, v4, 4, v5")
    a("s_and_b32 s49, %s, 1" % sW)
    a("s_lshl_b32 s49, s49, 8")
    a("s_add_u32 s49, s49, %d" % SCL)
    a("v_add_u32 v7, s49, v7")
    a("v_lshlrev_b32 v6, 4, %s" % vLane)
    a("s_waitcnt vmcnt(0)")
    hold(2, False)
    lds_add(W_PCD)
    stamp(7)
    a("s_cmp_lg_u32 %s, 0" % sW)
    a("s_cbranch_scc1 L_s3_nostat")
    c("wave 0: all partial-ctx stores drained -> stats granules {m,l,nonce} double as the H3 flags")
    a("v_lshlrev_b32 v8, 11, %s" % vR)
    a("s_lshl_b32 s48, %s, 15" % sP)
    a("s_lshl_b32 s49, %s, 4" % sJ)
    a("s_add_u32 s48, s48, s49")
    a("s_add_u32 s48, s48, %d" % ST)
    a("v_mov_b32 v50, %s" % sN0)
    a("v_mov_b32 v51, %s" % sN1)
    lds_wait("pcd", W_PCD, 8)
    a("s_mov_b64 exec, 0xffff")
    a("buffer_store_dwordx4 v[48:51], v8, %s, s48 offen sc1" % SWS)
    exec_all()
    lab("L_s3_nostat")
    a("s_cmp_lg_u32 %s, 7" % sW)
    a("s_cbranch_scc1 L_nopoll3")
    c("wave 7: poll the 128 stats granules of head h; lane l has producers l (b=0) and 64+l (b=1)")
    a("s_lshl_b32 s48, %s, 4" % sP)
    a("s_add_u32 s48, s48, %s" % sH)
    a("s_lshl_b32 s48, s48, 11")
    a("s_add_u32 s48, s48, %d" % ST)
    poll_masked("h3s", [(lambda k=k: a("buffer_load_dwordx4 %s, v6, %s, s48 offen offset:%d sc1" % (v(64 + 4 * k, 4), SWS, 1024 * k)), list(range(64 + 4 * k, 68 + 4 * k)), 't') for k in range(2)], slp=args.sleep3, adapt=args.adapt)
    lds_add(W_GO3)
    lab("L_nopoll3")
    lds_wait("go3", W_GO3, 1)
    stamp(8)
    for k in range(4):
        a("buffer_load_dwordx4 %s, v5, %s, s52 offen sc1" % (v(16 + 4 * k, 4), SWS))
        a("s_add_u32 s52, s52, %d" % (16 * 32768))
    a("s_cmp_lg_u32 %s, 7" % sW)
    a("s_cbranch_scc1 L_noscl")
    c("wave 7: scales 2^(m-M)/L for all 128 producers -> LDS")
    for b in range(2):
        m = 64 + 4 * b
        a("v_mov_b32 v80, %s" % v(m))
        for q in ("quad_perm:[1,0,3,2]", "quad_perm:[2,3,0,1]"):
            a("s_nop 1")
            a("v_max_f32_dpp v80, v80, v80 %s row_mask:0xf bank_mask:0xf" % q)
        xlane_reduce_2to5(80, 84, "v_max_f32")
        a("v_sub_f32 %s, %s, v80" % (v(m), v(m)))
        a("v_exp_f32 %s, %s" % (v(m), v(m)))
        a("s_nop 0")
        a("v_mul_f32 v81, %s, %s" % (v(m), v(m + 1)))
        for q in ("quad_perm:[1,0,3,2]", "quad_perm:[2,3,0,1]"):
            a("s_nop 1")
            a("v_add_f32_dpp v81, v81, v81 %s row_mask:0xf bank_mask:0xf" % q)
        xlane_reduce_2to5(81, 84, "v_add_f32")
        a("v_rcp_f32 v81, v81")
        a("s_nop 0")
        a("v_mul_f32 %s, %s, v81" % (v(m), v(m)))
    a("v_lshlrev_b32 v8, 2, %s" % vLane)
    a("v_add_u32 v8, %d, v8" % SCL)
    a("ds_write_b32 v8, v64")
    a("ds_write_b32 v8, v68 offset:256")
    a("s_waitcnt lgkmcnt(0)")
    lds_add(W_SCL)
    lab("L_noscl")
    lds_wait("scl", W_SCL, 1)
    for k in range(4):
        a("ds_read_b32 %s, v7 offset:%d" % (v(64 + k), 64 * k))
    a("v_and_b32 v6, 3, %s" % vLane)
    a("v_lshlrev_b32 v6, 4, v6")
    a("v_bfe_u32 v7, %s, 5, 1" % vLane)
    a("v_lshl_add_u32 v6, v7, 3, v6")
    a("v_bfe_u32 v7, %s, 4, 1" % vLane)
    a("v_lshl_add_u32 v6, v7, 2, v6")
    a("s_lshl_b32 s48, %s, 6" % sW)
    a("s_add_u32 s48, s48, %d" % CL)
    a("v_add_u32 v6, s48, v6")
    a("s_lshr_b32 s46, %s, 1" % sW)
    a("s_lshl_b32 s46, s46, 2")
    a("s_add_u32 s46, s46, %d" % SY)
    a("v_mov_b32 v122, s46")
    a("s_waitcnt vmcnt(0) lgkmcnt(0)")
    stamp(9)
    for k in range(4):
        for q in range(4):
            a("v_lshlrev_b32 v84, 16, %s" % v(16 + 4 * k + q))
            a("v_and_b32 v85, 0xffff0000, %s" % v(16 + 4 * k + q))
            op = "v_mul_f32" if k == 0 else "v_fmac_f32"
            a("%s %s, v84, %s" % (op, v(88 + 2 * q), v(64 + k)))
            a("%s %s, v85, %s" % (op, v(88 + 2 * q + 1), v(64 + k)))
    a("s_nop 1")
    for j in range(4):
        a("v_permlane32_swap_b32 %s, %s" % (v(88 + j), v(92 + j)))
    a("s_nop 1")
    for j in range(4):
        a("v_add_f32 %s, %s, %s" % (v(88 + j), v(88 + j), v(92 + j)))
    a("s_nop 1")
    for j in range(2):
        a("v_permlane16_swap_b32 %s, %s" % (v(88 + j), v(90 + j)))
    a("s_nop 1")
    for j in range(2):
        a("v_add_f32 %s, %s, %s" % (v(88 + j), v(88 + j), v(90 + j)))
    for ror in (4, 8):
        a("s_nop 1")
        for j in range(2):
            a("v_add_f32_dpp %s, %s, %s row_ror:%d row_mask:0xf bank_mask:0xf" % (v(88 + j), v(88 + j), v(88 + j), ror))
    a("v_cvt_pk_bf16_f32 v88, v88, v89")
    a("s_mov_b32 exec_lo, 0x000f000f"); a("s_mov_b32 exec_hi, 0x000f000f")
    a("ds_write_b32 v6, v88")
    exec_all()
    a("s_waitcnt lgkmcnt(0)")
    a("v_mov_b32 v121, 1")
    a("s_mov_b64 exec, 1")
    a("ds_add_u32 v122, v121 offset:%d" % (4 * W_CL))
    exec_all()
    stamp(10)
    a("s_endpgm")

def back():
    ROLE[0] = "b"
    c("================ BACK waves 8..15")
    bulk_loader()
    nonce_ready()
    stamp(2)
    if args.loadonly: a("s_endpgm")
    a("v_and_b32 v6, 1, %s" % vR)
    a("v_lshlrev_b32 v6, 6, v6")
    a("v_lshl_add_u32 v6, %s, 4, v6" % vG)
    a("s_lshr_b32 s46, %s, 1" % sWb)
    a("s_lshl_b32 s48, s46, 7")
    a("s_add_u32 s48, s48, %d" % CL)
    a("v_add_u32 v6, s48, v6")
    a("s_lshl_b32 s46, s46, 2")
    a("s_add_u32 s46, s46, %d" % SY)
    a("v_mov_b32 v122, s46")
    a("v_lshlrev_b32 v8, 9, %s" % vR)
    a("v_lshl_add_u32 v8, %s, 7, v8" % vG)
    a("s_lshl_b32 s48, %s, 10" % sWb)
    a("s_add_u32 s48, s48, %d" % P4)
    a("v_add_u32 v8, s48, v8")
    c("H4 addresses")
    a("s_lshl_b32 s52, %s, 4" % sP)
    a("s_add_u32 s52, s52, %s" % sH)
    a("s_lshl_b32 s52, s52, 15")
    lds_wait("cl", W_CL, 2, "v122")
    stamp(3)
    c("================ S4")
    a("ds_read_b128 v[4:7], v6")
    a("s_waitcnt lgkmcnt(0)")
    for i in range(8):
        a("v_mfma_f32_16x16x32_bf16 %s, %s, v[4:7], 0" % (v(80 + 4 * i, 4), v(16 + 4 * i, 4)))
    a("s_nop 7")
    exec_n2()
    for i in range(8):
        a("ds_write_b128 v8, %s offset:%d" % (v(80 + 4 * i, 4), 16 * i))
    exec_all()
    a("s_waitcnt lgkmcnt(0)")
    a("s_barrier")
    a("s_cmp_ge_u32 %s, 4" % sWb)
    a("s_cbranch_scc1 L_s5")
    c("waves 0..3: thread t<256 = granule (dhalf,g,b,i,half): sum 4 k-blocks, publish both copies")
    a("v_subrev_u32 v5, 512, v0")
    a("v_bfe_u32 v6, v5, 7, 1")
    a("v_lshlrev_b32 v6, 10, v6")
    a("v_bfe_u32 v7, v5, 4, 1")
    a("v_lshl_add_u32 v6, v7, 9, v6")
    a("v_bfe_u32 v7, v5, 5, 2")
    a("v_lshl_add_u32 v6, v7, 7, v6")
    a("v_and_b32 v7, 15, v5")
    a("v_lshl_add_u32 v6, v7, 3, v6")
    a("v_add_u32 v6, %d, v6" % P4)
    for k in range(4):
        a("ds_read_b64 %s, v6 offset:%d" % (v(16 + 2 * k, 2), 2048 * k))
    a("v_lshlrev_b32 v5, 4, v5")
    a("s_lshl_b32 s48, %s, 12" % sCs)
    a("s_add_u32 s48, s48, s52")
    a("s_add_u32 s49, s48, %d" % C4L)
    a("s_add_u32 s48, s48, %d" % C4)
    a("v_mov_b32 v26, %s" % sN0); a("v_mov_b32 v27, %s" % sN1)
    a("s_waitcnt lgkmcnt(0)")
    a("v_add_f32 v16, v16, v18"); a("v_add_f32 v17, v17, v19")
    a("v_add_f32 v20, v20, v22"); a("v_add_f32 v21, v21, v23")
    a("v_add_f32 v24, v16, v20"); a("v_add_f32 v25, v17, v21")
    a("buffer_store_dwordx4 v[24:27], v5, %s, s49 offen" % SWS)
    a("buffer_store_dwordx4 v[24:27], v5, %s, s48 offen sc1" % SWS)
    stamp(4)
    a("s_endpgm")
    lab("L_s5")
    c("================ waves 4..7: H4 gather (8 producers x 512B for d-slice cs), S5 for m-block mb")
    a("v_lshrrev_b32 v6, 5, %s" % vLane)
    a("v_lshlrev_b32 v6, 12, v6")
    a("v_and_b32 v7, 31, %s" % vLane)
    a("v_lshl_add_u32 v6, v7, 4, v6")
    a("v_add_u32 v8, %d, v6" % (C4L - C4))
    a("v_mov_b32 v9, v6")
    a("v_mov_b32 v6, v8")
    a("s_lshl_b32 s48, %s, 9" % sCs)
    a("s_add_u32 s48, s48, s52")
    a("s_add_u32 s48, s48, %d" % C4)
    for k in range(1, 4): a("s_add_u32 s%d, s48, %d" % ([0, 49, 51, 53][k], 8192 * k))
    a("s_and_b32 s46, %s, 3" % sWb)
    a("s_lshl_b32 s47, s46, 7")
    a("s_add_u32 s47, s47, %d" % CB)
    a("v_lshlrev_b32 v10, 2, v7")
    a("v_add_u32 v10, s47, v10")
    a("v_and_b32 v11, 1, %s" % vR)
    a("v_lshlrev_b32 v11, 6, v11")
    a("v_lshl_add_u32 v11, %s, 4, v11" % vG)
    a("v_add_u32 v11, s47, v11")
    a("s_lshl_b32 s47, s46, 10")
    a("s_add_u32 s47, s47, %d" % P5)
    a("v_lshlrev_b32 v12, 9, %s" % vR)
    a("v_lshl_add_u32 v12, %s, 7, v12" % vG)
    a("v_add_u32 v12, s47, v12")
    a("v_lshlrev_b32 v13, 4, %s" % vLane)
    a("v_add_u32 v13, s47, v13")
    a("s_lshl_b32 s47, s46, 5")
    a("v_add_u32 v14, s47, v7")
    a("v_cmp_gt_u32 vcc, 112, v14")
    a("v_lshrrev_b32 v15, 5, %s" % vLane)
    a("v_mul_u32_u24 v15, 112, v15")
    a("v_add_u32 v14, v14, v15")
    a("v_lshlrev_b32 v14, 5, v14")
    a("v_mov_b32 v15, 0x7fff0000")
    a("v_cndmask_b32 v14, v15, v14, vcc")
    a("s_lshl_b32 s54, %s, 7" % sP)
    a("s_add_u32 s54, s54, %s" % sJ)
    a("s_mul_i32 s54, s54, 7168")
    a("s_add_u32 s54, s54, %d" % PO)
    if args.dly4: a("s_sleep %d" % args.dly4)
    def h4_next():
        a("s_and_b32 s46, s59, %d" % args.slowmask)
        a("s_cmp_eq_u32 s46, 1")
        a("s_cselect_b64 vcc, -1, 0")
        a("s_nop 1")
        a("v_cndmask_b32 v6, v8, v9, vcc")
    poll_masked("h4", [(lambda k=k: a("buffer_load_dwordx4 %s, v6, %s, s%d offen sc1" % (v(16 + 4 * k, 4), SWS, [48, 49, 51, 53][k])), list(range(16 + 4 * k, 20 + 4 * k)), 't') for k in range(4)], again=h4_next, slp=args.slp1)
    stamp(5)
    for e in range(2):
        a("v_add_f32 %s, %s, %s" % (v(16 + e), v(16 + e), v(20 + e)))
        a("v_add_f32 %s, %s, %s" % (v(24 + e), v(24 + e), v(28 + e)))
        a("v_add_f32 %s, %s, %s" % (v(16 + e), v(16 + e), v(24 + e)))
        a("v_mov_b32 v20, %s" % v(16 + e))
        a("s_nop 1")
        a("v_permlane32_swap_b32 %s, v20" % v(16 + e))
        a("s_nop 1")
        a("v_add_f32 %s, %s, v20" % (v(16 + e), v(16 + e)))
    a("v_cvt_pk_bf16_f32 v16, v16, v17")
    a("ds_write_b32 v10, v16")
    a("s_waitcnt lgkmcnt(0)")
    a("ds_read_b128 v[4:7], v11")
    a("s_waitcnt lgkmcnt(0)")
    for i in range(8):
        a("v_mfma_f32_16x16x32_bf16 %s, %s, v[4:7], 0" % (v(80 + 4 * i, 4), v(48 + 4 * i, 4)))
    a("v_mov_b32 v34, %s" % sN0); a("v_mov_b32 v35, %s" % sN1)
    a("v_mov_b32 v38, %s" % sN0); a("v_mov_b32 v39, %s" % sN1)
    a("s_nop 5")
    exec_n2()
    for i in range(8):
        a("ds_write_b128 v12, %s offset:%d" % (v(80 + 4 * i, 4), 16 * i))
    exec_all()
    a("s_waitcnt lgkmcnt(0)")
    a("ds_read_b128 v[16:19], v13")
    a("s_waitcnt lgkmcnt(0)")
    a("v_mov_b32 v32, v16"); a("v_mov_b32 v33, v17"); a("v_mov_b32 v36, v18"); a("v_mov_b32 v37, v19")
    a("buffer_store_dwordx4 v[32:35], v14, %s, s54 offen sc1" % SWS)
    a("buffer_store_dwordx4 v[36:39], v14, %s, s54 offen offset:16 sc1" % SWS)
    stamp(6)
    a("s_cmp_lg_u32 %s, 7" % sWb)
    a("s_cbranch_scc1 L_end")
    a("s_cmp_ge_u32 %s, 56" % sJ)
    a("s_cbranch_scc1 L_end")
    FINAL[0] = True
    c("lane = (producer sub 8, granule 8); 16 loads x 8 producers; 128B per producer")
    a("v_lshrrev_b32 v6, 3, %s" % vLane)
    a("v_mul_u32_u24 v6, 7168, v6")
    a("v_and_b32 v7, 7, %s" % vLane)
    a("v_lshl_add_u32 v6, v7, 4, v6")
    a("s_mul_i32 s48, %s, %d" % (sP, 128 * 7168))
    a("s_lshl_b32 s49, %s, 7" % sJ)
    a("s_add_u32 s48, s48, s49")
    a("s_add_u32 s48, s48, %d" % PO)
    a("s_cmp_ge_u32 %s, 28" % sJ)
    a("s_cselect_b32 s49, 28, 0")
    a("s_cselect_b32 s51, 896, 0")
    a("s_sub_u32 s49, %s, s49" % sJ)
    a("s_lshl_b32 s49, s49, 4")
    a("s_and_b32 s52, s49, 0xffe0")
    a("s_lshr_b32 s49, s49, 2")
    a("s_and_b32 s49, s49, 7")
    a("s_add_u32 s52, s52, s49")
    a("s_add_u32 s52, s52, s51")
    a("s_mul_i32 s49, %s, 448" % sP)
    a("s_add_u32 s52, s52, s49")
    a("s_lshl_b32 s52, s52, 1")
    a("v_lshrrev_b32 v8, 1, v7")
    a("v_lshlrev_b32 v8, 1, v8")
    a("v_and_b32 v7, 1, v7")
    a("v_lshl_add_u32 v7, v7, 5, v8")
    def ld5(k):
        a("s_add_u32 s49, s48, %d" % (8 * 7168 * k))
        a("buffer_load_dwordx4 %s, v6, %s, s49 offen sc1" % (v(16 + 4 * k, 4), SWS))
    d5 = args.dly5
    while d5 > 0:
        a("s_sleep %d" % min(d5, 127)); d5 -= 127
    poll_masked("h5", [(lambda k=k: ld5(k), list(range(16 + 4 * k, 20 + 4 * k)), 't') for k in range(16)], slp=args.sleep5)
    stamp(7)
    for st in (8, 4, 2, 1):
        for k in range(st):
            for e in range(2):
                a("v_add_f32 %s, %s, %s" % (v(16 + 4 * k + e), v(16 + 4 * k + e), v(16 + 4 * (k + st) + e)))
    for e in range(2):
        a("s_nop 1")
        a("v_add_f32_dpp %s, %s, %s row_ror:8 row_mask:0xf bank_mask:0xf" % (v(16 + e), v(16 + e), v(16 + e)))
        for pop in ("v_permlane16_swap_b32", "v_permlane32_swap_b32"):
            a("v_mov_b32 v20, %s" % v(16 + e))
            a("s_nop 1")
            a("%s %s, v20" % (pop, v(16 + e)))
            a("s_nop 1")
            a("v_add_f32 %s, %s, v20" % (v(16 + e), v(16 + e)))
    a("v_cvt_pk_bf16_f32 v16, v16, v17")
    a("s_mov_b64 exec, 0xff")
    a("buffer_store_short v16, v7, %s, s52 offen" % SOUT)
    a("buffer_store_short_d16_hi v16, v7, %s, s52 offen offset:16" % SOUT)
    a("s_cmp_lg_u32 %s, 0" % sJ)
    a("s_cbranch_scc1 L_noep")
    c("advance the epoch word for a later launch on the same workspace")
    a("s_lshl_b32 s46, %s, 7" % sP)
    a("s_add_u32 s46, s46, %d" % EP)
    a("v_mov_b32 v20, %s" % sN0)
    a("v_mov_b32 v21, %s" % sN1)
    a("v_mov_b32 v22, 0")
    a("s_mov_b64 exec, 1")
    a("buffer_store_dwordx2 v[20:21], v22, %s, s46 offen sc1" % SWS)
    lab("L_noep")
    exec_all()
    stamp(8)

hdr = [l for l in open("concat_heads__compressed_kv_cla__compressed_kv_cla__decode.s.ref").read().split("\n") if l.startswith(";") and "@launch" not in l]
out.extend(hdr)
out.append("; @launch grid=(256,1,1) block=(1024,1,1) lds=%d" % LDS_BYTES)
out.extend(['.amdgcn_target "amdgcn-amd-amdhsa--gfx950"', ".text"])
out.extend([".globl %s" % KN, ".p2align 8", ".type %s,@function" % KN, KN + ":"])
prologue(256)
stamp(0)
a("s_cmp_ge_u32 %s, 8" % sW)
a("s_cbranch_scc1 L_back")
front()
lab("L_back")
back()
lab("L_end"); a("s_endpgm")
out.extend(['.section .rodata,"a"', ".p2align 6", ".amdhsa_kernel %s" % KN,
    "  .amdhsa_next_free_vgpr 128", "  .amdhsa_next_free_sgpr 96", "  .amdhsa_accum_offset 128",
    "  .amdhsa_group_segment_fixed_size 0", "  .amdhsa_kernarg_size 120", "  .amdhsa_user_sgpr_count 2",
    "  .amdhsa_user_sgpr_kernarg_segment_ptr 1", "  .amdhsa_system_sgpr_workgroup_id_x 1", ".end_amdhsa_kernel"])
txt = "\n".join(out)
import re
if args.stp != "sc1":
    txt = re.sub(r"(buffer_store_\w+ [^\n]*) sc1", lambda m: m.group(1) + " " + args.stp.replace("_", " "), txt)
if args.ldp != "sc1":
    txt = re.sub(r"(buffer_load_\w+ [^\n]*) sc1", lambda m: m.group(1) + " " + args.ldp.replace("_", " "), txt)
print(txt)
```

```python
import sys, argparse
ap = argparse.ArgumentParser()
ap.add_argument("--stamp", type=int, default=0)
ap.add_argument("--spin", type=int, default=200000)
ap.add_argument("--sleep", type=int, default=4)
ap.add_argument("--ntq", type=int, default=1)
ap.add_argument("--depth", type=int, default=3)
ap.add_argument("--depth2", type=int, default=0)
ap.add_argument("--h1local", type=int, default=1)
ap.add_argument("--sleep3", type=int, default=4)
ap.add_argument("--sleep5", type=int, default=4)
ap.add_argument("--dly5", type=int, default=0)
ap.add_argument("--sleep2", type=int, default=8)
ap.add_argument("--stp", default="sc1")
ap.add_argument("--ldp", default="sc1")
ap.add_argument("--touch", type=int, default=0)
ap.add_argument("--slowmask", type=int, default=3)
ap.add_argument("--slp1", type=int, default=2)
ap.add_argument("--loadonly", type=int, default=0)
ap.add_argument("--inpol", default="nt")
ap.add_argument("--kvpol", default="")
ap.add_argument("--pol", type=int, default=1)
ap.add_argument("--adapt", type=int, default=0)
ap.add_argument("--wwait", type=int, default=0)
ap.add_argument("--dww", type=int, default=0)
ap.add_argument("--h2prog", type=int, default=0)
ap.add_argument("--hold", type=int, default=0)
ap.add_argument("--dwo", type=int, default=0)
ap.add_argument("--wpos", type=int, default=16)
ap.add_argument("--dly4", type=int, default=4)
ap.add_argument("--pause", type=int, default=-1)
ap.add_argument("--dly1", type=int, default=16)
ap.add_argument("--dly2", type=int, default=16)
ap.add_argument("--pcl", type=int, default=1)
ap.add_argument("--dense", type=int, default=1)
ap.add_argument("--prio", type=int, default=0)
ap.add_argument("--clrpos", type=int, default=8)
args = ap.parse_args()
NT = "" if args.inpol == "none" else " " + args.inpol.replace("_", " ")
NTKV = NT if not args.kvpol else ("" if args.kvpol == "none" else " " + args.kvpol.replace("_", " "))
NTQ = " nt" if args.ntq else ""

KN = "concat_heads__compressed_kv_cla__compressed_kv_cla__decode_kernel"
out = []
def a(s): out.append("    " + s)
def lab(s): out.append(s + ":")
def c(s): out.append("    ; " + s)

QA = 0
PC = 1 << 20
Q1 = 9 << 20
C4 = 16 << 20
C4L = 17 << 20
Q1L = 15 << 20
ST = 10 << 20
FL = (10 << 20) + (256 << 10)
EP = (10 << 20) + (512 << 10)
PO = 13 << 20
STAMP = 12 << 20
WS_USED = 18 << 20
X0 = 131072
P1 = X0
QL = X0 + 16384
SY = QL + 1024
W_S1P, W_Q, W_GO2, W_S1C, W_SC, W_PROG, W_CL, W_S2C, W_QAD, W_GO3, W_PCD, W_SCL, W_HOLD = 0, 1, 2, 3, 4, 8, 16, 24, 32, 33, 34, 35, 36
SCL = SY + 256
CL = X0
P4 = X0 + 4096
CB = X0 + 12288
P5 = 16384
LDS_BYTES = 163840

sW, sP, sH, sCs, sJ = "s3", "s4", "s5", "s6", "s7"
SX, SKV, SWQ, SUK, SUV, SWO, SWS, SOUT, SDBG = ["s[%d:%d]" % (i, i + 3) for i in range(8, 44, 4)]
sSel0, sSel1 = "s44", "s45"
sWb = "s50"
sN0, sN1 = "s92", "s93"
sSent = "s94"
vLane, vR, vG = "v1", "v2", "v3"
vSY, vSYw = "v123", "v125"
def v(i, n=1): return "v%d" % i if n == 1 else "v[%d:%d]" % (i, i + n - 1)
def exec_n2():
    a("s_mov_b32 exec_lo, 0x00030003"); a("s_mov_b32 exec_hi, 0x00030003")
def exec_all(): a("s_mov_b64 exec, -1")

FINAL = [False]
ROLE = ["x"]
DS = [0]
def stamp(idx):
    if not args.stamp: return
    if args.stamp == 2 and not (idx == 0 or (idx == 8 and FINAL[0])): return
    if args.stamp == 3:
        role = ROLE[0]
        slot = {("x", 0): 0, ("f", 15): 1, ("f", 4): 2, ("f", 5): 3, ("f", 6): 4, ("f", 7): 5, ("f", 8): 6, ("f", 10): 7, ("b", 1): 8, ("b", 2): 9, ("b", 3): 10, ("b", 5): 11, ("b", 6): 12, ("b", 7): 13, ("b", 8): 14}.get((role, idx))
        if slot is None: return
        DS[0] += 1
        a("s_cmp_lg_u32 s2, 0")
        a("s_cbranch_scc1 L_ds%d" % DS[0])
        a("s_cmp_lg_u32 %s, %d" % (sW, 15 if role == "b" else 0))
        a("s_cbranch_scc1 L_ds%d" % DS[0])
        a("s_memrealtime s[56:57]")
        a("s_waitcnt lgkmcnt(0)")
        a("v_mov_b32 v127, s56")
        a("v_mov_b32 v126, 0")
        a("s_mov_b64 s[56:57], exec")
        a("s_mov_b64 exec, 1")
        a("buffer_store_dword v127, v126, %s, 0 offen offset:%d" % (SDBG, 4 * slot))
        a("s_mov_b64 exec, s[56:57]")
        lab("L_ds%d" % DS[0])
        return
    a("s_memrealtime s[56:57]")
    a("s_lshl_b32 s58, s2, 4")
    a("s_add_u32 s58, s58, %s" % sW)
    a("s_lshl_b32 s58, s58, 6")
    a("s_add_u32 s58, s58, %d" % (STAMP + 4 * idx))
    a("s_waitcnt lgkmcnt(0)")
    a("v_mov_b32 v127, s56")
    a("v_mov_b32 v126, 0")
    a("s_mov_b64 s[56:57], exec")
    a("s_mov_b64 exec, 1")
    a("buffer_store_dword v127, v126, %s, s58 offen" % SWS)
    a("s_mov_b64 exec, s[56:57]")

def cnt_stamp(idx):
    if args.stamp != 1: return
    a("s_lshl_b32 s58, s2, 4")
    a("s_add_u32 s58, s58, %s" % sW)
    a("s_lshl_b32 s58, s58, 6")
    a("s_add_u32 s58, s58, %d" % (STAMP + 4 * idx))
    a("s_sub_u32 s56, %d, s59" % args.spin)
    a("v_mov_b32 v127, s56")
    a("v_mov_b32 v126, 0")
    a("s_mov_b64 exec, 1")
    a("buffer_store_dword v127, v126, %s, s58 offen" % SWS)
    a("s_mov_b64 exec, -1")

def prologue(nwg):
    a("s_cmp_ge_u32 s2, %d" % nwg)
    a("s_cbranch_scc1 L_end")
    a("s_load_dwordx16 s[60:75], s[0:1], 0")
    a("s_load_dwordx8 s[76:83], s[0:1], 64")
    a("s_load_dwordx4 s[84:87], s[0:1], 96")
    a("s_load_dwordx2 s[88:89], s[0:1], 112")
    a("v_and_b32 %s, 63, v0" % vLane)
    a("v_lshrrev_b32 v4, 6, v0")
    a("v_and_b32 %s, 15, v0" % vR)
    a("v_readfirstlane_b32 %s, v4" % sW)
    a("v_bfe_u32 %s, v0, 4, 2" % vG)
    a("s_and_b32 s46, s2, 7")
    a("s_lshr_b32 s47, s2, 3")
    a("s_lshr_b32 %s, s46, 2" % sP)
    a("s_and_b32 s46, s46, 3")
    a("s_lshl_b32 %s, s46, 2" % sH)
    a("s_lshr_b32 s48, s47, 3")
    a("s_add_u32 %s, %s, s48" % (sH, sH))
    a("s_and_b32 %s, s47, 7" % sCs)
    a("s_lshl_b32 %s, s46, 5" % sJ)
    a("s_add_u32 %s, %s, s47" % (sJ, sJ))
    a("s_mov_b32 %s, 0x05040100" % sSel0)
    a("s_mov_b32 %s, 0x07060302" % sSel1)
    sizes = [1792, 16777216, 3670016, 8388608, 8388608, 3670016]
    for k in range(6):
        a("s_mov_b32 s%d, %d" % (8 + 4 * k + 2, sizes[k]))
        a("s_mov_b32 s%d, 0x20000" % (8 + 4 * k + 3))
    a("s_mov_b32 s34, %d" % WS_USED); a("s_mov_b32 s35, 0x20000")
    a("s_mov_b32 s38, 3584"); a("s_mov_b32 s39, 0x20000")
    a("s_mov_b32 s42, 256"); a("s_mov_b32 s43, 0x20000")
    a("s_sub_u32 %s, %s, 8" % (sWb, sW))
    a("s_mov_b32 %s, 0xfffffffe" % sSent)
    a("v_mov_b32 %s, %d" % (vSY, SY))
    a("s_and_b32 s46, %s, 7" % sW)
    a("s_lshl_b32 s46, s46, 2")
    a("s_add_u32 s46, s46, %d" % SY)
    a("v_mov_b32 %s, s46" % vSYw)
    a("s_cmp_lg_u32 %s, 7" % sW)
    a("s_cbranch_scc1 L_noinit")
    a("v_lshl_add_u32 v4, %s, 2, %s" % (vLane, vSY))
    a("v_mov_b32 v5, 0")
    a("ds_write_b32 v4, v5")
    lab("L_noinit")
    a("s_cmp_eq_u32 %s, 0" % sP)
    a("s_waitcnt lgkmcnt(0)")
    for k in range(6):
        a("s_cselect_b64 s[%d:%d], s[%d:%d], s[%d:%d]" % (8 + 4 * k, 9 + 4 * k, 60 + 2 * k, 61 + 2 * k, 72 + 2 * k, 73 + 2 * k))
    a("s_mov_b64 s[32:33], s[88:89]")
    a("s_mov_b64 s[36:37], s[84:85]")
    a("s_mov_b64 s[40:41], s[86:87]")
    c("launch nonce = epoch word found in d_ws + 1 (only tells this launch's tags/flags from stale ones)")
    a("s_lshl_b32 s46, %s, 7" % sP)
    a("s_add_u32 s46, s46, %d" % EP)
    a("s_load_dwordx2 s[92:93], s[88:89], s46")

def nonce_ready():
    a("s_waitcnt lgkmcnt(0)")
    a("s_add_u32 %s, %s, 1" % (sN0, sN0))
    a("s_addc_u32 %s, %s, 0" % (sN1, sN1))

def perms(T, L, i):
    k, e = i >> 1, i & 1
    for jj in range(4):
        a("v_perm_b32 %s, %s, %s, %s" % (v(T + jj), v(L + 4 * (2 * jj + 1) + k), v(L + 4 * (2 * jj) + k), sSel1 if e else sSel0))

def block_mfma(L, B, D, first, T0=80, T1=84):
    Ts = [T0, T1]
    perms(Ts[0], L, 0)
    for i in range(8):
        if i < 7: perms(Ts[(i + 1) & 1], L, i + 1)
        else: a("s_nop 1")
        a("v_mfma_f32_16x16x32_bf16 %s, %s, %s, %s" % (v(D + 4 * i, 4), v(Ts[i & 1], 4), v(B, 4), "0" if first else v(D + 4 * i, 4)))

def transpose_inplace(L, t0, t1):
    def pr(jj, k): return (L + 8 * jj + k, L + 8 * jj + 4 + k)
    for jj in range(4):
        lo, hi = pr(jj, jj)
        a("v_perm_b32 %s, %s, %s, %s" % (v(t0), v(hi), v(lo), sSel0))
        a("v_perm_b32 %s, %s, %s, %s" % (v(hi), v(hi), v(lo), sSel1))
        a("v_mov_b32 %s, %s" % (v(lo), v(t0)))
    for jj in range(4):
        for k in range(jj + 1, 4):
            A0, A1 = pr(jj, k); B0, B1 = pr(k, jj)
            a("v_perm_b32 %s, %s, %s, %s" % (v(t0), v(A1), v(A0), sSel0))
            a("v_perm_b32 %s, %s, %s, %s" % (v(t1), v(A1), v(A0), sSel1))
            a("v_perm_b32 %s, %s, %s, %s" % (v(A0), v(B1), v(B0), sSel0))
            a("v_perm_b32 %s, %s, %s, %s" % (v(A1), v(B1), v(B0), sSel1))
            a("v_mov_b32 %s, %s" % (v(B0), v(t0)))
            a("v_mov_b32 %s, %s" % (v(B1), v(t1)))

def desent(regs):
    for r in regs: a("v_min_u32 %s, %s, %s" % (v(r), sSent, v(r)))

def poll_masked(name, loads, tmp=120, again=None, slp=None, adapt=0):
    n = len(loads)
    assert n <= 16
    M = lambda k: "s[%d:%d]" % (60 + 2 * k, 61 + 2 * k)
    for k in range(n): a("s_mov_b64 %s, -1" % M(k))
    a("s_mov_b32 s59, %d" % args.spin)
    lab("L_pm_%s" % name)
    for k, (emit, regs, kind) in enumerate(loads):
        a("s_mov_b64 exec, %s" % M(k))
        if n > 2: a("s_cbranch_execz L_pmsk_%s_%d" % (name, k))
        emit()
        if n > 2: lab("L_pmsk_%s_%d" % (name, k))
    exec_all()
    a("s_waitcnt vmcnt(0)")
    for k, (emit, regs, kind) in enumerate(loads):
        rs = list(regs)
        if kind == 's':
            if len(rs) == 1:
                a("v_cmp_eq_u32 %s, -1, %s" % (M(k), v(rs[0])))
            elif len(rs) == 2:
                a("v_max_u32 %s, %s, %s" % (v(tmp), v(rs[0]), v(rs[1])))
                a("v_cmp_eq_u32 %s, -1, %s" % (M(k), v(tmp)))
            else:
                a("v_max3_u32 %s, %s, %s, %s" % (v(tmp), v(rs[0]), v(rs[1]), v(rs[2])))
                a("v_max_u32 %s, %s, %s" % (v(tmp), v(tmp), v(rs[3])))
                a("v_cmp_eq_u32 %s, -1, %s" % (M(k), v(tmp)))
        else:
            a("v_xor_b32 %s, %s, %s" % (v(tmp), sN0, v(rs[-2])))
            a("v_xor_b32 %s, %s, %s" % (v(tmp + 1), sN1, v(rs[-1])))
            a("v_or_b32 %s, %s, %s" % (v(tmp), v(tmp), v(tmp + 1)))
            a("v_cmp_ne_u32 %s, 0, %s" % (M(k), v(tmp)))
    a("s_nop 1")
    if n == 1:
        a("s_cmp_eq_u64 %s, 0" % M(0))
    else:
        a("s_or_b64 s[56:57], %s, %s" % (M(0), M(1)))
        for k in range(2, n): a("s_or_b64 s[56:57], s[56:57], %s" % M(k))
        a("s_cmp_eq_u64 s[56:57], 0")
    a("s_cbranch_scc1 L_pmok_%s" % name)
    if slp is None: slp = args.sleep
    if adapt:
        a("s_bcnt1_i32_b64 s56, %s" % M(0))
        a("s_bcnt1_i32_b64 s57, %s" % M(1))
        a("s_add_u32 s56, s56, s57")
        a("s_cmp_le_u32 s56, %d" % adapt)
        a("s_cbranch_scc1 L_pmsh_%s" % name)
    if slp: a("s_sleep %d" % slp)
    if adapt:
        lab("L_pmsh_%s" % name)
        a("s_sleep 2")
    if again: again()
    a("s_sub_u32 s59, s59, 1")
    a("s_cmp_lg_u32 s59, 0")
    a("s_cbranch_scc1 L_pm_%s" % name)
    lab("L_pmok_%s" % name)

def lds_wait(name, word, target, areg=vSY, sreg="s58"):
    a("s_mov_b32 s59, 4000000")
    lab("L_lw_%s" % name)
    a("ds_read_b32 v121, %s offset:%d" % (areg, 4 * word))
    a("s_waitcnt lgkmcnt(0)")
    a("v_readfirstlane_b32 %s, v121" % sreg)
    a("s_cmp_ge_u32 %s, %d" % (sreg, target))
    a("s_cbranch_scc1 L_lwok_%s" % name)
    a("s_sleep 1")
    a("s_sub_u32 s59, s59, 1")
    a("s_cmp_lg_u32 s59, 0")
    a("s_cbranch_scc1 L_lw_%s" % name)
    lab("L_lwok_%s" % name)
def lds_add(word):
    a("v_mov_b32 v121, 1")
    a("s_mov_b64 exec, 1")
    a("ds_add_u32 %s, v121 offset:%d" % (vSY, 4 * word))
    exec_all()
def hold(bit, on):
    if not (args.hold >> bit) & 1: return
    a("v_mov_b32 v121, %d" % (1 if on else -1))
    a("s_mov_b64 exec, 1")
    a("ds_add_u32 %s, v121 offset:%d" % (vSY, 4 * W_HOLD))
    exec_all()
HC = [0]
def hold_check():
    if not args.hold: return
    HC[0] += 1
    n = HC[0]
    a("s_mov_b32 s59, 100000")
    lab("L_hc%d" % n)
    a("ds_read_b32 v121, %s offset:%d" % (vSY, 4 * W_HOLD))
    a("s_waitcnt lgkmcnt(0)")
    a("v_readfirstlane_b32 s58, v121")
    a("s_cmp_eq_u32 s58, 0")
    a("s_cbranch_scc1 L_hcok%d" % n)
    a("s_sleep 1")
    a("s_sub_u32 s59, s59, 1")
    a("s_cmp_lg_u32 s59, 0")
    a("s_cbranch_scc1 L_hc%d" % n)
    lab("L_hcok%d" % n)
def lds_set_w(word, val):
    a("v_mov_b32 v121, %d" % val)
    a("s_mov_b64 exec, 1")
    a("ds_write_b32 %s, v121 offset:%d" % (vSYw, 4 * word))
    exec_all()

def flag_store(off):
    a("s_lshl_b32 s48, %s, 7" % sP)
    a("s_add_u32 s48, s48, %s" % sJ)
    a("s_lshl_b32 s48, s48, 7")
    a("s_add_u32 s48, s48, %d" % FL)
    a("v_mov_b32 v122, 0")
    a("v_mov_b32 v120, %s" % sN0)
    a("v_mov_b32 v121, %s" % sN1)
    a("s_mov_b64 exec, 1")
    a("buffer_store_dwordx2 v[120:121], v122, %s, s48 offen offset:%d sc1" % (SWS, off))
    exec_all()
def flag_poll_all(name, off):
    a("s_lshl_b32 s48, %s, 14" % sP)
    a("s_add_u32 s48, s48, %d" % FL)
    a("s_add_u32 s49, s48, 8192")
    a("v_lshlrev_b32 v122, 7, %s" % vLane)
    poll_masked(name, [
        (lambda: a("buffer_load_dwordx2 v[116:117], v122, %s, s48 offen offset:%d sc1" % (SWS, off)), [116, 117], 't'),
        (lambda: a("buffer_load_dwordx2 v[118:119], v122, %s, s49 offen offset:%d sc1" % (SWS, off)), [118, 119], 't')])

def xlane_reduce_2to5(reg, tmp, op):
    for ror in (4, 8):
        a("s_nop 1")
        a("%s_dpp %s, %s, %s row_ror:%d row_mask:0xf bank_mask:0xf" % (op, v(reg), v(reg), v(reg), ror))
    for pop in ("v_permlane16_swap_b32", "v_permlane32_swap_b32"):
        a("v_mov_b32 %s, %s" % (v(tmp), v(reg)))
        a("s_nop 1")
        a("%s %s, %s" % (pop, v(reg), v(tmp)))
        a("s_nop 1")
        a("%s %s, %s, %s" % (op, v(reg), v(reg), v(tmp)))

def bulk_loader():
    D = args.depth
    c("w_q first (most urgent), waves 0..3: i = wb: blk = i>>1, dh = i&1 ; v4 = g*65536 + r*16 ; s63")
    a("s_lshl_b32 s51, %s, 14" % sWb)
    a("s_lshl_b32 s65, %s, 15" % sWb)
    a("v_lshlrev_b32 v4, 16, %s" % vG)
    a("v_lshl_add_u32 v4, %s, 4, v4" % vR)
    a("s_lshl_b32 s63, %s, 19" % sCs)
    a("s_bfe_u32 s49, %s, 0x10001" % sWb)
    a("s_lshl_b32 s49, s49, 18")
    a("s_add_u32 s63, s63, s49")
    a("s_lshl_b32 s49, %s, 9" % sH)
    a("s_add_u32 s63, s63, s49")
    a("s_and_b32 s49, %s, 1" % sWb)
    a("s_lshl_b32 s49, s49, 8")
    a("s_add_u32 s63, s63, s49")
    a("s_cmp_ge_u32 %s, 4" % sWb)
    a("s_cbranch_scc1 L_nowq")
    for j in range(8):
        a("s_add_u32 s49, s65, %d" % (16384 * (j >> 2) + 4096 + 1024 * (j & 3)))
        a("s_mov_b32 m0, s49")
        a("s_nop 0")
        a("buffer_load_dwordx4 v4, %s, s63 offen%s lds" % (SWQ, NT))
        a("s_add_u32 s63, s63, 8192")
    lab("L_nowq")
    def rest_addr():
        for tq in range(4):
            a("v_add_u32 v120, %d, %s" % (4 * tq, vG))
            a("v_and_b32 v121, 7, v120")
            a("v_lshlrev_b32 v121, 1, v121")
            a("v_lshrrev_b32 v126, 3, v120")
            a("v_or_b32 v121, v121, v126")
            a("v_xor_b32 v121, v121, %s" % vR)
            a("v_lshlrev_b32 v121, 4, v121")
            a("v_lshl_add_u32 %s, v120, 11, v121" % v(116 + tq))
        a("s_lshl_b32 s62, %s, 17" % sJ)
        a("s_lshl_b32 s49, %s, 8" % sWb)
        a("s_add_u32 s62, s62, s49")
        a("v_lshlrev_b32 v5, 13, %s" % vR)
        a("v_lshl_add_u32 v5, %s, 4, v5" % vG)
        a("s_lshl_b32 s64, %s, 20" % sCs)
        a("s_lshl_b32 s49, %s, 17" % sWb)
        a("s_add_u32 s64, s64, s49")
        a("s_lshl_b32 s49, %s, 9" % sH)
        a("s_add_u32 s64, s64, s49")
        a("v_lshlrev_b32 v6, 15, %s" % vG)
        a("v_lshl_add_u32 v6, %s, 4, v6" % vR)
        a("s_lshl_b32 s60, %s, 20" % sCs)
        a("s_lshr_b32 s49, %s, 1" % sWb)
        a("s_lshl_b32 s49, s49, 18")
        a("s_add_u32 s60, s60, s49")
        a("s_lshl_b32 s49, %s, 9" % sH)
        a("s_add_u32 s60, s60, s49")
        a("s_and_b32 s49, %s, 1" % sWb)
        a("s_lshl_b32 s49, s49, 8")
        a("s_add_u32 s60, s60, s49")
        a("v_mul_u32_u24 v7, 1792, %s" % vG)
        a("v_lshl_add_u32 v7, %s, 4, v7" % vR)
        a("s_lshl_b32 s61, %s, 8" % sH)
        a("s_lshl_b32 s49, %s, 5" % sCs)
        a("s_add_u32 s61, s61, s49")
        a("s_mul_i32 s61, s61, 896")
        a("s_and_b32 s53, %s, 3" % sWb)
        a("s_lshl_b32 s49, s53, 8")
        a("s_add_u32 s61, s61, s49")
        a("v_mov_b32 v9, 0x7fff0000")
        a("s_cmp_eq_u32 %s, 7" % sWb)
        a("s_cbranch_scc0 L_nomask")
        a("v_cmp_lt_u32 vcc, 7, %s" % vR)
        a("s_nop 1")
        a("v_cndmask_b32 v7, v7, v9, vcc")
        lab("L_nomask")
        a("s_barrier")

    items = []
    len_before = 0
    def dma(srd, vaddr, soff, ldsoff, post=None, inst_off=0):
        def f():
            a("s_add_u32 s49, s51, %d" % (ldsoff - inst_off))
            a("s_mov_b32 m0, s49")
            a("s_nop 0")
            a("buffer_load_dwordx4 %s, %s, %s offen%s%s lds" % (vaddr, srd, soff, (" offset:%d" % inst_off) if inst_off else "", NTKV if srd == SKV else NT))
            if post: a(post)
        return f
    rest_addr()
    c("waves 0..3: w_q landed -> progress 1")
    a("s_cmp_ge_u32 %s, 4" % sWb)
    a("s_cbranch_scc1 L_nowq2")
    a("s_waitcnt vmcnt(0)")
    lds_set_w(W_PROG, 1)
    lab("L_nowq2")
    for s_ in range(8):
        items.append([dma(SUK, "v5", "s64", 8192 + 1024 * s_, None, 64 * s_), (lambda: lds_set_w(W_PROG, 2)) if s_ == 7 else None, None])
    def clr_items():
        for up in range(4):
            def f():
                a("buffer_store_dwordx4 v[112:115], v10, %s, s65 offen sc1" % SWS)
                a("s_add_u32 s65, s65, 8192")
            items.append([f, None, None])
        items.append([lambda: a("buffer_store_dwordx4 v[112:115], v11, %s, s66 offen sc1" % SWS), None, None])
        items.append([lambda: a("buffer_store_dwordx2 v[112:113], v12, %s, s67 offen sc1" % SWS), lambda: lds_add(W_CLR), None])
    def weight_items():
        nonlocal len_before
        len_before = len(items)
        for j in range(8):
            def f(j=j):
                a("buffer_load_dwordx4 %s, v6, %s, s60 offen%s" % (v(16 + 4 * j, 4), SUV, NT))
                a("s_add_u32 s60, s60, %d" % (8192 if j != 3 else 13 * 8192))
            bf = None
            if j == 0 and args.wwait:
                def bf():
                    a("s_waitcnt vmcnt(0)")
                    complete_upto(len_before - 1)
                    if args.wwait == 1: lds_wait("wwait", W_PCD, 8)
                    else: lds_wait("wwait", W_SC, 8)
            items.append([f, (lambda: transpose_inplace(16, 112, 113)) if j == 7 else None, bf])
        for j in range(8):
            def f(j=j):
                c("w_o only for waves 4..7")
                a("s_cmp_lt_u32 %s, 4" % sWb)
                a("s_cbranch_scc1 L_nowo%d" % j)
                a("buffer_load_dwordx4 %s, v7, %s, s61 offen%s" % (v(48 + 4 * j, 4), SWO, NT))
                lab("L_nowo%d" % j)
                if j < 7:
                    a("s_add_u32 s61, s61, %d" % (8 * 896 if j != 3 else (896 - 24 * 896) & 0xffffffff))
            items.append([f, (lambda: transpose_inplace(48, 112, 113)) if j == 7 else None, None, "opt"])
    for t in range(16):
        if t == args.wpos: weight_items()
        post = "s_add_u32 s62, s62, 32768" if (t & 3 == 3 and t < 15) else None
        def done(t=t):
            lds_set_w(W_PROG, 3 + t // 4)
            if t == 15: stamp(1)
        before = None
        if t == 4: before = lambda: lds_wait("s1c", W_S1C, 4)
        if t == 8: before = lambda: lds_wait("s2c", W_S2C, 1, vSYw)
        items.append([dma(SKV, v(116 + (t & 3)), "s62", 1024 * t, post), done if t & 3 == 3 else None, before])
    if args.wpos >= 16: weight_items()
    nkv = 1 << 30
    n = len(items)
    done = -1
    def complete_upto(k):
        nonlocal done
        for q in range(done + 1, k + 1):
            if items[q][1]: items[q][1]()
        done = max(done, k)
    def youngest_cover(k, N):
        cnt = 0; q = k
        while q >= 0 and cnt < N:
            if len(items[q]) < 4: cnt += 1
            q -= 1
        return q
    for k in range(n):
        if items[k][2]: items[k][2]()
        hold_check()
        items[k][0]()
        Dk = args.dwo if (args.dwo and len(items[k]) == 4) else D
        if args.dww and len_before <= k < len_before + 8: Dk = args.dww
        if k >= D - 1:
            a("s_waitcnt vmcnt(%d)" % (Dk - 1))
            complete_upto(youngest_cover(k, Dk - 1))
    for N in range(max(D, args.dwo, args.dww) - 2, -1, -1):
        a("s_waitcnt vmcnt(%d)" % N)
        complete_upto(youngest_cover(n - 1, N))

def front():
    ROLE[0] = "f"
    c("================ FRONT waves 0..7")
    if args.prio: a("s_setprio %d" % args.prio)
    a("s_barrier")
    nonce_ready()
    if args.loadonly:
        lds_add(W_S1C)
        lds_set_w(W_S2C, 1)
        a("s_endpgm")
    a("s_cmp_ge_u32 %s, 4" % sW)
    a("s_cbranch_scc1 L_nos1")
    c("S1 (waves 0..3): rows 64cs+32blk.., cols 128dh..")
    a("v_and_b32 v5, 1, %s" % vR)
    a("v_mul_u32_u24 v5, 896, v5")
    a("v_lshl_add_u32 v5, %s, 4, v5" % vG)
    a("s_lshl_b32 s46, %s, 1" % sCs)
    a("s_lshr_b32 s47, %s, 1" % sW)
    a("s_add_u32 s46, s46, s47")
    a("s_lshl_b32 s48, s46, 6")
    a("buffer_load_dwordx4 v[8:11], v5, %s, s48 offen" % SX)
    a("s_lshl_b32 s46, %s, 15" % sW)
    a("v_lshlrev_b32 v6, 4, %s" % vLane)
    a("v_add_u32 v6, s46, v6")
    a("s_lshl_b32 s48, %s, 10" % sW)
    a("s_add_u32 s48, s48, %d" % P1)
    a("v_lshlrev_b32 v7, 9, %s" % vR)
    a("v_lshl_add_u32 v7, %s, 7, v7" % vG)
    a("v_add_u32 v7, s48, v7")
    lds_wait("wq0", W_PROG, 1, vSYw)
    for j in range(4):
        a("ds_read_b128 %s, v6 offset:%d" % (v(48 + 4 * j, 4), 4096 + 1024 * j))
    for j in range(4, 8):
        a("ds_read_b128 %s, v6 offset:%d" % (v(48 + 4 * j, 4), 16384 + 4096 + 1024 * (j & 3)))
    a("s_waitcnt vmcnt(0) lgkmcnt(0)")
    stamp(14)
    lds_add(W_S1C)
    block_mfma(48, 8, 88, True)
    a("s_nop 7")
    exec_n2()
    for i in range(8):
        a("ds_write_b128 v7, %s offset:%d" % (v(88 + 4 * i, 4), 16 * i))
    exec_all()
    a("s_waitcnt lgkmcnt(0)")
    lds_add(W_S1P)
    c("waves 0,1: batch b = w: sum the two row blocks, publish 2 x 1KB of tagged granules")
    a("s_cmp_ge_u32 %s, 2" % sW)
    a("s_cbranch_scc1 L_s1done")
    a("v_bfe_u32 v6, %s, 5, 1" % vLane)
    a("v_lshlrev_b32 v6, 10, v6")
    a("v_and_b32 v7, 31, %s" % vLane)
    a("v_lshl_add_u32 v6, v7, 4, v6")
    a("s_lshl_b32 s46, %s, 9" % sW)
    a("s_add_u32 s46, s46, %d" % P1)
    a("v_add_u32 v6, s46, v6")
    a("v_lshlrev_b32 v7, 4, %s" % vLane)
    a("s_lshl_b32 s48, %s, 4" % sP)
    a("s_add_u32 s48, s48, %s" % sH)
    a("s_lshl_b32 s48, s48, 3")
    a("s_add_u32 s48, s48, %s" % sCs)
    a("s_lshl_b32 s48, s48, 12")
    a("s_lshl_b32 s46, %s, 11" % sW)
    a("s_add_u32 s48, s48, s46")
    a("s_add_u32 s48, s48, %d" % Q1)
    a("v_mov_b32 v98, %s" % sN0); a("v_mov_b32 v99, %s" % sN1)
    a("v_mov_b32 v102, %s" % sN0); a("v_mov_b32 v103, %s" % sN1)
    lds_wait("s1p", W_S1P, 4)
    a("ds_read_b128 v[88:91], v6")
    a("ds_read_b128 v[92:95], v6 offset:2048")
    a("s_waitcnt lgkmcnt(0)")
    a("v_add_f32 v96, v88, v92"); a("v_add_f32 v97, v89, v93")
    a("v_add_f32 v100, v90, v94"); a("v_add_f32 v101, v91, v95")
    if args.h1local:
        a("s_add_u32 s46, s48, %d" % (Q1L - Q1))
        a("buffer_store_dwordx4 v[96:99], v7, %s, s46 offen" % SWS)
        a("buffer_store_dwordx4 v[100:103], v7, %s, s46 offen offset:1024" % SWS)
    a("buffer_store_dwordx4 v[96:99], v7, %s, s48 offen sc1" % SWS)
    a("buffer_store_dwordx4 v[100:103], v7, %s, s48 offen offset:1024 sc1" % SWS)
    stamp(15)
    a("s_branch L_s1done")
    lab("L_nos1")
    if args.touch:
        c("pre-touch this workgroup's share of the hand-off regions (brings the lines into the memory-side cache early)")
        a("v_subrev_u32 v5, 256, v0")
        a("v_lshlrev_b32 v6, 4, v5")
        a("s_lshl_b32 s46, s2, 12")
        a("s_add_u32 s47, s46, %d" % Q1)
        a("buffer_load_dwordx4 v[88:91], v6, %s, s47 offen" % SWS)
        a("s_add_u32 s47, s46, %d" % C4)
        a("buffer_load_dwordx4 v[88:91], v6, %s, s47 offen" % SWS)
        a("s_mul_i32 s47, s2, 7168")
        a("s_add_u32 s47, s47, %d" % PO)
        a("buffer_load_dwordx4 v[88:91], v6, %s, s47 offen" % SWS)
        a("buffer_load_dwordx4 v[88:91], v6, %s, s47 offen offset:3072" % SWS)
        a("v_lshlrev_b32 v7, 2, v5")
        a("s_lshl_b32 s46, s2, 10")
        a("buffer_load_dword v88, v7, %s, s46 offen offset:%d" % (SWS, QA))
        a("s_lshl_b32 s46, s2, 8")
        a("s_add_u32 s46, s46, %d" % ST)
        a("v_and_b32 v7, 0xfc, v7")
        a("buffer_load_dword v88, v7, %s, s46 offen" % SWS)
        if args.touch >= 2:
            a("s_lshl_b32 s46, %s, 22" % sP)
            a("s_lshl_b32 s47, %s, 15" % sJ)
            a("s_add_u32 s46, s46, s47")
            a("s_add_u32 s46, s46, %d" % PC)
            for k in range(8):
                a("buffer_load_dwordx4 v[88:91], v6, %s, s46 offen" % SWS)
                a("s_add_u32 s46, s46, 4096")
    c("H1 gather by waves 4..7: thread t = tid-256 -> granule t of each of 7 partials")
    a("v_subrev_u32 v5, 256, v0")
    a("v_lshlrev_b32 v6, 4, v5")
    a("s_lshl_b32 s48, %s, 4" % sP)
    a("s_add_u32 s48, s48, %s" % sH)
    a("s_lshl_b32 s48, s48, 15")
    a("s_add_u32 s48, s48, %d" % Q1)
    for k in range(1, 7): a("s_add_u32 s%d, s48, %d" % ([0, 49, 51, 52, 53, 54, 55][k], 4096 * k))
    a("v_bfe_u32 v4, v5, 7, 1")
    a("v_lshlrev_b32 v4, 9, v4")
    a("v_bfe_u32 v7, v5, 3, 3")
    a("v_lshl_add_u32 v4, v7, 6, v4")
    a("v_bfe_u32 v7, v5, 6, 1")
    a("v_lshl_add_u32 v4, v7, 5, v4")
    a("v_and_b32 v7, 7, v5")
    a("v_lshl_add_u32 v4, v7, 1, v4")
    a("v_add_u32 v4, %d, v4" % QL)
    lds_wait("s1own", W_S1P, 4)
    stamp(11)
    if args.dly1: a("s_sleep %d" % args.dly1)
    if args.h1local:
        a("v_add_u32 v8, %d, v6" % (Q1L - Q1))
        a("v_mov_b32 v9, v6")
        a("v_mov_b32 v6, v8")
    a("s_mov_b32 s47, 0")
    a("s_lshl_b32 s46, %s, 14" % sW)
    a("v_lshlrev_b32 v10, 4, %s" % vLane)
    a("v_add_u32 v10, s46, v10")
    def h1_next():
        c("between attempts: pull w_uk out of the LDS staging as soon as it has landed")
        a("s_cmp_lg_u32 s47, 0")
        a("s_cbranch_scc1 L_h1_ukdone")
        a("ds_read_b32 v121, %s offset:%d" % (vSYw, 4 * W_PROG))
        a("s_waitcnt lgkmcnt(0)")
        a("v_readfirstlane_b32 s46, v121")
        a("s_cmp_lt_u32 s46, 2")
        a("s_cbranch_scc1 L_h1_ukdone")
        for s_ in range(8):
            a("ds_read_b128 %s, v10 offset:%d" % (v(16 + 4 * s_, 4), 8192 + 1024 * s_))
        a("s_waitcnt lgkmcnt(0)")
        lds_set_w(W_S2C, 1)
        a("s_mov_b32 s47, 1")
        lab("L_h1_ukdone")
        if args.h1local:
            c("every 4th attempt reads the write-through copy")
            a("s_and_b32 s46, s59, %d" % args.slowmask)
            a("s_cmp_eq_u32 s46, 1")
            a("s_cselect_b64 vcc, -1, 0")
            a("s_nop 1")
            a("v_cndmask_b32 v6, v8, v9, vcc")
    hold(0, True)
    poll_masked("h1", [(lambda k=k: a("buffer_load_dwordx4 %s, v6, %s, s%d offen sc1" % (v(88 + 4 * k, 4), SWS, [48, 49, 51, 52, 53, 54, 55][k])), list(range(88 + 4 * k, 92 + 4 * k)), 't') for k in range(7)], again=h1_next, slp=args.slp1)
    hold(0, False)
    cnt_stamp(12)
    stamp(2)
    for e in range(2):
        a("v_add_f32 %s, %s, %s" % (v(88 + e), v(88 + e), v(92 + e)))
        a("v_add_f32 %s, %s, %s" % (v(96 + e), v(96 + e), v(100 + e)))
        a("v_add_f32 %s, %s, %s" % (v(104 + e), v(104 + e), v(108 + e)))
        a("v_add_f32 %s, %s, %s" % (v(88 + e), v(88 + e), v(96 + e)))
        a("v_add_f32 %s, %s, %s" % (v(104 + e), v(104 + e), v(112 + e)))
        a("v_add_f32 %s, %s, %s" % (v(88 + e), v(88 + e), v(104 + e)))
    a("v_cvt_pk_bf16_f32 v88, v88, v89")
    a("ds_write_b16 v4, v88")
    a("ds_write_b16_d16_hi v4, v88 offset:16")
    a("s_waitcnt lgkmcnt(0)")
    lds_add(W_Q)
    a("s_branch L_s1done2")
    lab("L_s1done")
    a("s_mov_b32 s47, 0")
    lab("L_s1done2")
    stamp(1)
    c("w_uk operand from LDS staging")
    a("s_lshl_b32 s46, %s, 14" % sW)
    a("v_lshlrev_b32 v7, 4, %s" % vLane)
    a("v_add_u32 v7, s46, v7")
    a("v_and_b32 v6, 1, %s" % vR)
    a("v_lshlrev_b32 v6, 9, v6")
    a("v_lshl_add_u32 v6, %s, 4, v6" % vG)
    a("v_add_u32 v6, %d, v6" % QL)
    a("s_cmp_lg_u32 s47, 0")
    a("s_cbranch_scc1 L_ukdone")
    lds_wait("uk", W_PROG, 2, vSYw)
    for s_ in range(8):
        a("ds_read_b128 %s, v7 offset:%d" % (v(16 + 4 * s_, 4), 8192 + 1024 * s_))
    a("s_waitcnt lgkmcnt(0)")
    lds_set_w(W_S2C, 1)
    lab("L_ukdone")
    lds_wait("q", W_Q, 4)
    stamp(3)
    c("S2")
    for s in range(8):
        a("ds_read_b128 %s, v6 offset:%d" % (v(48 + 4 * s, 4), 64 * s))
    a("v_lshlrev_b32 v6, 16, %s" % vR)
    a("v_lshl_add_u32 v6, %s, 10, v6" % vG)
    a("s_lshl_b32 s48, %s, 17" % sP)
    a("s_lshl_b32 s49, %s, 13" % sCs)
    a("s_add_u32 s48, s48, s49")
    a("s_lshl_b32 s49, %s, 6" % sH)
    a("s_add_u32 s48, s48, s49")
    a("s_and_b32 s49, %s, 1" % sW)
    a("s_lshl_b32 s49, s49, 12")
    a("s_add_u32 s48, s48, s49")
    a("s_lshr_b32 s49, %s, 1" % sW)
    a("s_lshl_b32 s49, s49, 4")
    a("s_add_u32 s48, s48, s49")
    a("s_mov_b32 s49, 0x3db8aa3b")
    a("s_waitcnt lgkmcnt(0)")
    for s in range(8):
        a("v_mfma_f32_16x16x32_bf16 v[88:91], %s, %s, %s" % (v(16 + 4 * s, 4), v(48 + 4 * s, 4), "0" if s == 0 else "v[88:91]"))
    a("s_nop 7")
    for k in range(4):
        a("v_mul_f32 %s, s49, %s" % (v(88 + k), v(88 + k)))
    a("v_cvt_pk_bf16_f32 v88, v88, v89")
    a("v_cvt_pk_bf16_f32 v89, v90, v91")
    a("v_mov_b32 v90, %s" % sN0)
    a("v_mov_b32 v91, %s" % sN1)
    exec_n2()
    a("buffer_store_dwordx4 v[88:91], v6, %s, s48 offen sc1" % SWS)
    exec_all()
    stamp(4)
    c("================ S3 address setup")
    a("s_lshl_b32 s51, %s, 14" % sW)
    a("v_and_b32 v8, 7, %s" % vR)
    a("v_lshlrev_b32 v8, 1, v8")
    a("v_lshrrev_b32 v9, 3, %s" % vR)
    a("v_or_b32 v8, v8, v9")
    a("v_lshlrev_b32 v9, 2, %s" % vG)
    a("v_xor_b32 v8, v8, v9")
    a("v_lshlrev_b32 v9, 8, %s" % vR)
    a("v_add_u32 v9, s51, v9")
    for s in range(4):
        a("v_xor_b32 v10, %d, v8" % s)
        a("v_lshl_add_u32 %s, v10, 4, v9" % v(4 + s))
    a("v_lshrrev_b32 v112, 2, %s" % vR)
    a("v_lshl_add_u32 v112, %s, 2, v112" % vG)
    a("v_and_b32 v113, 7, v112")
    a("v_lshlrev_b32 v113, 1, v113")
    a("v_lshrrev_b32 v114, 3, v112")
    a("v_or_b32 v113, v113, v114")
    a("v_bfe_u32 v114, %s, 1, 1" % vR)
    a("v_xor_b32 v113, v113, v114")
    a("v_lshlrev_b32 v113, 4, v113")
    a("v_and_b32 v114, 1, %s" % vR)
    a("v_lshl_add_u32 v113, v114, 3, v113")
    a("v_lshl_add_u32 v113, v112, 8, v113")
    a("v_add_u32 v113, s51, v113")
    for t in range(8):
        a("v_xor_b32 %s, %d, v113" % (v(8 + t), 32 * t))
    a("v_lshlrev_b32 v113, 4, %s" % vLane)
    a("v_add_u32 v114, 65536, v113")
    a("v_add_u32 v112, s51, v113")
    c("H2 gather: 8 x 1KB tagged granules; lane (h,g) gets c = 32g + 4*s2..")
    a("s_lshr_b32 s48, %s, 6" % sJ)
    a("s_lshl_b32 s49, %s, 1" % sP)
    a("s_add_u32 s48, s48, s49")
    a("s_lshl_b32 s48, s48, 3")
    a("s_add_u32 s48, s48, %s" % sW)
    a("s_lshl_b32 s48, s48, 13")
    a("s_add_u32 s49, s48, 4096")
    a("v_lshlrev_b32 v124, 6, %s" % vR)
    a("v_lshl_add_u32 v124, %s, 4, v124" % vG)
    if args.dly2: a("s_sleep %d" % args.dly2)
    if args.h2prog: lds_wait("h2p", W_PROG, args.h2prog, vSYw)
    hold(1, True)
    poll_masked("h2", [(lambda k=k: a("buffer_load_dwordx4 %s, v124, %s, %s offen offset:%d sc1" % (v(80 + 4 * k, 4), SWS, "s48" if k < 4 else "s49", QA + 1024 * (k & 3))), list(range(80 + 4 * k, 84 + 4 * k)), 't') for k in range(8)], slp=args.sleep2)
    hold(1, False)
    cnt_stamp(13)
    for k in range(8):
        a("v_mov_b32 %s, %s" % (v(16 + 2 * k), v(80 + 4 * k)))
        a("v_mov_b32 %s, %s" % (v(17 + 2 * k), v(81 + 4 * k)))
    lds_add(W_GO2)
    stamp(5)
    for T in range(4):
        lds_wait("tile%d" % T, W_PROG, T + 3, vSYw)
        for s_ in range(4):
            a("ds_read_b128 %s, %s offset:%d" % (v(32 + 4 * s_, 4), v(4 + s_), 4096 * T))
        if T == 1:
            c("V^T operands for u=0 (tiles 0,1) -> v[80:111]")
            for t in range(4):
                for jh in range(2):
                    a("ds_read_b64_tr_b16 %s, %s offset:%d" % (v(80 + 4 * t + 2 * jh, 2), v(8 + t), 4096 * jh))
            a("s_waitcnt lgkmcnt(8)")
        elif T == 2:
            for t in range(4, 8):
                for jh in range(2):
                    a("ds_read_b64_tr_b16 %s, %s offset:%d" % (v(80 + 4 * t + 2 * jh, 2), v(8 + t), 4096 * jh))
            a("s_waitcnt lgkmcnt(8)")
        else:
            a("s_waitcnt lgkmcnt(0)")
        for s_ in range(4):
            a("v_mfma_f32_16x16x32_bf16 %s, %s, %s, %s" % (v(64 + 4 * T, 4), v(32 + 4 * s_, 4), v(16 + 4 * s_, 4), "0" if s_ == 0 else v(64 + 4 * T, 4)))
    c("partial scores of all 4 tiles -> own slab's tile-0 region (fully consumed)")
    a("s_nop 7")
    for T in range(4):
        a("ds_write_b128 v112, %s offset:%d" % (v(64 + 4 * T, 4), 1024 * T))
    a("s_waitcnt lgkmcnt(0)")
    lds_add(W_SC)
    lds_wait("sc", W_SC, 8)
    stamp(6)
    c("reduce-scatter: wave w sums (tile w>>1, reg pair w&1) over the 8 partials; then all-gather")
    a("s_lshr_b32 s46, %s, 1" % sW)
    a("s_lshl_b32 s46, s46, 10")
    a("s_and_b32 s47, %s, 1" % sW)
    a("s_lshl_b32 s47, s47, 3")
    a("s_add_u32 s46, s46, s47")
    a("v_add_u32 v115, s46, v113")
    a("v_add_u32 v116, s46, v114")
    for k in range(8):
        a("ds_read_b64 %s, %s offset:%d" % (v(16 + 2 * k, 2), "v115" if k < 4 else "v116", 16384 * (k & 3)))
    a("v_add_u32 v117, %d, v115" % X0)
    a("v_add_u32 v118, %d, v113" % X0)
    a("s_waitcnt lgkmcnt(0)")
    for e in range(2):
        a("v_add_f32 %s, %s, %s" % (v(16 + e), v(16 + e), v(18 + e)))
        a("v_add_f32 %s, %s, %s" % (v(20 + e), v(20 + e), v(22 + e)))
        a("v_add_f32 %s, %s, %s" % (v(24 + e), v(24 + e), v(26 + e)))
        a("v_add_f32 %s, %s, %s" % (v(28 + e), v(28 + e), v(30 + e)))
        a("v_add_f32 %s, %s, %s" % (v(16 + e), v(16 + e), v(20 + e)))
        a("v_add_f32 %s, %s, %s" % (v(24 + e), v(24 + e), v(28 + e)))
        a("v_add_f32 %s, %s, %s" % (v(16 + e), v(16 + e), v(24 + e)))
    a("ds_write_b64 v117, v[16:17]")
    a("s_waitcnt lgkmcnt(0)")
    lds_add(W_SC + 1)
    lds_wait("sc2", W_SC + 1, 8)
    for T in range(4):
        a("ds_read_b128 %s, v118 offset:%d" % (v(64 + 4 * T, 4), 1024 * T))
    a("s_waitcnt lgkmcnt(0)")
    a("v_max3_f32 v48, v64, v65, v66")
    for k in range(67, 79, 2):
        a("v_max3_f32 v48, v48, %s, %s" % (v(k), v(k + 1)))
    a("v_max_f32 v48, v48, v79")
    for op in ("v_permlane32_swap_b32", "v_permlane16_swap_b32"):
        a("v_mov_b32 v49, v48")
        a("s_nop 1")
        a("%s v48, v49" % op)
        a("s_nop 1")
        a("v_max_f32 v48, v48, v49")
    for k in range(16):
        a("v_sub_f32 %s, %s, v48" % (v(64 + k), v(64 + k)))
    for k in range(16):
        a("v_exp_f32 %s, %s" % (v(64 + k), v(64 + k)))
    a("s_nop 0")
    for u in range(2):
        for q in range(4):
            a("v_cvt_pk_bf16_f32 %s, %s, %s" % (v(52 + 4 * u + q), v(64 + 8 * u + 2 * q), v(64 + 8 * u + 2 * q + 1)))
    a("s_nop 1")
    for t in range(8):
        a("v_mfma_f32_16x16x32_bf16 %s, %s, v[52:55], 0" % (v(16 + 4 * t, 4), v(80 + 4 * t, 4)))
        for jh in range(2):
            a("ds_read_b64_tr_b16 %s, %s offset:%d" % (v(80 + 4 * t + 2 * jh, 2), v(8 + t), 8192 + 4096 * jh))
    c("row sum while the u=1 operands arrive")
    a("v_add_f32 v49, v64, v65")
    for k in range(66, 80):
        a("v_add_f32 v49, v49, %s" % v(k))
    for op in ("v_permlane32_swap_b32", "v_permlane16_swap_b32"):
        a("v_mov_b32 v50, v49")
        a("s_nop 1")
        a("%s v49, v50" % op)
        a("s_nop 1")
        a("v_add_f32 v49, v49, v50")
    if args.pcl == 0:
        a("v_lshlrev_b32 v6, 18, %s" % vR)
        a("v_lshl_add_u32 v6, %s, 4, v6" % vG)
        a("s_lshl_b32 s48, %s, 22" % sP)
        a("s_lshl_b32 s49, %s, 15" % sW)
        a("s_add_u32 s48, s48, s49")
        a("s_lshl_b32 s49, %s, 6" % sJ)
        a("s_add_u32 s48, s48, s49")
        a("s_add_u32 s48, s48, %d" % PC)
    else:
        a("v_lshlrev_b32 v6, 6, %s" % vR)
        a("v_lshl_add_u32 v6, %s, 4, v6" % vG)
        a("s_lshl_b32 s48, %s, 22" % sP)
        a("s_lshl_b32 s49, %s, 15" % sJ)
        a("s_add_u32 s48, s48, s49")
        a("s_lshl_b32 s49, %s, 12" % sW)
        a("s_add_u32 s48, s48, s49")
        a("s_add_u32 s48, s48, %d" % PC)
    a("s_waitcnt lgkmcnt(0)")
    for t in range(8):
        a("v_mfma_f32_16x16x32_bf16 %s, %s, v[56:59], %s" % (v(16 + 4 * t, 4), v(80 + 4 * t, 4), v(16 + 4 * t, 4)))
    hold(2, True)
    a("s_nop 3")
    for up in range(4):
        for q in range(4):
            a("v_cvt_pk_bf16_f32 %s, %s, %s" % (v(80 + 4 * up + q), v(16 + 8 * up + 2 * q), v(16 + 8 * up + 2 * q + 1)))
        a("buffer_store_dwordx4 %s, v6, %s, s48 offen sc1" % (v(80 + 4 * up, 4), SWS))
        a("s_add_u32 s48, s48, %d" % (8192 if args.pcl == 0 else 1024))
    c("payload addresses for the H3 gather: wave w' = (u' = w'>>1, b = w'&1)")
    a("s_lshl_b32 s52, %s, 22" % sP)
    a("s_and_b32 s49, %s, 1" % sW)
    a("s_lshl_b32 s49, s49, 21")
    a("s_add_u32 s52, s52, s49")
    a("s_lshl_b32 s49, %s, 2" % sCs)
    a("s_lshr_b32 s53, %s, 1" % sW)
    a("s_add_u32 s49, s49, s53")
    a("s_lshl_b32 s49, s49, 10")
    a("s_add_u32 s52, s52, s49")
    a("s_lshl_b32 s49, %s, 6" % sH)
    a("s_add_u32 s52, s52, s49")
    a("s_add_u32 s52, s52, %d" % PC)
    a("v_lshrrev_b32 v5, 2, %s" % vLane)
    a("v_lshlrev_b32 v7, 2, v5")
    a("v_lshlrev_b32 v5, 15, v5")
    a("v_and_b32 v4, 3, %s" % vLane)
    a("v_lshl_add_u32 v5, v4, 4, v5")
    a("s_and_b32 s49, %s, 1" % sW)
    a("s_lshl_b32 s49, s49, 8")
    a("s_add_u32 s49, s49, %d" % SCL)
    a("v_add_u32 v7, s49, v7")
    a("v_lshlrev_b32 v6, 4, %s" % vLane)
    a("s_waitcnt vmcnt(0)")
    hold(2, False)
    lds_add(W_PCD)
    stamp(7)
    a("s_cmp_lg_u32 %s, 0" % sW)
    a("s_cbranch_scc1 L_s3_nostat")
    c("wave 0: all partial-ctx stores drained -> stats granules {m,l,nonce} double as the H3 flags")
    a("v_lshlrev_b32 v8, 11, %s" % vR)
    a("s_lshl_b32 s48, %s, 15" % sP)
    a("s_lshl_b32 s49, %s, 4" % sJ)
    a("s_add_u32 s48, s48, s49")
    a("s_add_u32 s48, s48, %d" % ST)
    a("v_mov_b32 v50, %s" % sN0)
    a("v_mov_b32 v51, %s" % sN1)
    lds_wait("pcd", W_PCD, 8)
    a("s_mov_b64 exec, 0xffff")
    a("buffer_store_dwordx4 v[48:51], v8, %s, s48 offen sc1" % SWS)
    exec_all()
    lab("L_s3_nostat")
    a("s_cmp_lg_u32 %s, 7" % sW)
    a("s_cbranch_scc1 L_nopoll3")
    c("wave 7: poll the 128 stats granules of head h; lane l has producers l (b=0) and 64+l (b=1)")
    a("s_lshl_b32 s48, %s, 4" % sP)
    a("s_add_u32 s48, s48, %s" % sH)
    a("s_lshl_b32 s48, s48, 11")
    a("s_add_u32 s48, s48, %d" % ST)
    poll_masked("h3s", [(lambda k=k: a("buffer_load_dwordx4 %s, v6, %s, s48 offen offset:%d sc1" % (v(64 + 4 * k, 4), SWS, 1024 * k)), list(range(64 + 4 * k, 68 + 4 * k)), 't') for k in range(2)], slp=args.sleep3, adapt=args.adapt)
    lds_add(W_GO3)
    lab("L_nopoll3")
    lds_wait("go3", W_GO3, 1)
    stamp(8)
    for k in range(4):
        a("buffer_load_dwordx4 %s, v5, %s, s52 offen sc1" % (v(16 + 4 * k, 4), SWS))
        a("s_add_u32 s52, s52, %d" % (16 * 32768))
    a("s_cmp_lg_u32 %s, 7" % sW)
    a("s_cbranch_scc1 L_noscl")
    c("wave 7: scales 2^(m-M)/L for all 128 producers -> LDS")
    for b in range(2):
        m = 64 + 4 * b
        a("v_mov_b32 v80, %s" % v(m))
        for q in ("quad_perm:[1,0,3,2]", "quad_perm:[2,3,0,1]"):
            a("s_nop 1")
            a("v_max_f32_dpp v80, v80, v80 %s row_mask:0xf bank_mask:0xf" % q)
        xlane_reduce_2to5(80, 84, "v_max_f32")
        a("v_sub_f32 %s, %s, v80" % (v(m), v(m)))
        a("v_exp_f32 %s, %s" % (v(m), v(m)))
        a("s_nop 0")
        a("v_mul_f32 v81, %s, %s" % (v(m), v(m + 1)))
        for q in ("quad_perm:[1,0,3,2]", "quad_perm:[2,3,0,1]"):
            a("s_nop 1")
            a("v_add_f32_dpp v81, v81, v81 %s row_mask:0xf bank_mask:0xf" % q)
        xlane_reduce_2to5(81, 84, "v_add_f32")
        a("v_rcp_f32 v81, v81")
        a("s_nop 0")
        a("v_mul_f32 %s, %s, v81" % (v(m), v(m)))
    a("v_lshlrev_b32 v8, 2, %s" % vLane)
    a("v_add_u32 v8, %d, v8" % SCL)
    a("ds_write_b32 v8, v64")
    a("ds_write_b32 v8, v68 offset:256")
    a("s_waitcnt lgkmcnt(0)")
    lds_add(W_SCL)
    lab("L_noscl")
    lds_wait("scl", W_SCL, 1)
    for k in range(4):
        a("ds_read_b32 %s, v7 offset:%d" % (v(64 + k), 64 * k))
    a("v_and_b32 v6, 3, %s" % vLane)
    a("v_lshlrev_b32 v6, 4, v6")
    a("v_bfe_u32 v7, %s, 5, 1" % vLane)
    a("v_lshl_add_u32 v6, v7, 3, v6")
    a("v_bfe_u32 v7, %s, 4, 1" % vLane)
    a("v_lshl_add_u32 v6, v7, 2, v6")
    a("s_lshl_b32 s48, %s, 6" % sW)
    a("s_add_u32 s48, s48, %d" % CL)
    a("v_add_u32 v6, s48, v6")
    a("s_lshr_b32 s46, %s, 1" % sW)
    a("s_lshl_b32 s46, s46, 2")
    a("s_add_u32 s46, s46, %d" % SY)
    a("v_mov_b32 v122, s46")
    a("s_waitcnt vmcnt(0) lgkmcnt(0)")
    stamp(9)
    for k in range(4):
        for q in range(4):
            a("v_lshlrev_b32 v84, 16, %s" % v(16 + 4 * k + q))
            a("v_and_b32 v85, 0xffff0000, %s" % v(16 + 4 * k + q))
            op = "v_mul_f32" if k == 0 else "v_fmac_f32"
            a("%s %s, v84, %s" % (op, v(88 + 2 * q), v(64 + k)))
            a("%s %s, v85, %s" % (op, v(88 + 2 * q + 1), v(64 + k)))
    a("s_nop 1")
    for j in range(4):
        a("v_permlane32_swap_b32 %s, %s" % (v(88 + j), v(92 + j)))
    a("s_nop 1")
    for j in range(4):
        a("v_add_f32 %s, %s, %s" % (v(88 + j), v(88 + j), v(92 + j)))
    a("s_nop 1")
    for j in range(2):
        a("v_permlane16_swap_b32 %s, %s" % (v(88 + j), v(90 + j)))
    a("s_nop 1")
    for j in range(2):
        a("v_add_f32 %s, %s, %s" % (v(88 + j), v(88 + j), v(90 + j)))
    for ror in (4, 8):
        a("s_nop 1")
        for j in range(2):
            a("v_add_f32_dpp %s, %s, %s row_ror:%d row_mask:0xf bank_mask:0xf" % (v(88 + j), v(88 + j), v(88 + j), ror))
    a("v_cvt_pk_bf16_f32 v88, v88, v89")
    a("s_mov_b32 exec_lo, 0x000f000f"); a("s_mov_b32 exec_hi, 0x000f000f")
    a("ds_write_b32 v6, v88")
    exec_all()
    a("s_waitcnt lgkmcnt(0)")
    a("v_mov_b32 v121, 1")
    a("s_mov_b64 exec, 1")
    a("ds_add_u32 v122, v121 offset:%d" % (4 * W_CL))
    exec_all()
    stamp(10)
    a("s_endpgm")

def back():
    ROLE[0] = "b"
    c("================ BACK waves 8..15")
    bulk_loader()
    nonce_ready()
    stamp(2)
    if args.loadonly: a("s_endpgm")
    a("v_and_b32 v6, 1, %s" % vR)
    a("v_lshlrev_b32 v6, 6, v6")
    a("v_lshl_add_u32 v6, %s, 4, v6" % vG)
    a("s_lshr_b32 s46, %s, 1" % sWb)
    a("s_lshl_b32 s48, s46, 7")
    a("s_add_u32 s48, s48, %d" % CL)
    a("v_add_u32 v6, s48, v6")
    a("s_lshl_b32 s46, s46, 2")
    a("s_add_u32 s46, s46, %d" % SY)
    a("v_mov_b32 v122, s46")
    a("v_lshlrev_b32 v8, 9, %s" % vR)
    a("v_lshl_add_u32 v8, %s, 7, v8" % vG)
    a("s_lshl_b32 s48, %s, 10" % sWb)
    a("s_add_u32 s48, s48, %d" % P4)
    a("v_add_u32 v8, s48, v8")
    c("H4 addresses")
    a("s_lshl_b32 s52, %s, 4" % sP)
    a("s_add_u32 s52, s52, %s" % sH)
    a("s_lshl_b32 s52, s52, 15")
    lds_wait("cl", W_CL, 2, "v122")
    stamp(3)
    c("================ S4")
    a("ds_read_b128 v[4:7], v6")
    a("s_waitcnt lgkmcnt(0)")
    for i in range(8):
        a("v_mfma_f32_16x16x32_bf16 %s, %s, v[4:7], 0" % (v(80 + 4 * i, 4), v(16 + 4 * i, 4)))
    a("s_nop 7")
    exec_n2()
    for i in range(8):
        a("ds_write_b128 v8, %s offset:%d" % (v(80 + 4 * i, 4), 16 * i))
    exec_all()
    a("s_waitcnt lgkmcnt(0)")
    a("s_barrier")
    a("s_cmp_ge_u32 %s, 4" % sWb)
    a("s_cbranch_scc1 L_s5")
    c("waves 0..3: thread t<256 = granule (dhalf,g,b,i,half): sum 4 k-blocks, publish both copies")
    a("v_subrev_u32 v5, 512, v0")
    a("v_bfe_u32 v6, v5, 7, 1")
    a("v_lshlrev_b32 v6, 10, v6")
    a("v_bfe_u32 v7, v5, 4, 1")
    a("v_lshl_add_u32 v6, v7, 9, v6")
    a("v_bfe_u32 v7, v5, 5, 2")
    a("v_lshl_add_u32 v6, v7, 7, v6")
    a("v_and_b32 v7, 15, v5")
    a("v_lshl_add_u32 v6, v7, 3, v6")
    a("v_add_u32 v6, %d, v6" % P4)
    for k in range(4):
        a("ds_read_b64 %s, v6 offset:%d" % (v(16 + 2 * k, 2), 2048 * k))
    a("v_lshlrev_b32 v5, 4, v5")
    a("s_lshl_b32 s48, %s, 12" % sCs)
    a("s_add_u32 s48, s48, s52")
    a("s_add_u32 s49, s48, %d" % C4L)
    a("s_add_u32 s48, s48, %d" % C4)
    a("v_mov_b32 v26, %s" % sN0); a("v_mov_b32 v27, %s" % sN1)
    a("s_waitcnt lgkmcnt(0)")
    a("v_add_f32 v16, v16, v18"); a("v_add_f32 v17, v17, v19")
    a("v_add_f32 v20, v20, v22"); a("v_add_f32 v21, v21, v23")
    a("v_add_f32 v24, v16, v20"); a("v_add_f32 v25, v17, v21")
    a("buffer_store_dwordx4 v[24:27], v5, %s, s49 offen" % SWS)
    a("buffer_store_dwordx4 v[24:27], v5, %s, s48 offen sc1" % SWS)
    stamp(4)
    a("s_endpgm")
    lab("L_s5")
    c("================ waves 4..7: H4 gather (8 producers x 512B for d-slice cs), S5 for m-block mb")
    a("v_lshrrev_b32 v6, 5, %s" % vLane)
    a("v_lshlrev_b32 v6, 12, v6")
    a("v_and_b32 v7, 31, %s" % vLane)
    a("v_lshl_add_u32 v6, v7, 4, v6")
    a("v_add_u32 v8, %d, v6" % (C4L - C4))
    a("v_mov_b32 v9, v6")
    a("v_mov_b32 v6, v8")
    a("s_lshl_b32 s48, %s, 9" % sCs)
    a("s_add_u32 s48, s48, s52")
    a("s_add_u32 s48, s48, %d" % C4)
    for k in range(1, 4): a("s_add_u32 s%d, s48, %d" % ([0, 49, 51, 53][k], 8192 * k))
    a("s_and_b32 s46, %s, 3" % sWb)
    a("s_lshl_b32 s47, s46, 7")
    a("s_add_u32 s47, s47, %d" % CB)
    a("v_lshlrev_b32 v10, 2, v7")
    a("v_add_u32 v10, s47, v10")
    a("v_and_b32 v11, 1, %s" % vR)
    a("v_lshlrev_b32 v11, 6, v11")
    a("v_lshl_add_u32 v11, %s, 4, v11" % vG)
    a("v_add_u32 v11, s47, v11")
    a("s_lshl_b32 s47, s46, 10")
    a("s_add_u32 s47, s47, %d" % P5)
    a("v_lshlrev_b32 v12, 9, %s" % vR)
    a("v_lshl_add_u32 v12, %s, 7, v12" % vG)
    a("v_add_u32 v12, s47, v12")
    a("v_lshlrev_b32 v13, 4, %s" % vLane)
    a("v_add_u32 v13, s47, v13")
    a("s_lshl_b32 s47, s46, 5")
    a("v_add_u32 v14, s47, v7")
    a("v_cmp_gt_u32 vcc, 112, v14")
    a("v_lshrrev_b32 v15, 5, %s" % vLane)
    a("v_mul_u32_u24 v15, 112, v15")
    a("v_add_u32 v14, v14, v15")
    a("v_lshlrev_b32 v14, %d, v14" % (4 if args.pol else 5))
    a("v_mov_b32 v15, 0x7fff0000")
    a("v_cndmask_b32 v14, v15, v14, vcc")
    a("s_lshl_b32 s54, %s, 7" % sP)
    a("s_add_u32 s54, s54, %s" % sJ)
    a("s_mul_i32 s54, s54, 7168")
    a("s_add_u32 s54, s54, %d" % PO)
    if args.dly4: a("s_sleep %d" % args.dly4)
    def h4_next():
        a("s_and_b32 s46, s59, %d" % args.slowmask)
        a("s_cmp_eq_u32 s46, 1")
        a("s_cselect_b64 vcc, -1, 0")
        a("s_nop 1")
        a("v_cndmask_b32 v6, v8, v9, vcc")
    poll_masked("h4", [(lambda k=k: a("buffer_load_dwordx4 %s, v6, %s, s%d offen sc1" % (v(16 + 4 * k, 4), SWS, [48, 49, 51, 53][k])), list(range(16 + 4 * k, 20 + 4 * k)), 't') for k in range(4)], again=h4_next, slp=args.slp1)
    stamp(5)
    for e in range(2):
        a("v_add_f32 %s, %s, %s" % (v(16 + e), v(16 + e), v(20 + e)))
        a("v_add_f32 %s, %s, %s" % (v(24 + e), v(24 + e), v(28 + e)))
        a("v_add_f32 %s, %s, %s" % (v(16 + e), v(16 + e), v(24 + e)))
        a("v_mov_b32 v20, %s" % v(16 + e))
        a("s_nop 1")
        a("v_permlane32_swap_b32 %s, v20" % v(16 + e))
        a("s_nop 1")
        a("v_add_f32 %s, %s, v20" % (v(16 + e), v(16 + e)))
    a("v_cvt_pk_bf16_f32 v16, v16, v17")
    a("ds_write_b32 v10, v16")
    a("s_waitcnt lgkmcnt(0)")
    a("ds_read_b128 v[4:7], v11")
    a("s_waitcnt lgkmcnt(0)")
    for i in range(8):
        a("v_mfma_f32_16x16x32_bf16 %s, %s, v[4:7], 0" % (v(80 + 4 * i, 4), v(48 + 4 * i, 4)))
    a("v_mov_b32 v34, %s" % sN0); a("v_mov_b32 v35, %s" % sN1)
    a("v_mov_b32 v38, %s" % sN0); a("v_mov_b32 v39, %s" % sN1)
    a("s_nop 5")
    exec_n2()
    for i in range(8):
        a("ds_write_b128 v12, %s offset:%d" % (v(80 + 4 * i, 4), 16 * i))
    exec_all()
    a("s_waitcnt lgkmcnt(0)")
    a("ds_read_b128 v[16:19], v13")
    a("s_waitcnt lgkmcnt(0)")
    a("v_mov_b32 v32, v16"); a("v_mov_b32 v33, v17"); a("v_mov_b32 v36, v18"); a("v_mov_b32 v37, v19")
    a("buffer_store_dwordx4 v[32:35], v14, %s, s54 offen sc1" % SWS)
    a("buffer_store_dwordx4 v[36:39], v14, %s, s54 offen offset:%d sc1" % (SWS, 3584 if args.pol else 16))
    stamp(6)
    a("s_cmp_lg_u32 %s, 7" % sWb)
    a("s_cbranch_scc1 L_end")
    a("s_cmp_ge_u32 %s, 56" % sJ)
    a("s_cbranch_scc1 L_end")
    FINAL[0] = True
    c("lane = (producer sub 8, granule 8); 16 loads x 8 producers; 128B per producer")
    a("v_lshrrev_b32 v6, 3, %s" % vLane)
    a("v_mul_u32_u24 v6, 7168, v6")
    a("v_and_b32 v7, 7, %s" % vLane)
    if args.pol:
        a("v_and_b32 v8, 1, v7")
        a("v_mul_u32_u24 v8, 3584, v8")
        a("v_add_u32 v6, v6, v8")
        a("v_lshrrev_b32 v8, 1, v7")
        a("v_lshl_add_u32 v6, v8, 4, v6")
    else:
        a("v_lshl_add_u32 v6, v7, 4, v6")
    a("s_mul_i32 s48, %s, %d" % (sP, 128 * 7168))
    a("s_lshl_b32 s49, %s, %d" % (sJ, 6 if args.pol else 7))
    a("s_add_u32 s48, s48, s49")
    a("s_add_u32 s48, s48, %d" % PO)
    a("s_cmp_ge_u32 %s, 28" % sJ)
    a("s_cselect_b32 s49, 28, 0")
    a("s_cselect_b32 s51, 896, 0")
    a("s_sub_u32 s49, %s, s49" % sJ)
    a("s_lshl_b32 s49, s49, 4")
    a("s_and_b32 s52, s49, 0xffe0")
    a("s_lshr_b32 s49, s49, 2")
    a("s_and_b32 s49, s49, 7")
    a("s_add_u32 s52, s52, s49")
    a("s_add_u32 s52, s52, s51")
    a("s_mul_i32 s49, %s, 448" % sP)
    a("s_add_u32 s52, s52, s49")
    a("s_lshl_b32 s52, s52, 1")
    a("v_lshrrev_b32 v8, 1, v7")
    a("v_lshlrev_b32 v8, 1, v8")
    a("v_and_b32 v7, 1, v7")
    a("v_lshl_add_u32 v7, v7, 5, v8")
    def ld5(k):
        a("s_add_u32 s49, s48, %d" % (8 * 7168 * k))
        a("buffer_load_dwordx4 %s, v6, %s, s49 offen sc1" % (v(16 + 4 * k, 4), SWS))
    d5 = args.dly5
    while d5 > 0:
        a("s_sleep %d" % min(d5, 127)); d5 -= 127
    poll_masked("h5", [(lambda k=k: ld5(k), list(range(16 + 4 * k, 20 + 4 * k)), 't') for k in range(16)], slp=args.sleep5)
    stamp(7)
    for st in (8, 4, 2, 1):
        for k in range(st):
            for e in range(2):
                a("v_add_f32 %s, %s, %s" % (v(16 + 4 * k + e), v(16 + 4 * k + e), v(16 + 4 * (k + st) + e)))
    for e in range(2):
        a("s_nop 1")
        a("v_add_f32_dpp %s, %s, %s row_ror:8 row_mask:0xf bank_mask:0xf" % (v(16 + e), v(16 + e), v(16 + e)))
        for pop in ("v_permlane16_swap_b32", "v_permlane32_swap_b32"):
            a("v_mov_b32 v20, %s" % v(16 + e))
            a("s_nop 1")
            a("%s %s, v20" % (pop, v(16 + e)))
            a("s_nop 1")
            a("v_add_f32 %s, %s, v20" % (v(16 + e), v(16 + e)))
    a("v_cvt_pk_bf16_f32 v16, v16, v17")
    a("s_mov_b64 exec, 0xff")
    a("buffer_store_short v16, v7, %s, s52 offen" % SOUT)
    a("buffer_store_short_d16_hi v16, v7, %s, s52 offen offset:16" % SOUT)
    a("s_cmp_lg_u32 %s, 0" % sJ)
    a("s_cbranch_scc1 L_noep")
    c("advance the epoch word for a later launch on the same workspace")
    a("s_lshl_b32 s46, %s, 7" % sP)
    a("s_add_u32 s46, s46, %d" % EP)
    a("v_mov_b32 v20, %s" % sN0)
    a("v_mov_b32 v21, %s" % sN1)
    a("v_mov_b32 v22, 0")
    a("s_mov_b64 exec, 1")
    a("buffer_store_dwordx2 v[20:21], v22, %s, s46 offen sc1" % SWS)
    lab("L_noep")
    exec_all()
    stamp(8)

hdr = [l for l in open("concat_heads__compressed_kv_cla__compressed_kv_cla__decode.s.ref").read().split("\n") if l.startswith(";") and "@launch" not in l]
out.extend(hdr)
out.append("; @launch grid=(256,1,1) block=(1024,1,1) lds=%d" % LDS_BYTES)
out.extend(['.amdgcn_target "amdgcn-amd-amdhsa--gfx950"', ".text"])
out.extend([".globl %s" % KN, ".p2align 8", ".type %s,@function" % KN, KN + ":"])
prologue(256)
stamp(0)
a("s_cmp_ge_u32 %s, 8" % sW)
a("s_cbranch_scc1 L_back")
front()
lab("L_back")
back()
lab("L_end"); a("s_endpgm")
out.extend(['.section .rodata,"a"', ".p2align 6", ".amdhsa_kernel %s" % KN,
    "  .amdhsa_next_free_vgpr 128", "  .amdhsa_next_free_sgpr 96", "  .amdhsa_accum_offset 128",
    "  .amdhsa_group_segment_fixed_size 0", "  .amdhsa_kernarg_size 120", "  .amdhsa_user_sgpr_count 2",
    "  .amdhsa_user_sgpr_kernarg_segment_ptr 1", "  .amdhsa_system_sgpr_workgroup_id_x 1", ".end_amdhsa_kernel"])
txt = "\n".join(out)
import re
if args.stp != "sc1":
    txt = re.sub(r"(buffer_store_\w+ [^\n]*) sc1", lambda m: m.group(1) + " " + args.stp.replace("_", " "), txt)
if args.ldp != "sc1":
    txt = re.sub(r"(buffer_load_\w+ [^\n]*) sc1", lambda m: m.group(1) + " " + args.ldp.replace("_", " "), txt)
print(txt)
```

```python
import sys, argparse
ap = argparse.ArgumentParser()
ap.add_argument("--stamp", type=int, default=0)
ap.add_argument("--spin", type=int, default=200000)
ap.add_argument("--sleep", type=int, default=4)
ap.add_argument("--ntq", type=int, default=1)
ap.add_argument("--depth", type=int, default=3)
ap.add_argument("--depth2", type=int, default=0)
ap.add_argument("--h1local", type=int, default=1)
ap.add_argument("--sleep3", type=int, default=4)
ap.add_argument("--sleep5", type=int, default=4)
ap.add_argument("--dly5", type=int, default=0)
ap.add_argument("--sleep2", type=int, default=8)
ap.add_argument("--stp", default="sc1")
ap.add_argument("--ldp", default="sc1")
ap.add_argument("--touch", type=int, default=0)
ap.add_argument("--slowmask", type=int, default=3)
ap.add_argument("--slp1", type=int, default=2)
ap.add_argument("--loadonly", type=int, default=0)
ap.add_argument("--inpol", default="nt")
ap.add_argument("--kvpol", default="")
ap.add_argument("--pol", type=int, default=1)
ap.add_argument("--swap", type=int, default=0)
ap.add_argument("--adapt", type=int, default=0)
ap.add_argument("--wwait", type=int, default=0)
ap.add_argument("--dww", type=int, default=0)
ap.add_argument("--h2prog", type=int, default=0)
ap.add_argument("--hold", type=int, default=0)
ap.add_argument("--dwo", type=int, default=0)
ap.add_argument("--wpos", type=int, default=16)
ap.add_argument("--dly4", type=int, default=4)
ap.add_argument("--pause", type=int, default=-1)
ap.add_argument("--dly1", type=int, default=16)
ap.add_argument("--dly2", type=int, default=16)
ap.add_argument("--pcl", type=int, default=1)
ap.add_argument("--dense", type=int, default=1)
ap.add_argument("--prio", type=int, default=0)
ap.add_argument("--clrpos", type=int, default=8)
args = ap.parse_args()
NT = "" if args.inpol == "none" else " " + args.inpol.replace("_", " ")
NTKV = NT if not args.kvpol else ("" if args.kvpol == "none" else " " + args.kvpol.replace("_", " "))
NTQ = " nt" if args.ntq else ""

KN = "concat_heads__compressed_kv_cla__compressed_kv_cla__decode_kernel"
out = []
def a(s): out.append("    " + s)
def lab(s): out.append(s + ":")
def c(s): out.append("    ; " + s)

QA = 0
PC = 1 << 20
Q1 = 9 << 20
C4 = 16 << 20
C4L = 17 << 20
Q1L = 15 << 20
ST = 10 << 20
FL = (10 << 20) + (256 << 10)
EP = (10 << 20) + (512 << 10)
PO = 13 << 20
STAMP = 12 << 20
WS_USED = 18 << 20
X0 = 131072
P1 = X0
QL = X0 + 16384
SY = QL + 1024
W_S1P, W_Q, W_GO2, W_S1C, W_SC, W_PROG, W_CL, W_S2C, W_QAD, W_GO3, W_PCD, W_SCL, W_HOLD = 0, 1, 2, 3, 4, 8, 16, 24, 32, 33, 34, 35, 36
SCL = SY + 256
CL = X0
P4 = X0 + 4096
CB = X0 + 12288
P5 = 16384
LDS_BYTES = 163840

sW, sP, sH, sCs, sJ = "s3", "s4", "s5", "s6", "s7"
SX, SKV, SWQ, SUK, SUV, SWO, SWS, SOUT, SDBG = ["s[%d:%d]" % (i, i + 3) for i in range(8, 44, 4)]
sSel0, sSel1 = "s44", "s45"
sWb = "s50"
sN0, sN1 = "s92", "s93"
sSent = "s94"
vLane, vR, vG = "v1", "v2", "v3"
vSY, vSYw = "v123", "v125"
def v(i, n=1): return "v%d" % i if n == 1 else "v[%d:%d]" % (i, i + n - 1)
def exec_n2():
    a("s_mov_b32 exec_lo, 0x00030003"); a("s_mov_b32 exec_hi, 0x00030003")
def exec_all(): a("s_mov_b64 exec, -1")

FINAL = [False]
ROLE = ["x"]
DS = [0]
def stamp(idx):
    if not args.stamp: return
    if args.stamp == 2 and not (idx == 0 or (idx == 8 and FINAL[0])): return
    if args.stamp == 3:
        role = ROLE[0]
        slot = {("x", 0): 0, ("f", 15): 1, ("f", 4): 2, ("f", 5): 3, ("f", 6): 4, ("f", 7): 5, ("f", 8): 6, ("f", 10): 7, ("b", 1): 8, ("b", 2): 9, ("b", 3): 10, ("b", 5): 11, ("b", 6): 12, ("b", 7): 13, ("b", 8): 14}.get((role, idx))
        if slot is None: return
        DS[0] += 1
        a("s_cmp_lg_u32 s2, 0")
        a("s_cbranch_scc1 L_ds%d" % DS[0])
        a("s_cmp_lg_u32 %s, %d" % (sW, 15 if role == "b" else 0))
        a("s_cbranch_scc1 L_ds%d" % DS[0])
        a("s_memrealtime s[56:57]")
        a("s_waitcnt lgkmcnt(0)")
        a("v_mov_b32 v127, s56")
        a("v_mov_b32 v126, 0")
        a("s_mov_b64 s[56:57], exec")
        a("s_mov_b64 exec, 1")
        a("buffer_store_dword v127, v126, %s, 0 offen offset:%d" % (SDBG, 4 * slot))
        a("s_mov_b64 exec, s[56:57]")
        lab("L_ds%d" % DS[0])
        return
    a("s_memrealtime s[56:57]")
    a("s_lshl_b32 s58, s2, 4")
    a("s_add_u32 s58, s58, %s" % sW)
    a("s_lshl_b32 s58, s58, 6")
    a("s_add_u32 s58, s58, %d" % (STAMP + 4 * idx))
    a("s_waitcnt lgkmcnt(0)")
    a("v_mov_b32 v127, s56")
    a("v_mov_b32 v126, 0")
    a("s_mov_b64 s[56:57], exec")
    a("s_mov_b64 exec, 1")
    a("buffer_store_dword v127, v126, %s, s58 offen" % SWS)
    a("s_mov_b64 exec, s[56:57]")

def cnt_stamp(idx):
    if args.stamp != 1: return
    a("s_lshl_b32 s58, s2, 4")
    a("s_add_u32 s58, s58, %s" % sW)
    a("s_lshl_b32 s58, s58, 6")
    a("s_add_u32 s58, s58, %d" % (STAMP + 4 * idx))
    a("s_sub_u32 s56, %d, s59" % args.spin)
    a("v_mov_b32 v127, s56")
    a("v_mov_b32 v126, 0")
    a("s_mov_b64 exec, 1")
    a("buffer_store_dword v127, v126, %s, s58 offen" % SWS)
    a("s_mov_b64 exec, -1")

def prologue(nwg):
    a("s_cmp_ge_u32 s2, %d" % nwg)
    a("s_cbranch_scc1 L_end")
    a("s_load_dwordx16 s[60:75], s[0:1], 0")
    a("s_load_dwordx8 s[76:83], s[0:1], 64")
    a("s_load_dwordx4 s[84:87], s[0:1], 96")
    a("s_load_dwordx2 s[88:89], s[0:1], 112")
    if args.swap: a("v_xor_b32 v0, 0x200, v0")
    a("v_and_b32 %s, 63, v0" % vLane)
    a("v_lshrrev_b32 v4, 6, v0")
    a("v_and_b32 %s, 15, v0" % vR)
    a("v_readfirstlane_b32 %s, v4" % sW)
    a("v_bfe_u32 %s, v0, 4, 2" % vG)
    a("s_and_b32 s46, s2, 7")
    a("s_lshr_b32 s47, s2, 3")
    a("s_lshr_b32 %s, s46, 2" % sP)
    a("s_and_b32 s46, s46, 3")
    a("s_lshl_b32 %s, s46, 2" % sH)
    a("s_lshr_b32 s48, s47, 3")
    a("s_add_u32 %s, %s, s48" % (sH, sH))
    a("s_and_b32 %s, s47, 7" % sCs)
    a("s_lshl_b32 %s, s46, 5" % sJ)
    a("s_add_u32 %s, %s, s47" % (sJ, sJ))
    a("s_mov_b32 %s, 0x05040100" % sSel0)
    a("s_mov_b32 %s, 0x07060302" % sSel1)
    sizes = [1792, 16777216, 3670016, 8388608, 8388608, 3670016]
    for k in range(6):
        a("s_mov_b32 s%d, %d" % (8 + 4 * k + 2, sizes[k]))
        a("s_mov_b32 s%d, 0x20000" % (8 + 4 * k + 3))
    a("s_mov_b32 s34, %d" % WS_USED); a("s_mov_b32 s35, 0x20000")
    a("s_mov_b32 s38, 3584"); a("s_mov_b32 s39, 0x20000")
    a("s_mov_b32 s42, 256"); a("s_mov_b32 s43, 0x20000")
    a("s_sub_u32 %s, %s, 8" % (sWb, sW))
    a("s_mov_b32 %s, 0xfffffffe" % sSent)
    a("v_mov_b32 %s, %d" % (vSY, SY))
    a("s_and_b32 s46, %s, 7" % sW)
    a("s_lshl_b32 s46, s46, 2")
    a("s_add_u32 s46, s46, %d" % SY)
    a("v_mov_b32 %s, s46" % vSYw)
    a("s_cmp_lg_u32 %s, 7" % sW)
    a("s_cbranch_scc1 L_noinit")
    a("v_lshl_add_u32 v4, %s, 2, %s" % (vLane, vSY))
    a("v_mov_b32 v5, 0")
    a("ds_write_b32 v4, v5")
    lab("L_noinit")
    a("s_cmp_eq_u32 %s, 0" % sP)
    a("s_waitcnt lgkmcnt(0)")
    for k in range(6):
        a("s_cselect_b64 s[%d:%d], s[%d:%d], s[%d:%d]" % (8 + 4 * k, 9 + 4 * k, 60 + 2 * k, 61 + 2 * k, 72 + 2 * k, 73 + 2 * k))
    a("s_mov_b64 s[32:33], s[88:89]")
    a("s_mov_b64 s[36:37], s[84:85]")
    a("s_mov_b64 s[40:41], s[86:87]")
    c("launch nonce = epoch word found in d_ws + 1 (only tells this launch's tags/flags from stale ones)")
    a("s_lshl_b32 s46, %s, 7" % sP)
    a("s_add_u32 s46, s46, %d" % EP)
    a("s_load_dwordx2 s[92:93], s[88:89], s46")

def nonce_ready():
    a("s_waitcnt lgkmcnt(0)")
    a("s_add_u32 %s, %s, 1" % (sN0, sN0))
    a("s_addc_u32 %s, %s, 0" % (sN1, sN1))

def perms(T, L, i):
    k, e = i >> 1, i & 1
    for jj in range(4):
        a("v_perm_b32 %s, %s, %s, %s" % (v(T + jj), v(L + 4 * (2 * jj + 1) + k), v(L + 4 * (2 * jj) + k), sSel1 if e else sSel0))

def block_mfma(L, B, D, first, T0=80, T1=84):
    Ts = [T0, T1]
    perms(Ts[0], L, 0)
    for i in range(8):
        if i < 7: perms(Ts[(i + 1) & 1], L, i + 1)
        else: a("s_nop 1")
        a("v_mfma_f32_16x16x32_bf16 %s, %s, %s, %s" % (v(D + 4 * i, 4), v(Ts[i & 1], 4), v(B, 4), "0" if first else v(D + 4 * i, 4)))

def transpose_inplace(L, t0, t1):
    def pr(jj, k): return (L + 8 * jj + k, L + 8 * jj + 4 + k)
    for jj in range(4):
        lo, hi = pr(jj, jj)
        a("v_perm_b32 %s, %s, %s, %s" % (v(t0), v(hi), v(lo), sSel0))
        a("v_perm_b32 %s, %s, %s, %s" % (v(hi), v(hi), v(lo), sSel1))
        a("v_mov_b32 %s, %s" % (v(lo), v(t0)))
    for jj in range(4):
        for k in range(jj + 1, 4):
            A0, A1 = pr(jj, k); B0, B1 = pr(k, jj)
            a("v_perm_b32 %s, %s, %s, %s" % (v(t0), v(A1), v(A0), sSel0))
            a("v_perm_b32 %s, %s, %s, %s" % (v(t1), v(A1), v(A0), sSel1))
            a("v_perm_b32 %s, %s, %s, %s" % (v(A0), v(B1), v(B0), sSel0))
            a("v_perm_b32 %s, %s, %s, %s" % (v(A1), v(B1), v(B0), sSel1))
            a("v_mov_b32 %s, %s" % (v(B0), v(t0)))
            a("v_mov_b32 %s, %s" % (v(B1), v(t1)))

def desent(regs):
    for r in regs: a("v_min_u32 %s, %s, %s" % (v(r), sSent, v(r)))

def poll_masked(name, loads, tmp=120, again=None, slp=None, adapt=0):
    n = len(loads)
    assert n <= 16
    M = lambda k: "s[%d:%d]" % (60 + 2 * k, 61 + 2 * k)
    for k in range(n): a("s_mov_b64 %s, -1" % M(k))
    a("s_mov_b32 s59, %d" % args.spin)
    lab("L_pm_%s" % name)
    for k, (emit, regs, kind) in enumerate(loads):
        a("s_mov_b64 exec, %s" % M(k))
        if n > 2: a("s_cbranch_execz L_pmsk_%s_%d" % (name, k))
        emit()
        if n > 2: lab("L_pmsk_%s_%d" % (name, k))
    exec_all()
    a("s_waitcnt vmcnt(0)")
    for k, (emit, regs, kind) in enumerate(loads):
        rs = list(regs)
        if kind == 's':
            if len(rs) == 1:
                a("v_cmp_eq_u32 %s, -1, %s" % (M(k), v(rs[0])))
            elif len(rs) == 2:
                a("v_max_u32 %s, %s, %s" % (v(tmp), v(rs[0]), v(rs[1])))
                a("v_cmp_eq_u32 %s, -1, %s" % (M(k), v(tmp)))
            else:
                a("v_max3_u32 %s, %s, %s, %s" % (v(tmp), v(rs[0]), v(rs[1]), v(rs[2])))
                a("v_max_u32 %s, %s, %s" % (v(tmp), v(tmp), v(rs[3])))
                a("v_cmp_eq_u32 %s, -1, %s" % (M(k), v(tmp)))
        else:
            a("v_xor_b32 %s, %s, %s" % (v(tmp), sN0, v(rs[-2])))
            a("v_xor_b32 %s, %s, %s" % (v(tmp + 1), sN1, v(rs[-1])))
            a("v_or_b32 %s, %s, %s" % (v(tmp), v(tmp), v(tmp + 1)))
            a("v_cmp_ne_u32 %s, 0, %s" % (M(k), v(tmp)))
    a("s_nop 1")
    if n == 1:
        a("s_cmp_eq_u64 %s, 0" % M(0))
    else:
        a("s_or_b64 s[56:57], %s, %s" % (M(0), M(1)))
        for k in range(2, n): a("s_or_b64 s[56:57], s[56:57], %s" % M(k))
        a("s_cmp_eq_u64 s[56:57], 0")
    a("s_cbranch_scc1 L_pmok_%s" % name)
    if slp is None: slp = args.sleep
    if adapt:
        a("s_bcnt1_i32_b64 s56, %s" % M(0))
        a("s_bcnt1_i32_b64 s57, %s" % M(1))
        a("s_add_u32 s56, s56, s57")
        a("s_cmp_le_u32 s56, %d" % adapt)
        a("s_cbranch_scc1 L_pmsh_%s" % name)
    if slp: a("s_sleep %d" % slp)
    if adapt:
        lab("L_pmsh_%s" % name)
        a("s_sleep 2")
    if again: again()
    a("s_sub_u32 s59, s59, 1")
    a("s_cmp_lg_u32 s59, 0")
    a("s_cbranch_scc1 L_pm_%s" % name)
    lab("L_pmok_%s" % name)

def lds_wait(name, word, target, areg=vSY, sreg="s58"):
    a("s_mov_b32 s59, 4000000")
    lab("L_lw_%s" % name)
    a("ds_read_b32 v121, %s offset:%d" % (areg, 4 * word))
    a("s_waitcnt lgkmcnt(0)")
    a("v_readfirstlane_b32 %s, v121" % sreg)
    a("s_cmp_ge_u32 %s, %d" % (sreg, target))
    a("s_cbranch_scc1 L_lwok_%s" % name)
    a("s_sleep 1")
    a("s_sub_u32 s59, s59, 1")
    a("s_cmp_lg_u32 s59, 0")
    a("s_cbranch_scc1 L_lw_%s" % name)
    lab("L_lwok_%s" % name)
def lds_add(word):
    a("v_mov_b32 v121, 1")
    a("s_mov_b64 exec, 1")
    a("ds_add_u32 %s, v121 offset:%d" % (vSY, 4 * word))
    exec_all()
def hold(bit, on):
    if not (args.hold >> bit) & 1: return
    a("v_mov_b32 v121, %d" % (1 if on else -1))
    a("s_mov_b64 exec, 1")
    a("ds_add_u32 %s, v121 offset:%d" % (vSY, 4 * W_HOLD))
    exec_all()
HC = [0]
def hold_check():
    if not args.hold: return
    HC[0] += 1
    n = HC[0]
    a("s_mov_b32 s59, 100000")
    lab("L_hc%d" % n)
    a("ds_read_b32 v121, %s offset:%d" % (vSY, 4 * W_HOLD))
    a("s_waitcnt lgkmcnt(0)")
    a("v_readfirstlane_b32 s58, v121")
    a("s_cmp_eq_u32 s58, 0")
    a("s_cbranch_scc1 L_hcok%d" % n)
    a("s_sleep 1")
    a("s_sub_u32 s59, s59, 1")
    a("s_cmp_lg_u32 s59, 0")
    a("s_cbranch_scc1 L_hc%d" % n)
    lab("L_hcok%d" % n)
def lds_set_w(word, val):
    a("v_mov_b32 v121, %d" % val)
    a("s_mov_b64 exec, 1")
    a("ds_write_b32 %s, v121 offset:%d" % (vSYw, 4 * word))
    exec_all()

def flag_store(off):
    a("s_lshl_b32 s48, %s, 7" % sP)
    a("s_add_u32 s48, s48, %s" % sJ)
    a("s_lshl_b32 s48, s48, 7")
    a("s_add_u32 s48, s48, %d" % FL)
    a("v_mov_b32 v122, 0")
    a("v_mov_b32 v120, %s" % sN0)
    a("v_mov_b32 v121, %s" % sN1)
    a("s_mov_b64 exec, 1")
    a("buffer_store_dwordx2 v[120:121], v122, %s, s48 offen offset:%d sc1" % (SWS, off))
    exec_all()
def flag_poll_all(name, off):
    a("s_lshl_b32 s48, %s, 14" % sP)
    a("s_add_u32 s48, s48, %d" % FL)
    a("s_add_u32 s49, s48, 8192")
    a("v_lshlrev_b32 v122, 7, %s" % vLane)
    poll_masked(name, [
        (lambda: a("buffer_load_dwordx2 v[116:117], v122, %s, s48 offen offset:%d sc1" % (SWS, off)), [116, 117], 't'),
        (lambda: a("buffer_load_dwordx2 v[118:119], v122, %s, s49 offen offset:%d sc1" % (SWS, off)), [118, 119], 't')])

def xlane_reduce_2to5(reg, tmp, op):
    for ror in (4, 8):
        a("s_nop 1")
        a("%s_dpp %s, %s, %s row_ror:%d row_mask:0xf bank_mask:0xf" % (op, v(reg), v(reg), v(reg), ror))
    for pop in ("v_permlane16_swap_b32", "v_permlane32_swap_b32"):
        a("v_mov_b32 %s, %s" % (v(tmp), v(reg)))
        a("s_nop 1")
        a("%s %s, %s" % (pop, v(reg), v(tmp)))
        a("s_nop 1")
        a("%s %s, %s, %s" % (op, v(reg), v(reg), v(tmp)))

def bulk_loader():
    D = args.depth
    c("w_q first (most urgent), waves 0..3: i = wb: blk = i>>1, dh = i&1 ; v4 = g*65536 + r*16 ; s63")
    a("s_lshl_b32 s51, %s, 14" % sWb)
    a("s_lshl_b32 s65, %s, 15" % sWb)
    a("v_lshlrev_b32 v4, 16, %s" % vG)
    a("v_lshl_add_u32 v4, %s, 4, v4" % vR)
    a("s_lshl_b32 s63, %s, 19" % sCs)
    a("s_bfe_u32 s49, %s, 0x10001" % sWb)
    a("s_lshl_b32 s49, s49, 18")
    a("s_add_u32 s63, s63, s49")
    a("s_lshl_b32 s49, %s, 9" % sH)
    a("s_add_u32 s63, s63, s49")
    a("s_and_b32 s49, %s, 1" % sWb)
    a("s_lshl_b32 s49, s49, 8")
    a("s_add_u32 s63, s63, s49")
    a("s_cmp_ge_u32 %s, 4" % sWb)
    a("s_cbranch_scc1 L_nowq")
    for j in range(8):
        a("s_add_u32 s49, s65, %d" % (16384 * (j >> 2) + 4096 + 1024 * (j & 3)))
        a("s_mov_b32 m0, s49")
        a("s_nop 0")
        a("buffer_load_dwordx4 v4, %s, s63 offen%s lds" % (SWQ, NT))
        a("s_add_u32 s63, s63, 8192")
    lab("L_nowq")
    def rest_addr():
        for tq in range(4):
            a("v_add_u32 v120, %d, %s" % (4 * tq, vG))
            a("v_and_b32 v121, 7, v120")
            a("v_lshlrev_b32 v121, 1, v121")
            a("v_lshrrev_b32 v126, 3, v120")
            a("v_or_b32 v121, v121, v126")
            a("v_xor_b32 v121, v121, %s" % vR)
            a("v_lshlrev_b32 v121, 4, v121")
            a("v_lshl_add_u32 %s, v120, 11, v121" % v(116 + tq))
        a("s_lshl_b32 s62, %s, 17" % sJ)
        a("s_lshl_b32 s49, %s, 8" % sWb)
        a("s_add_u32 s62, s62, s49")
        a("v_lshlrev_b32 v5, 13, %s" % vR)
        a("v_lshl_add_u32 v5, %s, 4, v5" % vG)
        a("s_lshl_b32 s64, %s, 20" % sCs)
        a("s_lshl_b32 s49, %s, 17" % sWb)
        a("s_add_u32 s64, s64, s49")
        a("s_lshl_b32 s49, %s, 9" % sH)
        a("s_add_u32 s64, s64, s49")
        a("v_lshlrev_b32 v6, 15, %s" % vG)
        a("v_lshl_add_u32 v6, %s, 4, v6" % vR)
        a("s_lshl_b32 s60, %s, 20" % sCs)
        a("s_lshr_b32 s49, %s, 1" % sWb)
        a("s_lshl_b32 s49, s49, 18")
        a("s_add_u32 s60, s60, s49")
        a("s_lshl_b32 s49, %s, 9" % sH)
        a("s_add_u32 s60, s60, s49")
        a("s_and_b32 s49, %s, 1" % sWb)
        a("s_lshl_b32 s49, s49, 8")
        a("s_add_u32 s60, s60, s49")
        a("v_mul_u32_u24 v7, 1792, %s" % vG)
        a("v_lshl_add_u32 v7, %s, 4, v7" % vR)
        a("s_lshl_b32 s61, %s, 8" % sH)
        a("s_lshl_b32 s49, %s, 5" % sCs)
        a("s_add_u32 s61, s61, s49")
        a("s_mul_i32 s61, s61, 896")
        a("s_and_b32 s53, %s, 3" % sWb)
        a("s_lshl_b32 s49, s53, 8")
        a("s_add_u32 s61, s61, s49")
        a("v_mov_b32 v9, 0x7fff0000")
        a("s_cmp_eq_u32 %s, 7" % sWb)
        a("s_cbranch_scc0 L_nomask")
        a("v_cmp_lt_u32 vcc, 7, %s" % vR)
        a("s_nop 1")
        a("v_cndmask_b32 v7, v7, v9, vcc")
        lab("L_nomask")
        a("s_barrier")

    items = []
    len_before = 0
    def dma(srd, vaddr, soff, ldsoff, post=None, inst_off=0):
        def f():
            a("s_add_u32 s49, s51, %d" % (ldsoff - inst_off))
            a("s_mov_b32 m0, s49")
            a("s_nop 0")
            a("buffer_load_dwordx4 %s, %s, %s offen%s%s lds" % (vaddr, srd, soff, (" offset:%d" % inst_off) if inst_off else "", NTKV if srd == SKV else NT))
            if post: a(post)
        return f
    rest_addr()
    c("waves 0..3: w_q landed -> progress 1")
    a("s_cmp_ge_u32 %s, 4" % sWb)
    a("s_cbranch_scc1 L_nowq2")
    a("s_waitcnt vmcnt(0)")
    lds_set_w(W_PROG, 1)
    lab("L_nowq2")
    for s_ in range(8):
        items.append([dma(SUK, "v5", "s64", 8192 + 1024 * s_, None, 64 * s_), (lambda: lds_set_w(W_PROG, 2)) if s_ == 7 else None, None])
    def clr_items():
        for up in range(4):
            def f():
                a("buffer_store_dwordx4 v[112:115], v10, %s, s65 offen sc1" % SWS)
                a("s_add_u32 s65, s65, 8192")
            items.append([f, None, None])
        items.append([lambda: a("buffer_store_dwordx4 v[112:115], v11, %s, s66 offen sc1" % SWS), None, None])
        items.append([lambda: a("buffer_store_dwordx2 v[112:113], v12, %s, s67 offen sc1" % SWS), lambda: lds_add(W_CLR), None])
    def weight_items():
        nonlocal len_before
        len_before = len(items)
        for j in range(8):
            def f(j=j):
                a("buffer_load_dwordx4 %s, v6, %s, s60 offen%s" % (v(16 + 4 * j, 4), SUV, NT))
                a("s_add_u32 s60, s60, %d" % (8192 if j != 3 else 13 * 8192))
            bf = None
            if j == 0 and args.wwait:
                def bf():
                    a("s_waitcnt vmcnt(0)")
                    complete_upto(len_before - 1)
                    if args.wwait == 1: lds_wait("wwait", W_PCD, 8)
                    else: lds_wait("wwait", W_SC, 8)
            items.append([f, (lambda: transpose_inplace(16, 112, 113)) if j == 7 else None, bf])
        for j in range(8):
            def f(j=j):
                c("w_o only for waves 4..7")
                a("s_cmp_lt_u32 %s, 4" % sWb)
                a("s_cbranch_scc1 L_nowo%d" % j)
                a("buffer_load_dwordx4 %s, v7, %s, s61 offen%s" % (v(48 + 4 * j, 4), SWO, NT))
                lab("L_nowo%d" % j)
                if j < 7:
                    a("s_add_u32 s61, s61, %d" % (8 * 896 if j != 3 else (896 - 24 * 896) & 0xffffffff))
            items.append([f, (lambda: transpose_inplace(48, 112, 113)) if j == 7 else None, None, "opt"])
    for t in range(16):
        if t == args.wpos: weight_items()
        post = "s_add_u32 s62, s62, 32768" if (t & 3 == 3 and t < 15) else None
        def done(t=t):
            lds_set_w(W_PROG, 3 + t // 4)
            if t == 15: stamp(1)
        before = None
        if t == 4: before = lambda: lds_wait("s1c", W_S1C, 4)
        if t == 8: before = lambda: lds_wait("s2c", W_S2C, 1, vSYw)
        items.append([dma(SKV, v(116 + (t & 3)), "s62", 1024 * t, post), done if t & 3 == 3 else None, before])
    if args.wpos >= 16: weight_items()
    nkv = 1 << 30
    n = len(items)
    done = -1
    def complete_upto(k):
        nonlocal done
        for q in range(done + 1, k + 1):
            if items[q][1]: items[q][1]()
        done = max(done, k)
    def youngest_cover(k, N):
        cnt = 0; q = k
        while q >= 0 and cnt < N:
            if len(items[q]) < 4: cnt += 1
            q -= 1
        return q
    for k in range(n):
        if items[k][2]: items[k][2]()
        hold_check()
        items[k][0]()
        Dk = args.dwo if (args.dwo and len(items[k]) == 4) else D
        if args.dww and len_before <= k < len_before + 8: Dk = args.dww
        if k >= D - 1:
            a("s_waitcnt vmcnt(%d)" % (Dk - 1))
            complete_upto(youngest_cover(k, Dk - 1))
    for N in range(max(D, args.dwo, args.dww) - 2, -1, -1):
        a("s_waitcnt vmcnt(%d)" % N)
        complete_upto(youngest_cover(n - 1, N))

def front():
    ROLE[0] = "f"
    c("================ FRONT waves 0..7")
    if args.prio: a("s_setprio %d" % args.prio)
    a("s_barrier")
    nonce_ready()
    if args.loadonly:
        lds_add(W_S1C)
        lds_set_w(W_S2C, 1)
        a("s_endpgm")
    a("s_cmp_ge_u32 %s, 4" % sW)
    a("s_cbranch_scc1 L_nos1")
    c("S1 (waves 0..3): rows 64cs+32blk.., cols 128dh..")
    a("v_and_b32 v5, 1, %s" % vR)
    a("v_mul_u32_u24 v5, 896, v5")
    a("v_lshl_add_u32 v5, %s, 4, v5" % vG)
    a("s_lshl_b32 s46, %s, 1" % sCs)
    a("s_lshr_b32 s47, %s, 1" % sW)
    a("s_add_u32 s46, s46, s47")
    a("s_lshl_b32 s48, s46, 6")
    a("buffer_load_dwordx4 v[8:11], v5, %s, s48 offen" % SX)
    a("s_lshl_b32 s46, %s, 15" % sW)
    a("v_lshlrev_b32 v6, 4, %s" % vLane)
    a("v_add_u32 v6, s46, v6")
    a("s_lshl_b32 s48, %s, 10" % sW)
    a("s_add_u32 s48, s48, %d" % P1)
    a("v_lshlrev_b32 v7, 9, %s" % vR)
    a("v_lshl_add_u32 v7, %s, 7, v7" % vG)
    a("v_add_u32 v7, s48, v7")
    lds_wait("wq0", W_PROG, 1, vSYw)
    for j in range(4):
        a("ds_read_b128 %s, v6 offset:%d" % (v(48 + 4 * j, 4), 4096 + 1024 * j))
    for j in range(4, 8):
        a("ds_read_b128 %s, v6 offset:%d" % (v(48 + 4 * j, 4), 16384 + 4096 + 1024 * (j & 3)))
    a("s_waitcnt vmcnt(0) lgkmcnt(0)")
    stamp(14)
    lds_add(W_S1C)
    block_mfma(48, 8, 88, True)
    a("s_nop 7")
    exec_n2()
    for i in range(8):
        a("ds_write_b128 v7, %s offset:%d" % (v(88 + 4 * i, 4), 16 * i))
    exec_all()
    a("s_waitcnt lgkmcnt(0)")
    lds_add(W_S1P)
    c("waves 0,1: batch b = w: sum the two row blocks, publish 2 x 1KB of tagged granules")
    a("s_cmp_ge_u32 %s, 2" % sW)
    a("s_cbranch_scc1 L_s1done")
    a("v_bfe_u32 v6, %s, 5, 1" % vLane)
    a("v_lshlrev_b32 v6, 10, v6")
    a("v_and_b32 v7, 31, %s" % vLane)
    a("v_lshl_add_u32 v6, v7, 4, v6")
    a("s_lshl_b32 s46, %s, 9" % sW)
    a("s_add_u32 s46, s46, %d" % P1)
    a("v_add_u32 v6, s46, v6")
    a("v_lshlrev_b32 v7, 4, %s" % vLane)
    a("s_lshl_b32 s48, %s, 4" % sP)
    a("s_add_u32 s48, s48, %s" % sH)
    a("s_lshl_b32 s48, s48, 3")
    a("s_add_u32 s48, s48, %s" % sCs)
    a("s_lshl_b32 s48, s48, 12")
    a("s_lshl_b32 s46, %s, 11" % sW)
    a("s_add_u32 s48, s48, s46")
    a("s_add_u32 s48, s48, %d" % Q1)
    a("v_mov_b32 v98, %s" % sN0); a("v_mov_b32 v99, %s" % sN1)
    a("v_mov_b32 v102, %s" % sN0); a("v_mov_b32 v103, %s" % sN1)
    lds_wait("s1p", W_S1P, 4)
    a("ds_read_b128 v[88:91], v6")
    a("ds_read_b128 v[92:95], v6 offset:2048")
    a("s_waitcnt lgkmcnt(0)")
    a("v_add_f32 v96, v88, v92"); a("v_add_f32 v97, v89, v93")
    a("v_add_f32 v100, v90, v94"); a("v_add_f32 v101, v91, v95")
    if args.h1local:
        a("s_add_u32 s46, s48, %d" % (Q1L - Q1))
        a("buffer_store_dwordx4 v[96:99], v7, %s, s46 offen" % SWS)
        a("buffer_store_dwordx4 v[100:103], v7, %s, s46 offen offset:1024" % SWS)
    a("buffer_store_dwordx4 v[96:99], v7, %s, s48 offen sc1" % SWS)
    a("buffer_store_dwordx4 v[100:103], v7, %s, s48 offen offset:1024 sc1" % SWS)
    stamp(15)
    a("s_branch L_s1done")
    lab("L_nos1")
    if args.touch:
        c("pre-touch this workgroup's share of the hand-off regions (brings the lines into the memory-side cache early)")
        a("v_subrev_u32 v5, 256, v0")
        a("v_lshlrev_b32 v6, 4, v5")
        a("s_lshl_b32 s46, s2, 12")
        a("s_add_u32 s47, s46, %d" % Q1)
        a("buffer_load_dwordx4 v[88:91], v6, %s, s47 offen" % SWS)
        a("s_add_u32 s47, s46, %d" % C4)
        a("buffer_load_dwordx4 v[88:91], v6, %s, s47 offen" % SWS)
        a("s_mul_i32 s47, s2, 7168")
        a("s_add_u32 s47, s47, %d" % PO)
        a("buffer_load_dwordx4 v[88:91], v6, %s, s47 offen" % SWS)
        a("buffer_load_dwordx4 v[88:91], v6, %s, s47 offen offset:3072" % SWS)
        a("v_lshlrev_b32 v7, 2, v5")
        a("s_lshl_b32 s46, s2, 10")
        a("buffer_load_dword v88, v7, %s, s46 offen offset:%d" % (SWS, QA))
        a("s_lshl_b32 s46, s2, 8")
        a("s_add_u32 s46, s46, %d" % ST)
        a("v_and_b32 v7, 0xfc, v7")
        a("buffer_load_dword v88, v7, %s, s46 offen" % SWS)
        if args.touch >= 2:
            a("s_lshl_b32 s46, %s, 22" % sP)
            a("s_lshl_b32 s47, %s, 15" % sJ)
            a("s_add_u32 s46, s46, s47")
            a("s_add_u32 s46, s46, %d" % PC)
            for k in range(8):
                a("buffer_load_dwordx4 v[88:91], v6, %s, s46 offen" % SWS)
                a("s_add_u32 s46, s46, 4096")
    c("H1 gather by waves 4..7: thread t = tid-256 -> granule t of each of 7 partials")
    a("v_subrev_u32 v5, 256, v0")
    a("v_lshlrev_b32 v6, 4, v5")
    a("s_lshl_b32 s48, %s, 4" % sP)
    a("s_add_u32 s48, s48, %s" % sH)
    a("s_lshl_b32 s48, s48, 15")
    a("s_add_u32 s48, s48, %d" % Q1)
    for k in range(1, 7): a("s_add_u32 s%d, s48, %d" % ([0, 49, 51, 52, 53, 54, 55][k], 4096 * k))
    a("v_bfe_u32 v4, v5, 7, 1")
    a("v_lshlrev_b32 v4, 9, v4")
    a("v_bfe_u32 v7, v5, 3, 3")
    a("v_lshl_add_u32 v4, v7, 6, v4")
    a("v_bfe_u32 v7, v5, 6, 1")
    a("v_lshl_add_u32 v4, v7, 5, v4")
    a("v_and_b32 v7, 7, v5")
    a("v_lshl_add_u32 v4, v7, 1, v4")
    a("v_add_u32 v4, %d, v4" % QL)
    lds_wait("s1own", W_S1P, 4)
    stamp(11)
    if args.dly1: a("s_sleep %d" % args.dly1)
    if args.h1local:
        a("v_add_u32 v8, %d, v6" % (Q1L - Q1))
        a("v_mov_b32 v9, v6")
        a("v_mov_b32 v6, v8")
    a("s_mov_b32 s47, 0")
    a("s_lshl_b32 s46, %s, 14" % sW)
    a("v_lshlrev_b32 v10, 4, %s" % vLane)
    a("v_add_u32 v10, s46, v10")
    def h1_next():
        c("between attempts: pull w_uk out of the LDS staging as soon as it has landed")
        a("s_cmp_lg_u32 s47, 0")
        a("s_cbranch_scc1 L_h1_ukdone")
        a("ds_read_b32 v121, %s offset:%d" % (vSYw, 4 * W_PROG))
        a("s_waitcnt lgkmcnt(0)")
        a("v_readfirstlane_b32 s46, v121")
        a("s_cmp_lt_u32 s46, 2")
        a("s_cbranch_scc1 L_h1_ukdone")
        for s_ in range(8):
            a("ds_read_b128 %s, v10 offset:%d" % (v(16 + 4 * s_, 4), 8192 + 1024 * s_))
        a("s_waitcnt lgkmcnt(0)")
        lds_set_w(W_S2C, 1)
        a("s_mov_b32 s47, 1")
        lab("L_h1_ukdone")
        if args.h1local:
            c("every 4th attempt reads the write-through copy")
            a("s_and_b32 s46, s59, %d" % args.slowmask)
            a("s_cmp_eq_u32 s46, 1")
            a("s_cselect_b64 vcc, -1, 0")
            a("s_nop 1")
            a("v_cndmask_b32 v6, v8, v9, vcc")
    hold(0, True)
    poll_masked("h1", [(lambda k=k: a("buffer_load_dwordx4 %s, v6, %s, s%d offen sc1" % (v(88 + 4 * k, 4), SWS, [48, 49, 51, 52, 53, 54, 55][k])), list(range(88 + 4 * k, 92 + 4 * k)), 't') for k in range(7)], again=h1_next, slp=args.slp1)
    hold(0, False)
    cnt_stamp(12)
    stamp(2)
    for e in range(2):
        a("v_add_f32 %s, %s, %s" % (v(88 + e), v(88 + e), v(92 + e)))
        a("v_add_f32 %s, %s, %s" % (v(96 + e), v(96 + e), v(100 + e)))
        a("v_add_f32 %s, %s, %s" % (v(104 + e), v(104 + e), v(108 + e)))
        a("v_add_f32 %s, %s, %s" % (v(88 + e), v(88 + e), v(96 + e)))
        a("v_add_f32 %s, %s, %s" % (v(104 + e), v(104 + e), v(112 + e)))
        a("v_add_f32 %s, %s, %s" % (v(88 + e), v(88 + e), v(104 + e)))
    a("v_cvt_pk_bf16_f32 v88, v88, v89")
    a("ds_write_b16 v4, v88")
    a("ds_write_b16_d16_hi v4, v88 offset:16")
    a("s_waitcnt lgkmcnt(0)")
    lds_add(W_Q)
    a("s_branch L_s1done2")
    lab("L_s1done")
    a("s_mov_b32 s47, 0")
    lab("L_s1done2")
    stamp(1)
    c("w_uk operand from LDS staging")
    a("s_lshl_b32 s46, %s, 14" % sW)
    a("v_lshlrev_b32 v7, 4, %s" % vLane)
    a("v_add_u32 v7, s46, v7")
    a("v_and_b32 v6, 1, %s" % vR)
    a("v_lshlrev_b32 v6, 9, v6")
    a("v_lshl_add_u32 v6, %s, 4, v6" % vG)
    a("v_add_u32 v6, %d, v6" % QL)
    a("s_cmp_lg_u32 s47, 0")
    a("s_cbranch_scc1 L_ukdone")
    lds_wait("uk", W_PROG, 2, vSYw)
    for s_ in range(8):
        a("ds_read_b128 %s, v7 offset:%d" % (v(16 + 4 * s_, 4), 8192 + 1024 * s_))
    a("s_waitcnt lgkmcnt(0)")
    lds_set_w(W_S2C, 1)
    lab("L_ukdone")
    lds_wait("q", W_Q, 4)
    stamp(3)
    c("S2")
    for s in range(8):
        a("ds_read_b128 %s, v6 offset:%d" % (v(48 + 4 * s, 4), 64 * s))
    a("v_lshlrev_b32 v6, 16, %s" % vR)
    a("v_lshl_add_u32 v6, %s, 10, v6" % vG)
    a("s_lshl_b32 s48, %s, 17" % sP)
    a("s_lshl_b32 s49, %s, 13" % sCs)
    a("s_add_u32 s48, s48, s49")
    a("s_lshl_b32 s49, %s, 6" % sH)
    a("s_add_u32 s48, s48, s49")
    a("s_and_b32 s49, %s, 1" % sW)
    a("s_lshl_b32 s49, s49, 12")
    a("s_add_u32 s48, s48, s49")
    a("s_lshr_b32 s49, %s, 1" % sW)
    a("s_lshl_b32 s49, s49, 4")
    a("s_add_u32 s48, s48, s49")
    a("s_mov_b32 s49, 0x3db8aa3b")
    a("s_waitcnt lgkmcnt(0)")
    for s in range(8):
        a("v_mfma_f32_16x16x32_bf16 v[88:91], %s, %s, %s" % (v(16 + 4 * s, 4), v(48 + 4 * s, 4), "0" if s == 0 else "v[88:91]"))
    a("s_nop 7")
    for k in range(4):
        a("v_mul_f32 %s, s49, %s" % (v(88 + k), v(88 + k)))
    a("v_cvt_pk_bf16_f32 v88, v88, v89")
    a("v_cvt_pk_bf16_f32 v89, v90, v91")
    a("v_mov_b32 v90, %s" % sN0)
    a("v_mov_b32 v91, %s" % sN1)
    exec_n2()
    a("buffer_store_dwordx4 v[88:91], v6, %s, s48 offen sc1" % SWS)
    exec_all()
    stamp(4)
    c("================ S3 address setup")
    a("s_lshl_b32 s51, %s, 14" % sW)
    a("v_and_b32 v8, 7, %s" % vR)
    a("v_lshlrev_b32 v8, 1, v8")
    a("v_lshrrev_b32 v9, 3, %s" % vR)
    a("v_or_b32 v8, v8, v9")
    a("v_lshlrev_b32 v9, 2, %s" % vG)
    a("v_xor_b32 v8, v8, v9")
    a("v_lshlrev_b32 v9, 8, %s" % vR)
    a("v_add_u32 v9, s51, v9")
    for s in range(4):
        a("v_xor_b32 v10, %d, v8" % s)
        a("v_lshl_add_u32 %s, v10, 4, v9" % v(4 + s))
    a("v_lshrrev_b32 v112, 2, %s" % vR)
    a("v_lshl_add_u32 v112, %s, 2, v112" % vG)
    a("v_and_b32 v113, 7, v112")
    a("v_lshlrev_b32 v113, 1, v113")
    a("v_lshrrev_b32 v114, 3, v112")
    a("v_or_b32 v113, v113, v114")
    a("v_bfe_u32 v114, %s, 1, 1" % vR)
    a("v_xor_b32 v113, v113, v114")
    a("v_lshlrev_b32 v113, 4, v113")
    a("v_and_b32 v114, 1, %s" % vR)
    a("v_lshl_add_u32 v113, v114, 3, v113")
    a("v_lshl_add_u32 v113, v112, 8, v113")
    a("v_add_u32 v113, s51, v113")
    for t in range(8):
        a("v_xor_b32 %s, %d, v113" % (v(8 + t), 32 * t))
    a("v_lshlrev_b32 v113, 4, %s" % vLane)
    a("v_add_u32 v114, 65536, v113")
    a("v_add_u32 v112, s51, v113")
    c("H2 gather: 8 x 1KB tagged granules; lane (h,g) gets c = 32g + 4*s2..")
    a("s_lshr_b32 s48, %s, 6" % sJ)
    a("s_lshl_b32 s49, %s, 1" % sP)
    a("s_add_u32 s48, s48, s49")
    a("s_lshl_b32 s48, s48, 3")
    a("s_add_u32 s48, s48, %s" % sW)
    a("s_lshl_b32 s48, s48, 13")
    a("s_add_u32 s49, s48, 4096")
    a("v_lshlrev_b32 v124, 6, %s" % vR)
    a("v_lshl_add_u32 v124, %s, 4, v124" % vG)
    if args.dly2: a("s_sleep %d" % args.dly2)
    if args.h2prog: lds_wait("h2p", W_PROG, args.h2prog, vSYw)
    hold(1, True)
    poll_masked("h2", [(lambda k=k: a("buffer_load_dwordx4 %s, v124, %s, %s offen offset:%d sc1" % (v(80 + 4 * k, 4), SWS, "s48" if k < 4 else "s49", QA + 1024 * (k & 3))), list(range(80 + 4 * k, 84 + 4 * k)), 't') for k in range(8)], slp=args.sleep2)
    hold(1, False)
    cnt_stamp(13)
    for k in range(8):
        a("v_mov_b32 %s, %s" % (v(16 + 2 * k), v(80 + 4 * k)))
        a("v_mov_b32 %s, %s" % (v(17 + 2 * k), v(81 + 4 * k)))
    lds_add(W_GO2)
    stamp(5)
    for T in range(4):
        lds_wait("tile%d" % T, W_PROG, T + 3, vSYw)
        for s_ in range(4):
            a("ds_read_b128 %s, %s offset:%d" % (v(32 + 4 * s_, 4), v(4 + s_), 4096 * T))
        if T == 1:
            c("V^T operands for u=0 (tiles 0,1) -> v[80:111]")
            for t in range(4):
                for jh in range(2):
                    a("ds_read_b64_tr_b16 %s, %s offset:%d" % (v(80 + 4 * t + 2 * jh, 2), v(8 + t), 4096 * jh))
            a("s_waitcnt lgkmcnt(8)")
        elif T == 2:
            for t in range(4, 8):
                for jh in range(2):
                    a("ds_read_b64_tr_b16 %s, %s offset:%d" % (v(80 + 4 * t + 2 * jh, 2), v(8 + t), 4096 * jh))
            a("s_waitcnt lgkmcnt(8)")
        else:
            a("s_waitcnt lgkmcnt(0)")
        for s_ in range(4):
            a("v_mfma_f32_16x16x32_bf16 %s, %s, %s, %s" % (v(64 + 4 * T, 4), v(32 + 4 * s_, 4), v(16 + 4 * s_, 4), "0" if s_ == 0 else v(64 + 4 * T, 4)))
    c("partial scores of all 4 tiles -> own slab's tile-0 region (fully consumed)")
    a("s_nop 7")
    for T in range(4):
        a("ds_write_b128 v112, %s offset:%d" % (v(64 + 4 * T, 4), 1024 * T))
    a("s_waitcnt lgkmcnt(0)")
    lds_add(W_SC)
    lds_wait("sc", W_SC, 8)
    stamp(6)
    c("reduce-scatter: wave w sums (tile w>>1, reg pair w&1) over the 8 partials; then all-gather")
    a("s_lshr_b32 s46, %s, 1" % sW)
    a("s_lshl_b32 s46, s46, 10")
    a("s_and_b32 s47, %s, 1" % sW)
    a("s_lshl_b32 s47, s47, 3")
    a("s_add_u32 s46, s46, s47")
    a("v_add_u32 v115, s46, v113")
    a("v_add_u32 v116, s46, v114")
    for k in range(8):
        a("ds_read_b64 %s, %s offset:%d" % (v(16 + 2 * k, 2), "v115" if k < 4 else "v116", 16384 * (k & 3)))
    a("v_add_u32 v117, %d, v115" % X0)
    a("v_add_u32 v118, %d, v113" % X0)
    a("s_waitcnt lgkmcnt(0)")
    for e in range(2):
        a("v_add_f32 %s, %s, %s" % (v(16 + e), v(16 + e), v(18 + e)))
        a("v_add_f32 %s, %s, %s" % (v(20 + e), v(20 + e), v(22 + e)))
        a("v_add_f32 %s, %s, %s" % (v(24 + e), v(24 + e), v(26 + e)))
        a("v_add_f32 %s, %s, %s" % (v(28 + e), v(28 + e), v(30 + e)))
        a("v_add_f32 %s, %s, %s" % (v(16 + e), v(16 + e), v(20 + e)))
        a("v_add_f32 %s, %s, %s" % (v(24 + e), v(24 + e), v(28 + e)))
        a("v_add_f32 %s, %s, %s" % (v(16 + e), v(16 + e), v(24 + e)))
    a("ds_write_b64 v117, v[16:17]")
    a("s_waitcnt lgkmcnt(0)")
    lds_add(W_SC + 1)
    lds_wait("sc2", W_SC + 1, 8)
    for T in range(4):
        a("ds_read_b128 %s, v118 offset:%d" % (v(64 + 4 * T, 4), 1024 * T))
    a("s_waitcnt lgkmcnt(0)")
    a("v_max3_f32 v48, v64, v65, v66")
    for k in range(67, 79, 2):
        a("v_max3_f32 v48, v48, %s, %s" % (v(k), v(k + 1)))
    a("v_max_f32 v48, v48, v79")
    for op in ("v_permlane32_swap_b32", "v_permlane16_swap_b32"):
        a("v_mov_b32 v49, v48")
        a("s_nop 1")
        a("%s v48, v49" % op)
        a("s_nop 1")
        a("v_max_f32 v48, v48, v49")
    for k in range(16):
        a("v_sub_f32 %s, %s, v48" % (v(64 + k), v(64 + k)))
    for k in range(16):
        a("v_exp_f32 %s, %s" % (v(64 + k), v(64 + k)))
    a("s_nop 0")
    for u in range(2):
        for q in range(4):
            a("v_cvt_pk_bf16_f32 %s, %s, %s" % (v(52 + 4 * u + q), v(64 + 8 * u + 2 * q), v(64 + 8 * u + 2 * q + 1)))
    a("s_nop 1")
    for t in range(8):
        a("v_mfma_f32_16x16x32_bf16 %s, %s, v[52:55], 0" % (v(16 + 4 * t, 4), v(80 + 4 * t, 4)))
        for jh in range(2):
            a("ds_read_b64_tr_b16 %s, %s offset:%d" % (v(80 + 4 * t + 2 * jh, 2), v(8 + t), 8192 + 4096 * jh))
    c("row sum while the u=1 operands arrive")
    a("v_add_f32 v49, v64, v65")
    for k in range(66, 80):
        a("v_add_f32 v49, v49, %s" % v(k))
    for op in ("v_permlane32_swap_b32", "v_permlane16_swap_b32"):
        a("v_mov_b32 v50, v49")
        a("s_nop 1")
        a("%s v49, v50" % op)
        a("s_nop 1")
        a("v_add_f32 v49, v49, v50")
    if args.pcl == 0:
        a("v_lshlrev_b32 v6, 18, %s" % vR)
        a("v_lshl_add_u32 v6, %s, 4, v6" % vG)
        a("s_lshl_b32 s48, %s, 22" % sP)
        a("s_lshl_b32 s49, %s, 15" % sW)
        a("s_add_u32 s48, s48, s49")
        a("s_lshl_b32 s49, %s, 6" % sJ)
        a("s_add_u32 s48, s48, s49")
        a("s_add_u32 s48, s48, %d" % PC)
    else:
        a("v_lshlrev_b32 v6, 6, %s" % vR)
        a("v_lshl_add_u32 v6, %s, 4, v6" % vG)
        a("s_lshl_b32 s48, %s, 22" % sP)
        a("s_lshl_b32 s49, %s, 15" % sJ)
        a("s_add_u32 s48, s48, s49")
        a("s_lshl_b32 s49, %s, 12" % sW)
        a("s_add_u32 s48, s48, s49")
        a("s_add_u32 s48, s48, %d" % PC)
    a("s_waitcnt lgkmcnt(0)")
    for t in range(8):
        a("v_mfma_f32_16x16x32_bf16 %s, %s, v[56:59], %s" % (v(16 + 4 * t, 4), v(80 + 4 * t, 4), v(16 + 4 * t, 4)))
    hold(2, True)
    a("s_nop 3")
    for up in range(4):
        for q in range(4):
            a("v_cvt_pk_bf16_f32 %s, %s, %s" % (v(80 + 4 * up + q), v(16 + 8 * up + 2 * q), v(16 + 8 * up + 2 * q + 1)))
        a("buffer_store_dwordx4 %s, v6, %s, s48 offen sc1" % (v(80 + 4 * up, 4), SWS))
        a("s_add_u32 s48, s48, %d" % (8192 if args.pcl == 0 else 1024))
    c("payload addresses for the H3 gather: wave w' = (u' = w'>>1, b = w'&1)")
    a("s_lshl_b32 s52, %s, 22" % sP)
    a("s_and_b32 s49, %s, 1" % sW)
    a("s_lshl_b32 s49, s49, 21")
    a("s_add_u32 s52, s52, s49")
    a("s_lshl_b32 s49, %s, 2" % sCs)
    a("s_lshr_b32 s53, %s, 1" % sW)
    a("s_add_u32 s49, s49, s53")
    a("s_lshl_b32 s49, s49, 10")
    a("s_add_u32 s52, s52, s49")
    a("s_lshl_b32 s49, %s, 6" % sH)
    a("s_add_u32 s52, s52, s49")
    a("s_add_u32 s52, s52, %d" % PC)
    a("v_lshrrev_b32 v5, 2, %s" % vLane)
    a("v_lshlrev_b32 v7, 2, v5")
    a("v_lshlrev_b32 v5, 15, v5")
    a("v_and_b32 v4, 3, %s" % vLane)
    a("v_lshl_add_u32 v5, v4, 4, v5")
    a("s_and_b32 s49, %s, 1" % sW)
    a("s_lshl_b32 s49, s49, 8")
    a("s_add_u32 s49, s49, %d" % SCL)
    a("v_add_u32 v7, s49, v7")
    a("v_lshlrev_b32 v6, 4, %s" % vLane)
    a("s_waitcnt vmcnt(0)")
    hold(2, False)
    lds_add(W_PCD)
    stamp(7)
    a("s_cmp_lg_u32 %s, 0" % sW)
    a("s_cbranch_scc1 L_s3_nostat")
    c("wave 0: all partial-ctx stores drained -> stats granules {m,l,nonce} double as the H3 flags")
    a("v_lshlrev_b32 v8, 11, %s" % vR)
    a("s_lshl_b32 s48, %s, 15" % sP)
    a("s_lshl_b32 s49, %s, 4" % sJ)
    a("s_add_u32 s48, s48, s49")
    a("s_add_u32 s48, s48, %d" % ST)
    a("v_mov_b32 v50, %s" % sN0)
    a("v_mov_b32 v51, %s" % sN1)
    lds_wait("pcd", W_PCD, 8)
    a("s_mov_b64 exec, 0xffff")
    a("buffer_store_dwordx4 v[48:51], v8, %s, s48 offen sc1" % SWS)
    exec_all()
    lab("L_s3_nostat")
    a("s_cmp_lg_u32 %s, 7" % sW)
    a("s_cbranch_scc1 L_nopoll3")
    c("wave 7: poll the 128 stats granules of head h; lane l has producers l (b=0) and 64+l (b=1)")
    a("s_lshl_b32 s48, %s, 4" % sP)
    a("s_add_u32 s48, s48, %s" % sH)
    a("s_lshl_b32 s48, s48, 11")
    a("s_add_u32 s48, s48, %d" % ST)
    poll_masked("h3s", [(lambda k=k: a("buffer_load_dwordx4 %s, v6, %s, s48 offen offset:%d sc1" % (v(64 + 4 * k, 4), SWS, 1024 * k)), list(range(64 + 4 * k, 68 + 4 * k)), 't') for k in range(2)], slp=args.sleep3, adapt=args.adapt)
    lds_add(W_GO3)
    lab("L_nopoll3")
    lds_wait("go3", W_GO3, 1)
    stamp(8)
    for k in range(4):
        a("buffer_load_dwordx4 %s, v5, %s, s52 offen sc1" % (v(16 + 4 * k, 4), SWS))
        a("s_add_u32 s52, s52, %d" % (16 * 32768))
    a("s_cmp_lg_u32 %s, 7" % sW)
    a("s_cbranch_scc1 L_noscl")
    c("wave 7: scales 2^(m-M)/L for all 128 producers -> LDS")
    for b in range(2):
        m = 64 + 4 * b
        a("v_mov_b32 v80, %s" % v(m))
        for q in ("quad_perm:[1,0,3,2]", "quad_perm:[2,3,0,1]"):
            a("s_nop 1")
            a("v_max_f32_dpp v80, v80, v80 %s row_mask:0xf bank_mask:0xf" % q)
        xlane_reduce_2to5(80, 84, "v_max_f32")
        a("v_sub_f32 %s, %s, v80" % (v(m), v(m)))
        a("v_exp_f32 %s, %s" % (v(m), v(m)))
        a("s_nop 0")
        a("v_mul_f32 v81, %s, %s" % (v(m), v(m + 1)))
        for q in ("quad_perm:[1,0,3,2]", "quad_perm:[2,3,0,1]"):
            a("s_nop 1")
            a("v_add_f32_dpp v81, v81, v81 %s row_mask:0xf bank_mask:0xf" % q)
        xlane_reduce_2to5(81, 84, "v_add_f32")
        a("v_rcp_f32 v81, v81")
        a("s_nop 0")
        a("v_mul_f32 %s, %s, v81" % (v(m), v(m)))
    a("v_lshlrev_b32 v8, 2, %s" % vLane)
    a("v_add_u32 v8, %d, v8" % SCL)
    a("ds_write_b32 v8, v64")
    a("ds_write_b32 v8, v68 offset:256")
    a("s_waitcnt lgkmcnt(0)")
    lds_add(W_SCL)
    lab("L_noscl")
    lds_wait("scl", W_SCL, 1)
    for k in range(4):
        a("ds_read_b32 %s, v7 offset:%d" % (v(64 + k), 64 * k))
    a("v_and_b32 v6, 3, %s" % vLane)
    a("v_lshlrev_b32 v6, 4, v6")
    a("v_bfe_u32 v7, %s, 5, 1" % vLane)
    a("v_lshl_add_u32 v6, v7, 3, v6")
    a("v_bfe_u32 v7, %s, 4, 1" % vLane)
    a("v_lshl_add_u32 v6, v7, 2, v6")
    a("s_lshl_b32 s48, %s, 6" % sW)
    a("s_add_u32 s48, s48, %d" % CL)
    a("v_add_u32 v6, s48, v6")
    a("s_lshr_b32 s46, %s, 1" % sW)
    a("s_lshl_b32 s46, s46, 2")
    a("s_add_u32 s46, s46, %d" % SY)
    a("v_mov_b32 v122, s46")
    a("s_waitcnt vmcnt(0) lgkmcnt(0)")
    stamp(9)
    for k in range(4):
        for q in range(4):
            a("v_lshlrev_b32 v84, 16, %s" % v(16 + 4 * k + q))
            a("v_and_b32 v85, 0xffff0000, %s" % v(16 + 4 * k + q))
            op = "v_mul_f32" if k == 0 else "v_fmac_f32"
            a("%s %s, v84, %s" % (op, v(88 + 2 * q), v(64 + k)))
            a("%s %s, v85, %s" % (op, v(88 + 2 * q + 1), v(64 + k)))
    a("s_nop 1")
    for j in range(4):
        a("v_permlane32_swap_b32 %s, %s" % (v(88 + j), v(92 + j)))
    a("s_nop 1")
    for j in range(4):
        a("v_add_f32 %s, %s, %s" % (v(88 + j), v(88 + j), v(92 + j)))
    a("s_nop 1")
    for j in range(2):
        a("v_permlane16_swap_b32 %s, %s" % (v(88 + j), v(90 + j)))
    a("s_nop 1")
    for j in range(2):
        a("v_add_f32 %s, %s, %s" % (v(88 + j), v(88 + j), v(90 + j)))
    for ror in (4, 8):
        a("s_nop 1")
        for j in range(2):
            a("v_add_f32_dpp %s, %s, %s row_ror:%d row_mask:0xf bank_mask:0xf" % (v(88 + j), v(88 + j), v(88 + j), ror))
    a("v_cvt_pk_bf16_f32 v88, v88, v89")
    a("s_mov_b32 exec_lo, 0x000f000f"); a("s_mov_b32 exec_hi, 0x000f000f")
    a("ds_write_b32 v6, v88")
    exec_all()
    a("s_waitcnt lgkmcnt(0)")
    a("v_mov_b32 v121, 1")
    a("s_mov_b64 exec, 1")
    a("ds_add_u32 v122, v121 offset:%d" % (4 * W_CL))
    exec_all()
    stamp(10)
    a("s_endpgm")

def back():
    ROLE[0] = "b"
    c("================ BACK waves 8..15")
    bulk_loader()
    nonce_ready()
    stamp(2)
    if args.loadonly: a("s_endpgm")
    a("v_and_b32 v6, 1, %s" % vR)
    a("v_lshlrev_b32 v6, 6, v6")
    a("v_lshl_add_u32 v6, %s, 4, v6" % vG)
    a("s_lshr_b32 s46, %s, 1" % sWb)
    a("s_lshl_b32 s48, s46, 7")
    a("s_add_u32 s48, s48, %d" % CL)
    a("v_add_u32 v6, s48, v6")
    a("s_lshl_b32 s46, s46, 2")
    a("s_add_u32 s46, s46, %d" % SY)
    a("v_mov_b32 v122, s46")
    a("v_lshlrev_b32 v8, 9, %s" % vR)
    a("v_lshl_add_u32 v8, %s, 7, v8" % vG)
    a("s_lshl_b32 s48, %s, 10" % sWb)
    a("s_add_u32 s48, s48, %d" % P4)
    a("v_add_u32 v8, s48, v8")
    c("H4 addresses")
    a("s_lshl_b32 s52, %s, 4" % sP)
    a("s_add_u32 s52, s52, %s" % sH)
    a("s_lshl_b32 s52, s52, 15")
    lds_wait("cl", W_CL, 2, "v122")
    stamp(3)
    c("================ S4")
    a("ds_read_b128 v[4:7], v6")
    a("s_waitcnt lgkmcnt(0)")
    for i in range(8):
        a("v_mfma_f32_16x16x32_bf16 %s, %s, v[4:7], 0" % (v(80 + 4 * i, 4), v(16 + 4 * i, 4)))
    a("s_nop 7")
    exec_n2()
    for i in range(8):
        a("ds_write_b128 v8, %s offset:%d" % (v(80 + 4 * i, 4), 16 * i))
    exec_all()
    a("s_waitcnt lgkmcnt(0)")
    a("s_barrier")
    a("s_cmp_ge_u32 %s, 4" % sWb)
    a("s_cbranch_scc1 L_s5")
    c("waves 0..3: thread t<256 = granule (dhalf,g,b,i,half): sum 4 k-blocks, publish both copies")
    a("v_subrev_u32 v5, 512, v0")
    a("v_bfe_u32 v6, v5, 7, 1")
    a("v_lshlrev_b32 v6, 10, v6")
    a("v_bfe_u32 v7, v5, 4, 1")
    a("v_lshl_add_u32 v6, v7, 9, v6")
    a("v_bfe_u32 v7, v5, 5, 2")
    a("v_lshl_add_u32 v6, v7, 7, v6")
    a("v_and_b32 v7, 15, v5")
    a("v_lshl_add_u32 v6, v7, 3, v6")
    a("v_add_u32 v6, %d, v6" % P4)
    for k in range(4):
        a("ds_read_b64 %s, v6 offset:%d" % (v(16 + 2 * k, 2), 2048 * k))
    a("v_lshlrev_b32 v5, 4, v5")
    a("s_lshl_b32 s48, %s, 12" % sCs)
    a("s_add_u32 s48, s48, s52")
    a("s_add_u32 s49, s48, %d" % C4L)
    a("s_add_u32 s48, s48, %d" % C4)
    a("v_mov_b32 v26, %s" % sN0); a("v_mov_b32 v27, %s" % sN1)
    a("s_waitcnt lgkmcnt(0)")
    a("v_add_f32 v16, v16, v18"); a("v_add_f32 v17, v17, v19")
    a("v_add_f32 v20, v20, v22"); a("v_add_f32 v21, v21, v23")
    a("v_add_f32 v24, v16, v20"); a("v_add_f32 v25, v17, v21")
    a("buffer_store_dwordx4 v[24:27], v5, %s, s49 offen" % SWS)
    a("buffer_store_dwordx4 v[24:27], v5, %s, s48 offen sc1" % SWS)
    stamp(4)
    a("s_endpgm")
    lab("L_s5")
    c("================ waves 4..7: H4 gather (8 producers x 512B for d-slice cs), S5 for m-block mb")
    a("v_lshrrev_b32 v6, 5, %s" % vLane)
    a("v_lshlrev_b32 v6, 12, v6")
    a("v_and_b32 v7, 31, %s" % vLane)
    a("v_lshl_add_u32 v6, v7, 4, v6")
    a("v_add_u32 v8, %d, v6" % (C4L - C4))
    a("v_mov_b32 v9, v6")
    a("v_mov_b32 v6, v8")
    a("s_lshl_b32 s48, %s, 9" % sCs)
    a("s_add_u32 s48, s48, s52")
    a("s_add_u32 s48, s48, %d" % C4)
    for k in range(1, 4): a("s_add_u32 s%d, s48, %d" % ([0, 49, 51, 53][k], 8192 * k))
    a("s_and_b32 s46, %s, 3" % sWb)
    a("s_lshl_b32 s47, s46, 7")
    a("s_add_u32 s47, s47, %d" % CB)
    a("v_lshlrev_b32 v10, 2, v7")
    a("v_add_u32 v10, s47, v10")
    a("v_and_b32 v11, 1, %s" % vR)
    a("v_lshlrev_b32 v11, 6, v11")
    a("v_lshl_add_u32 v11, %s, 4, v11" % vG)
    a("v_add_u32 v11, s47, v11")
    a("s_lshl_b32 s47, s46, 10")
    a("s_add_u32 s47, s47, %d" % P5)
    a("v_lshlrev_b32 v12, 9, %s" % vR)
    a("v_lshl_add_u32 v12, %s, 7, v12" % vG)
    a("v_add_u32 v12, s47, v12")
    a("v_lshlrev_b32 v13, 4, %s" % vLane)
    a("v_add_u32 v13, s47, v13")
    a("s_lshl_b32 s47, s46, 5")
    a("v_add_u32 v14, s47, v7")
    a("v_cmp_gt_u32 vcc, 112, v14")
    a("v_lshrrev_b32 v15, 5, %s" % vLane)
    a("v_mul_u32_u24 v15, 112, v15")
    a("v_add_u32 v14, v14, v15")
    a("v_lshlrev_b32 v14, %d, v14" % (4 if args.pol else 5))
    a("v_mov_b32 v15, 0x7fff0000")
    a("v_cndmask_b32 v14, v15, v14, vcc")
    a("s_lshl_b32 s54, %s, 7" % sP)
    a("s_add_u32 s54, s54, %s" % sJ)
    a("s_mul_i32 s54, s54, 7168")
    a("s_add_u32 s54, s54, %d" % PO)
    if args.dly4: a("s_sleep %d" % args.dly4)
    def h4_next():
        a("s_and_b32 s46, s59, %d" % args.slowmask)
        a("s_cmp_eq_u32 s46, 1")
        a("s_cselect_b64 vcc, -1, 0")
        a("s_nop 1")
        a("v_cndmask_b32 v6, v8, v9, vcc")
    poll_masked("h4", [(lambda k=k: a("buffer_load_dwordx4 %s, v6, %s, s%d offen sc1" % (v(16 + 4 * k, 4), SWS, [48, 49, 51, 53][k])), list(range(16 + 4 * k, 20 + 4 * k)), 't') for k in range(4)], again=h4_next, slp=args.slp1)
    stamp(5)
    for e in range(2):
        a("v_add_f32 %s, %s, %s" % (v(16 + e), v(16 + e), v(20 + e)))
        a("v_add_f32 %s, %s, %s" % (v(24 + e), v(24 + e), v(28 + e)))
        a("v_add_f32 %s, %s, %s" % (v(16 + e), v(16 + e), v(24 + e)))
        a("v_mov_b32 v20, %s" % v(16 + e))
        a("s_nop 1")
        a("v_permlane32_swap_b32 %s, v20" % v(16 + e))
        a("s_nop 1")
        a("v_add_f32 %s, %s, v20" % (v(16 + e), v(16 + e)))
    a("v_cvt_pk_bf16_f32 v16, v16, v17")
    a("ds_write_b32 v10, v16")
    a("s_waitcnt lgkmcnt(0)")
    a("ds_read_b128 v[4:7], v11")
    a("s_waitcnt lgkmcnt(0)")
    for i in range(8):
        a("v_mfma_f32_16x16x32_bf16 %s, %s, v[4:7], 0" % (v(80 + 4 * i, 4), v(48 + 4 * i, 4)))
    a("v_mov_b32 v34, %s" % sN0); a("v_mov_b32 v35, %s" % sN1)
    a("v_mov_b32 v38, %s" % sN0); a("v_mov_b32 v39, %s" % sN1)
    a("s_nop 5")
    exec_n2()
    for i in range(8):
        a("ds_write_b128 v12, %s offset:%d" % (v(80 + 4 * i, 4), 16 * i))
    exec_all()
    a("s_waitcnt lgkmcnt(0)")
    a("ds_read_b128 v[16:19], v13")
    a("s_waitcnt lgkmcnt(0)")
    a("v_mov_b32 v32, v16"); a("v_mov_b32 v33, v17"); a("v_mov_b32 v36, v18"); a("v_mov_b32 v37, v19")
    a("buffer_store_dwordx4 v[32:35], v14, %s, s54 offen sc1" % SWS)
    a("buffer_store_dwordx4 v[36:39], v14, %s, s54 offen offset:%d sc1" % (SWS, 3584 if args.pol else 16))
    stamp(6)
    a("s_cmp_lg_u32 %s, 7" % sWb)
    a("s_cbranch_scc1 L_end")
    a("s_cmp_ge_u32 %s, 56" % sJ)
    a("s_cbranch_scc1 L_end")
    FINAL[0] = True
    c("lane = (producer sub 8, granule 8); 16 loads x 8 producers; 128B per producer")
    a("v_lshrrev_b32 v6, 3, %s" % vLane)
    a("v_mul_u32_u24 v6, 7168, v6")
    a("v_and_b32 v7, 7, %s" % vLane)
    if args.pol:
        a("v_and_b32 v8, 1, v7")
        a("v_mul_u32_u24 v8, 3584, v8")
        a("v_add_u32 v6, v6, v8")
        a("v_lshrrev_b32 v8, 1, v7")
        a("v_lshl_add_u32 v6, v8, 4, v6")
    else:
        a("v_lshl_add_u32 v6, v7, 4, v6")
    a("s_mul_i32 s48, %s, %d" % (sP, 128 * 7168))
    a("s_lshl_b32 s49, %s, %d" % (sJ, 6 if args.pol else 7))
    a("s_add_u32 s48, s48, s49")
    a("s_add_u32 s48, s48, %d" % PO)
    a("s_cmp_ge_u32 %s, 28" % sJ)
    a("s_cselect_b32 s49, 28, 0")
    a("s_cselect_b32 s51, 896, 0")
    a("s_sub_u32 s49, %s, s49" % sJ)
    a("s_lshl_b32 s49, s49, 4")
    a("s_and_b32 s52, s49, 0xffe0")
    a("s_lshr_b32 s49, s49, 2")
    a("s_and_b32 s49, s49, 7")
    a("s_add_u32 s52, s52, s49")
    a("s_add_u32 s52, s52, s51")
    a("s_mul_i32 s49, %s, 448" % sP)
    a("s_add_u32 s52, s52, s49")
    a("s_lshl_b32 s52, s52, 1")
    a("v_lshrrev_b32 v8, 1, v7")
    a("v_lshlrev_b32 v8, 1, v8")
    a("v_and_b32 v7, 1, v7")
    a("v_lshl_add_u32 v7, v7, 5, v8")
    def ld5(k):
        a("s_add_u32 s49, s48, %d" % (8 * 7168 * k))
        a("buffer_load_dwordx4 %s, v6, %s, s49 offen sc1" % (v(16 + 4 * k, 4), SWS))
    d5 = args.dly5
    while d5 > 0:
        a("s_sleep %d" % min(d5, 127)); d5 -= 127
    poll_masked("h5", [(lambda k=k: ld5(k), list(range(16 + 4 * k, 20 + 4 * k)), 't') for k in range(16)], slp=args.sleep5)
    stamp(7)
    for st in (8, 4, 2, 1):
        for k in range(st):
            for e in range(2):
                a("v_add_f32 %s, %s, %s" % (v(16 + 4 * k + e), v(16 + 4 * k + e), v(16 + 4 * (k + st) + e)))
    for e in range(2):
        a("s_nop 1")
        a("v_add_f32_dpp %s, %s, %s row_ror:8 row_mask:0xf bank_mask:0xf" % (v(16 + e), v(16 + e), v(16 + e)))
        for pop in ("v_permlane16_swap_b32", "v_permlane32_swap_b32"):
            a("v_mov_b32 v20, %s" % v(16 + e))
            a("s_nop 1")
            a("%s %s, v20" % (pop, v(16 + e)))
            a("s_nop 1")
            a("v_add_f32 %s, %s, v20" % (v(16 + e), v(16 + e)))
    a("v_cvt_pk_bf16_f32 v16, v16, v17")
    a("s_mov_b64 exec, 0xff")
    a("buffer_store_short v16, v7, %s, s52 offen" % SOUT)
    a("buffer_store_short_d16_hi v16, v7, %s, s52 offen offset:16" % SOUT)
    a("s_cmp_lg_u32 %s, 0" % sJ)
    a("s_cbranch_scc1 L_noep")
    c("advance the epoch word for a later launch on the same workspace")
    a("s_lshl_b32 s46, %s, 7" % sP)
    a("s_add_u32 s46, s46, %d" % EP)
    a("v_mov_b32 v20, %s" % sN0)
    a("v_mov_b32 v21, %s" % sN1)
    a("v_mov_b32 v22, 0")
    a("s_mov_b64 exec, 1")
    a("buffer_store_dwordx2 v[20:21], v22, %s, s46 offen sc1" % SWS)
    lab("L_noep")
    exec_all()
    stamp(8)

hdr = [l for l in open("concat_heads__compressed_kv_cla__compressed_kv_cla__decode.s.ref").read().split("\n") if l.startswith(";") and "@launch" not in l]
out.extend(hdr)
out.append("; @launch grid=(256,1,1) block=(1024,1,1) lds=%d" % LDS_BYTES)
out.extend("""; ---------------------------------------------------------------------------------------------
; MLA decode with weight absorption (generated by exp/gen9.py), one persistent launch, 1 WG per CU.
;   S1 q = x.Wq | S2 q_abs = q.Wuk^T | S3 flash-decoding over c_kv (true running max per split,
;   exact rescale at combine) | S4 ctx = ctx_c.Wuv | S5 out = ctx.Wo | cross-WG sum.
;   waves 8..15: paced input stream (LDS-DMA / registers), S4, S5.   waves 0..7: S1, S2, S3, gathers.
;   Hand-offs between workgroups go through d_ws with write-through stores; payloads/flags carry a
;   64-bit launch nonce (epoch word found in d_ws + 1) so stale words of earlier launches never match.
;   Same-L2 copies (plain stores) are only a faster path; the write-through copy is always there too.
;   Every spin is bounded.  s_sleep is used only as poll back-off.
; ---------------------------------------------------------------------------------------------""".split("\n"))
out.extend(['.amdgcn_target "amdgcn-amd-amdhsa--gfx950"', ".text"])
out.extend([".globl %s" % KN, ".p2align 8", ".type %s,@function" % KN, KN + ":"])
prologue(256)
stamp(0)
a("s_cmp_ge_u32 %s, 8" % sW)
a("s_cbranch_scc1 L_back")
front()
lab("L_back")
back()
lab("L_end"); a("s_endpgm")
out.extend(['.section .rodata,"a"', ".p2align 6", ".amdhsa_kernel %s" % KN,
    "  .amdhsa_next_free_vgpr 128", "  .amdhsa_next_free_sgpr 96", "  .amdhsa_accum_offset 128",
    "  .amdhsa_group_segment_fixed_size 0", "  .amdhsa_kernarg_size 120", "  .amdhsa_user_sgpr_count 2",
    "  .amdhsa_user_sgpr_kernarg_segment_ptr 1", "  .amdhsa_system_sgpr_workgroup_id_x 1", ".end_amdhsa_kernel"])
txt = "\n".join(out)
import re
if args.stp != "sc1":
    txt = re.sub(r"(buffer_store_\w+ [^\n]*) sc1", lambda m: m.group(1) + " " + args.stp.replace("_", " "), txt)
if args.ldp != "sc1":
    txt = re.sub(r"(buffer_load_\w+ [^\n]*) sc1", lambda m: m.group(1) + " " + args.ldp.replace("_", " "), txt)
print(txt)
```

```python
import sys, argparse
ap = argparse.ArgumentParser()
ap.add_argument("--stamp", type=int, default=0)
ap.add_argument("--spin", type=int, default=200000)
ap.add_argument("--sleep", type=int, default=4)
ap.add_argument("--ntq", type=int, default=1)
ap.add_argument("--depth", type=int, default=3)
ap.add_argument("--depth2", type=int, default=0)
ap.add_argument("--h1local", type=int, default=1)
ap.add_argument("--sleep3", type=int, default=4)
ap.add_argument("--sleep5", type=int, default=4)
ap.add_argument("--dly5", type=int, default=0)
ap.add_argument("--sleep2", type=int, default=8)
ap.add_argument("--stp", default="sc1")
ap.add_argument("--ldp", default="sc1")
ap.add_argument("--touch", type=int, default=0)
ap.add_argument("--slowmask", type=int, default=3)
ap.add_argument("--slp1", type=int, default=2)
ap.add_argument("--loadonly", type=int, default=0)
ap.add_argument("--inpol", default="nt")
ap.add_argument("--kvpol", default="")
ap.add_argument("--pol", type=int, default=1)
ap.add_argument("--swap", type=int, default=0)
ap.add_argument("--cpf", type=int, default=0)
ap.add_argument("--slowval", type=int, default=1)
ap.add_argument("--adapt", type=int, default=0)
ap.add_argument("--wwait", type=int, default=0)
ap.add_argument("--dww", type=int, default=0)
ap.add_argument("--h2prog", type=int, default=0)
ap.add_argument("--hold", type=int, default=0)
ap.add_argument("--dwo", type=int, default=0)
ap.add_argument("--wpos", type=int, default=16)
ap.add_argument("--dly4", type=int, default=4)
ap.add_argument("--pause", type=int, default=-1)
ap.add_argument("--dly1", type=int, default=16)
ap.add_argument("--dly2", type=int, default=16)
ap.add_argument("--pcl", type=int, default=1)
ap.add_argument("--dense", type=int, default=1)
ap.add_argument("--prio", type=int, default=0)
ap.add_argument("--clrpos", type=int, default=8)
args = ap.parse_args()
NT = "" if args.inpol == "none" else " " + args.inpol.replace("_", " ")
NTKV = NT if not args.kvpol else ("" if args.kvpol == "none" else " " + args.kvpol.replace("_", " "))
NTQ = " nt" if args.ntq else ""

KN = "concat_heads__compressed_kv_cla__compressed_kv_cla__decode_kernel"
out = []
def a(s): out.append("    " + s)
def lab(s): out.append(s + ":")
def c(s): out.append("    ; " + s)

QA = 0
PC = 1 << 20
Q1 = 9 << 20
C4 = 16 << 20
C4L = 17 << 20
Q1L = 15 << 20
ST = 10 << 20
FL = (10 << 20) + (256 << 10)
EP = (10 << 20) + (512 << 10)
PO = 13 << 20
STAMP = 12 << 20
WS_USED = 18 << 20
X0 = 131072
P1 = X0
QL = X0 + 16384
SY = QL + 1024
W_S1P, W_Q, W_GO2, W_S1C, W_SC, W_PROG, W_CL, W_S2C, W_QAD, W_GO3, W_PCD, W_SCL, W_HOLD = 0, 1, 2, 3, 4, 8, 16, 24, 32, 33, 34, 35, 36
SCL = SY + 256
CL = X0
P4 = X0 + 4096
CB = X0 + 12288
P5 = 16384
LDS_BYTES = 163840

sW, sP, sH, sCs, sJ = "s3", "s4", "s5", "s6", "s7"
SX, SKV, SWQ, SUK, SUV, SWO, SWS, SOUT, SDBG = ["s[%d:%d]" % (i, i + 3) for i in range(8, 44, 4)]
sSel0, sSel1 = "s44", "s45"
sWb = "s50"
sN0, sN1 = "s92", "s93"
sSent = "s94"
vLane, vR, vG = "v1", "v2", "v3"
vSY, vSYw = "v123", "v125"
def v(i, n=1): return "v%d" % i if n == 1 else "v[%d:%d]" % (i, i + n - 1)
def exec_n2():
    a("s_mov_b32 exec_lo, 0x00030003"); a("s_mov_b32 exec_hi, 0x00030003")
def exec_all(): a("s_mov_b64 exec, -1")

FINAL = [False]
ROLE = ["x"]
DS = [0]
def stamp(idx):
    if not args.stamp: return
    if args.stamp == 2 and not (idx == 0 or (idx == 8 and FINAL[0])): return
    if args.stamp == 3:
        role = ROLE[0]
        slot = {("x", 0): 0, ("f", 15): 1, ("f", 4): 2, ("f", 5): 3, ("f", 6): 4, ("f", 7): 5, ("f", 8): 6, ("f", 10): 7, ("b", 1): 8, ("b", 2): 9, ("b", 3): 10, ("b", 5): 11, ("b", 6): 12, ("b", 7): 13, ("b", 8): 14}.get((role, idx))
        if slot is None: return
        DS[0] += 1
        a("s_cmp_lg_u32 s2, 0")
        a("s_cbranch_scc1 L_ds%d" % DS[0])
        a("s_cmp_lg_u32 %s, %d" % (sW, 15 if role == "b" else 0))
        a("s_cbranch_scc1 L_ds%d" % DS[0])
        a("s_memrealtime s[56:57]")
        a("s_waitcnt lgkmcnt(0)")
        a("v_mov_b32 v127, s56")
        a("v_mov_b32 v126, 0")
        a("s_mov_b64 s[56:57], exec")
        a("s_mov_b64 exec, 1")
        a("buffer_store_dword v127, v126, %s, 0 offen offset:%d" % (SDBG, 4 * slot))
        a("s_mov_b64 exec, s[56:57]")
        lab("L_ds%d" % DS[0])
        return
    a("s_memrealtime s[56:57]")
    a("s_lshl_b32 s58, s2, 4")
    a("s_add_u32 s58, s58, %s" % sW)
    a("s_lshl_b32 s58, s58, 6")
    a("s_add_u32 s58, s58, %d" % (STAMP + 4 * idx))
    a("s_waitcnt lgkmcnt(0)")
    a("v_mov_b32 v127, s56")
    a("v_mov_b32 v126, 0")
    a("s_mov_b64 s[56:57], exec")
    a("s_mov_b64 exec, 1")
    a("buffer_store_dword v127, v126, %s, s58 offen" % SWS)
    a("s_mov_b64 exec, s[56:57]")

def cnt_stamp(idx):
    if args.stamp != 1: return
    a("s_lshl_b32 s58, s2, 4")
    a("s_add_u32 s58, s58, %s" % sW)
    a("s_lshl_b32 s58, s58, 6")
    a("s_add_u32 s58, s58, %d" % (STAMP + 4 * idx))
    a("s_sub_u32 s56, %d, s59" % args.spin)
    a("v_mov_b32 v127, s56")
    a("v_mov_b32 v126, 0")
    a("s_mov_b64 exec, 1")
    a("buffer_store_dword v127, v126, %s, s58 offen" % SWS)
    a("s_mov_b64 exec, -1")

def prologue(nwg):
    a("s_cmp_ge_u32 s2, %d" % nwg)
    a("s_cbranch_scc1 L_end")
    a("s_load_dwordx16 s[60:75], s[0:1], 0")
    a("s_load_dwordx8 s[76:83], s[0:1], 64")
    a("s_load_dwordx4 s[84:87], s[0:1], 96")
    a("s_load_dwordx2 s[88:89], s[0:1], 112")
    if args.swap: a("v_xor_b32 v0, 0x200, v0")
    a("v_and_b32 %s, 63, v0" % vLane)
    a("v_lshrrev_b32 v4, 6, v0")
    a("v_and_b32 %s, 15, v0" % vR)
    a("v_readfirstlane_b32 %s, v4" % sW)
    a("v_bfe_u32 %s, v0, 4, 2" % vG)
    a("s_and_b32 s46, s2, 7")
    a("s_lshr_b32 s47, s2, 3")
    a("s_lshr_b32 %s, s46, 2" % sP)
    a("s_and_b32 s46, s46, 3")
    a("s_lshl_b32 %s, s46, 2" % sH)
    a("s_lshr_b32 s48, s47, 3")
    a("s_add_u32 %s, %s, s48" % (sH, sH))
    a("s_and_b32 %s, s47, 7" % sCs)
    a("s_lshl_b32 %s, s46, 5" % sJ)
    a("s_add_u32 %s, %s, s47" % (sJ, sJ))
    a("s_mov_b32 %s, 0x05040100" % sSel0)
    a("s_mov_b32 %s, 0x07060302" % sSel1)
    sizes = [1792, 16777216, 3670016, 8388608, 8388608, 3670016]
    for k in range(6):
        a("s_mov_b32 s%d, %d" % (8 + 4 * k + 2, sizes[k]))
        a("s_mov_b32 s%d, 0x20000" % (8 + 4 * k + 3))
    a("s_mov_b32 s34, %d" % WS_USED); a("s_mov_b32 s35, 0x20000")
    a("s_mov_b32 s38, 3584"); a("s_mov_b32 s39, 0x20000")
    a("s_mov_b32 s42, 256"); a("s_mov_b32 s43, 0x20000")
    a("s_sub_u32 %s, %s, 8" % (sWb, sW))
    a("s_mov_b32 %s, 0xfffffffe" % sSent)
    a("v_mov_b32 %s, %d" % (vSY, SY))
    a("s_and_b32 s46, %s, 7" % sW)
    a("s_lshl_b32 s46, s46, 2")
    a("s_add_u32 s46, s46, %d" % SY)
    a("v_mov_b32 %s, s46" % vSYw)
    a("s_cmp_lg_u32 %s, 7" % sW)
    a("s_cbranch_scc1 L_noinit")
    a("v_lshl_add_u32 v4, %s, 2, %s" % (vLane, vSY))
    a("v_mov_b32 v5, 0")
    a("ds_write_b32 v4, v5")
    lab("L_noinit")
    a("s_cmp_eq_u32 %s, 0" % sP)
    a("s_waitcnt lgkmcnt(0)")
    for k in range(6):
        a("s_cselect_b64 s[%d:%d], s[%d:%d], s[%d:%d]" % (8 + 4 * k, 9 + 4 * k, 60 + 2 * k, 61 + 2 * k, 72 + 2 * k, 73 + 2 * k))
    a("s_mov_b64 s[32:33], s[88:89]")
    a("s_mov_b64 s[36:37], s[84:85]")
    a("s_mov_b64 s[40:41], s[86:87]")
    c("launch nonce = epoch word found in d_ws + 1 (only tells this launch's tags/flags from stale ones)")
    a("s_lshl_b32 s46, %s, 7" % sP)
    a("s_add_u32 s46, s46, %d" % EP)
    a("s_load_dwordx2 s[92:93], s[88:89], s46")

def nonce_ready():
    a("s_waitcnt lgkmcnt(0)")
    a("s_add_u32 %s, %s, 1" % (sN0, sN0))
    a("s_addc_u32 %s, %s, 0" % (sN1, sN1))

def perms(T, L, i):
    k, e = i >> 1, i & 1
    for jj in range(4):
        a("v_perm_b32 %s, %s, %s, %s" % (v(T + jj), v(L + 4 * (2 * jj + 1) + k), v(L + 4 * (2 * jj) + k), sSel1 if e else sSel0))

def block_mfma(L, B, D, first, T0=80, T1=84):
    Ts = [T0, T1]
    perms(Ts[0], L, 0)
    for i in range(8):
        if i < 7: perms(Ts[(i + 1) & 1], L, i + 1)
        else: a("s_nop 1")
        a("v_mfma_f32_16x16x32_bf16 %s, %s, %s, %s" % (v(D + 4 * i, 4), v(Ts[i & 1], 4), v(B, 4), "0" if first else v(D + 4 * i, 4)))

def transpose_inplace(L, t0, t1):
    def pr(jj, k): return (L + 8 * jj + k, L + 8 * jj + 4 + k)
    for jj in range(4):
        lo, hi = pr(jj, jj)
        a("v_perm_b32 %s, %s, %s, %s" % (v(t0), v(hi), v(lo), sSel0))
        a("v_perm_b32 %s, %s, %s, %s" % (v(hi), v(hi), v(lo), sSel1))
        a("v_mov_b32 %s, %s" % (v(lo), v(t0)))
    for jj in range(4):
        for k in range(jj + 1, 4):
            A0, A1 = pr(jj, k); B0, B1 = pr(k, jj)
            a("v_perm_b32 %s, %s, %s, %s" % (v(t0), v(A1), v(A0), sSel0))
            a("v_perm_b32 %s, %s, %s, %s" % (v(t1), v(A1), v(A0), sSel1))
            a("v_perm_b32 %s, %s, %s, %s" % (v(A0), v(B1), v(B0), sSel0))
            a("v_perm_b32 %s, %s, %s, %s" % (v(A1), v(B1), v(B0), sSel1))
            a("v_mov_b32 %s, %s" % (v(B0), v(t0)))
            a("v_mov_b32 %s, %s" % (v(B1), v(t1)))

def desent(regs):
    for r in regs: a("v_min_u32 %s, %s, %s" % (v(r), sSent, v(r)))

def poll_masked(name, loads, tmp=120, again=None, slp=None, adapt=0):
    n = len(loads)
    assert n <= 16
    M = lambda k: "s[%d:%d]" % (60 + 2 * k, 61 + 2 * k)
    for k in range(n): a("s_mov_b64 %s, -1" % M(k))
    a("s_mov_b32 s59, %d" % args.spin)
    lab("L_pm_%s" % name)
    for k, (emit, regs, kind) in enumerate(loads):
        a("s_mov_b64 exec, %s" % M(k))
        if n > 2: a("s_cbranch_execz L_pmsk_%s_%d" % (name, k))
        emit()
        if n > 2: lab("L_pmsk_%s_%d" % (name, k))
    exec_all()
    a("s_waitcnt vmcnt(0)")
    for k, (emit, regs, kind) in enumerate(loads):
        rs = list(regs)
        if kind == 's':
            if len(rs) == 1:
                a("v_cmp_eq_u32 %s, -1, %s" % (M(k), v(rs[0])))
            elif len(rs) == 2:
                a("v_max_u32 %s, %s, %s" % (v(tmp), v(rs[0]), v(rs[1])))
                a("v_cmp_eq_u32 %s, -1, %s" % (M(k), v(tmp)))
            else:
                a("v_max3_u32 %s, %s, %s, %s" % (v(tmp), v(rs[0]), v(rs[1]), v(rs[2])))
                a("v_max_u32 %s, %s, %s" % (v(tmp), v(tmp), v(rs[3])))
                a("v_cmp_eq_u32 %s, -1, %s" % (M(k), v(tmp)))
        else:
            a("v_xor_b32 %s, %s, %s" % (v(tmp), sN0, v(rs[-2])))
            a("v_xor_b32 %s, %s, %s" % (v(tmp + 1), sN1, v(rs[-1])))
            a("v_or_b32 %s, %s, %s" % (v(tmp), v(tmp), v(tmp + 1)))
            a("v_cmp_ne_u32 %s, 0, %s" % (M(k), v(tmp)))
    a("s_nop 1")
    if n == 1:
        a("s_cmp_eq_u64 %s, 0" % M(0))
    else:
        a("s_or_b64 s[56:57], %s, %s" % (M(0), M(1)))
        for k in range(2, n): a("s_or_b64 s[56:57], s[56:57], %s" % M(k))
        a("s_cmp_eq_u64 s[56:57], 0")
    a("s_cbranch_scc1 L_pmok_%s" % name)
    if slp is None: slp = args.sleep
    if adapt:
        a("s_bcnt1_i32_b64 s56, %s" % M(0))
        a("s_bcnt1_i32_b64 s57, %s" % M(1))
        a("s_add_u32 s56, s56, s57")
        a("s_cmp_le_u32 s56, %d" % adapt)
        a("s_cbranch_scc1 L_pmsh_%s" % name)
    if slp: a("s_sleep %d" % slp)
    if adapt:
        lab("L_pmsh_%s" % name)
        a("s_sleep 2")
    if again: again()
    a("s_sub_u32 s59, s59, 1")
    a("s_cmp_lg_u32 s59, 0")
    a("s_cbranch_scc1 L_pm_%s" % name)
    lab("L_pmok_%s" % name)

def lds_wait(name, word, target, areg=vSY, sreg="s58"):
    a("s_mov_b32 s59, 4000000")
    lab("L_lw_%s" % name)
    a("ds_read_b32 v121, %s offset:%d" % (areg, 4 * word))
    a("s_waitcnt lgkmcnt(0)")
    a("v_readfirstlane_b32 %s, v121" % sreg)
    a("s_cmp_ge_u32 %s, %d" % (sreg, target))
    a("s_cbranch_scc1 L_lwok_%s" % name)
    a("s_sleep 1")
    a("s_sub_u32 s59, s59, 1")
    a("s_cmp_lg_u32 s59, 0")
    a("s_cbranch_scc1 L_lw_%s" % name)
    lab("L_lwok_%s" % name)
def lds_add(word):
    a("v_mov_b32 v121, 1")
    a("s_mov_b64 exec, 1")
    a("ds_add_u32 %s, v121 offset:%d" % (vSY, 4 * word))
    exec_all()
def hold(bit, on):
    if not (args.hold >> bit) & 1: return
    a("v_mov_b32 v121, %d" % (1 if on else -1))
    a("s_mov_b64 exec, 1")
    a("ds_add_u32 %s, v121 offset:%d" % (vSY, 4 * W_HOLD))
    exec_all()
HC = [0]
def hold_check():
    if not args.hold: return
    HC[0] += 1
    n = HC[0]
    a("s_mov_b32 s59, 100000")
    lab("L_hc%d" % n)
    a("ds_read_b32 v121, %s offset:%d" % (vSY, 4 * W_HOLD))
    a("s_waitcnt lgkmcnt(0)")
    a("v_readfirstlane_b32 s58, v121")
    a("s_cmp_eq_u32 s58, 0")
    a("s_cbranch_scc1 L_hcok%d" % n)
    a("s_sleep 1")
    a("s_sub_u32 s59, s59, 1")
    a("s_cmp_lg_u32 s59, 0")
    a("s_cbranch_scc1 L_hc%d" % n)
    lab("L_hcok%d" % n)
def lds_set_w(word, val):
    a("v_mov_b32 v121, %d" % val)
    a("s_mov_b64 exec, 1")
    a("ds_write_b32 %s, v121 offset:%d" % (vSYw, 4 * word))
    exec_all()

def flag_store(off):
    a("s_lshl_b32 s48, %s, 7" % sP)
    a("s_add_u32 s48, s48, %s" % sJ)
    a("s_lshl_b32 s48, s48, 7")
    a("s_add_u32 s48, s48, %d" % FL)
    a("v_mov_b32 v122, 0")
    a("v_mov_b32 v120, %s" % sN0)
    a("v_mov_b32 v121, %s" % sN1)
    a("s_mov_b64 exec, 1")
    a("buffer_store_dwordx2 v[120:121], v122, %s, s48 offen offset:%d sc1" % (SWS, off))
    exec_all()
def flag_poll_all(name, off):
    a("s_lshl_b32 s48, %s, 14" % sP)
    a("s_add_u32 s48, s48, %d" % FL)
    a("s_add_u32 s49, s48, 8192")
    a("v_lshlrev_b32 v122, 7, %s" % vLane)
    poll_masked(name, [
        (lambda: a("buffer_load_dwordx2 v[116:117], v122, %s, s48 offen offset:%d sc1" % (SWS, off)), [116, 117], 't'),
        (lambda: a("buffer_load_dwordx2 v[118:119], v122, %s, s49 offen offset:%d sc1" % (SWS, off)), [118, 119], 't')])

def xlane_reduce_2to5(reg, tmp, op):
    for ror in (4, 8):
        a("s_nop 1")
        a("%s_dpp %s, %s, %s row_ror:%d row_mask:0xf bank_mask:0xf" % (op, v(reg), v(reg), v(reg), ror))
    for pop in ("v_permlane16_swap_b32", "v_permlane32_swap_b32"):
        a("v_mov_b32 %s, %s" % (v(tmp), v(reg)))
        a("s_nop 1")
        a("%s %s, %s" % (pop, v(reg), v(tmp)))
        a("s_nop 1")
        a("%s %s, %s, %s" % (op, v(reg), v(reg), v(tmp)))

def bulk_loader():
    D = args.depth
    c("w_q first (most urgent), waves 0..3: i = wb: blk = i>>1, dh = i&1 ; v4 = g*65536 + r*16 ; s63")
    a("s_lshl_b32 s51, %s, 14" % sWb)
    a("s_lshl_b32 s65, %s, 15" % sWb)
    a("v_lshlrev_b32 v4, 16, %s" % vG)
    a("v_lshl_add_u32 v4, %s, 4, v4" % vR)
    a("s_lshl_b32 s63, %s, 19" % sCs)
    a("s_bfe_u32 s49, %s, 0x10001" % sWb)
    a("s_lshl_b32 s49, s49, 18")
    a("s_add_u32 s63, s63, s49")
    a("s_lshl_b32 s49, %s, 9" % sH)
    a("s_add_u32 s63, s63, s49")
    a("s_and_b32 s49, %s, 1" % sWb)
    a("s_lshl_b32 s49, s49, 8")
    a("s_add_u32 s63, s63, s49")
    a("s_cmp_ge_u32 %s, 4" % sWb)
    a("s_cbranch_scc1 L_nowq")
    for j in range(8):
        a("s_add_u32 s49, s65, %d" % (16384 * (j >> 2) + 4096 + 1024 * (j & 3)))
        a("s_mov_b32 m0, s49")
        a("s_nop 0")
        a("buffer_load_dwordx4 v4, %s, s63 offen%s lds" % (SWQ, NT))
        a("s_add_u32 s63, s63, 8192")
    lab("L_nowq")
    def rest_addr():
        for tq in range(4):
            a("v_add_u32 v120, %d, %s" % (4 * tq, vG))
            a("v_and_b32 v121, 7, v120")
            a("v_lshlrev_b32 v121, 1, v121")
            a("v_lshrrev_b32 v126, 3, v120")
            a("v_or_b32 v121, v121, v126")
            a("v_xor_b32 v121, v121, %s" % vR)
            a("v_lshlrev_b32 v121, 4, v121")
            a("v_lshl_add_u32 %s, v120, 11, v121" % v(116 + tq))
        a("s_lshl_b32 s62, %s, 17" % sJ)
        a("s_lshl_b32 s49, %s, 8" % sWb)
        a("s_add_u32 s62, s62, s49")
        a("v_lshlrev_b32 v5, 13, %s" % vR)
        a("v_lshl_add_u32 v5, %s, 4, v5" % vG)
        a("s_lshl_b32 s64, %s, 20" % sCs)
        a("s_lshl_b32 s49, %s, 17" % sWb)
        a("s_add_u32 s64, s64, s49")
        a("s_lshl_b32 s49, %s, 9" % sH)
        a("s_add_u32 s64, s64, s49")
        a("v_lshlrev_b32 v6, 15, %s" % vG)
        a("v_lshl_add_u32 v6, %s, 4, v6" % vR)
        a("s_lshl_b32 s60, %s, 20" % sCs)
        a("s_lshr_b32 s49, %s, 1" % sWb)
        a("s_lshl_b32 s49, s49, 18")
        a("s_add_u32 s60, s60, s49")
        a("s_lshl_b32 s49, %s, 9" % sH)
        a("s_add_u32 s60, s60, s49")
        a("s_and_b32 s49, %s, 1" % sWb)
        a("s_lshl_b32 s49, s49, 8")
        a("s_add_u32 s60, s60, s49")
        a("v_mul_u32_u24 v7, 1792, %s" % vG)
        a("v_lshl_add_u32 v7, %s, 4, v7" % vR)
        a("s_lshl_b32 s61, %s, 8" % sH)
        a("s_lshl_b32 s49, %s, 5" % sCs)
        a("s_add_u32 s61, s61, s49")
        a("s_mul_i32 s61, s61, 896")
        a("s_and_b32 s53, %s, 3" % sWb)
        a("s_lshl_b32 s49, s53, 8")
        a("s_add_u32 s61, s61, s49")
        a("v_mov_b32 v9, 0x7fff0000")
        a("s_cmp_eq_u32 %s, 7" % sWb)
        a("s_cbranch_scc0 L_nomask")
        a("v_cmp_lt_u32 vcc, 7, %s" % vR)
        a("s_nop 1")
        a("v_cndmask_b32 v7, v7, v9, vcc")
        lab("L_nomask")
        a("s_barrier")

    items = []
    len_before = 0
    def dma(srd, vaddr, soff, ldsoff, post=None, inst_off=0):
        def f():
            a("s_add_u32 s49, s51, %d" % (ldsoff - inst_off))
            a("s_mov_b32 m0, s49")
            a("s_nop 0")
            a("buffer_load_dwordx4 %s, %s, %s offen%s%s lds" % (vaddr, srd, soff, (" offset:%d" % inst_off) if inst_off else "", NTKV if srd == SKV else NT))
            if post: a(post)
        return f
    rest_addr()
    c("waves 0..3: w_q landed -> progress 1")
    a("s_cmp_ge_u32 %s, 4" % sWb)
    a("s_cbranch_scc1 L_nowq2")
    a("s_waitcnt vmcnt(0)")
    lds_set_w(W_PROG, 1)
    lab("L_nowq2")
    for s_ in range(8):
        items.append([dma(SUK, "v5", "s64", 8192 + 1024 * s_, None, 64 * s_), (lambda: lds_set_w(W_PROG, 2)) if s_ == 7 else None, None])
    def clr_items():
        for up in range(4):
            def f():
                a("buffer_store_dwordx4 v[112:115], v10, %s, s65 offen sc1" % SWS)
                a("s_add_u32 s65, s65, 8192")
            items.append([f, None, None])
        items.append([lambda: a("buffer_store_dwordx4 v[112:115], v11, %s, s66 offen sc1" % SWS), None, None])
        items.append([lambda: a("buffer_store_dwordx2 v[112:113], v12, %s, s67 offen sc1" % SWS), lambda: lds_add(W_CLR), None])
    def weight_items():
        nonlocal len_before
        len_before = len(items)
        for j in range(8):
            def f(j=j):
                a("buffer_load_dwordx4 %s, v6, %s, s60 offen%s" % (v(16 + 4 * j, 4), SUV, NT))
                a("s_add_u32 s60, s60, %d" % (8192 if j != 3 else 13 * 8192))
            bf = None
            if j == 0 and args.wwait:
                def bf():
                    a("s_waitcnt vmcnt(0)")
                    complete_upto(len_before - 1)
                    if args.wwait == 1: lds_wait("wwait", W_PCD, 8)
                    else: lds_wait("wwait", W_SC, 8)
            items.append([f, (lambda: transpose_inplace(16, 112, 113)) if j == 7 else None, bf])
        for j in range(8):
            def f(j=j):
                c("w_o only for waves 4..7")
                a("s_cmp_lt_u32 %s, 4" % sWb)
                a("s_cbranch_scc1 L_nowo%d" % j)
                a("buffer_load_dwordx4 %s, v7, %s, s61 offen%s" % (v(48 + 4 * j, 4), SWO, NT))
                lab("L_nowo%d" % j)
                if j < 7:
                    a("s_add_u32 s61, s61, %d" % (8 * 896 if j != 3 else (896 - 24 * 896) & 0xffffffff))
            items.append([f, (lambda: transpose_inplace(48, 112, 113)) if j == 7 else None, None, "opt"])
    for t in range(16):
        if t == args.wpos: weight_items()
        post = "s_add_u32 s62, s62, 32768" if (t & 3 == 3 and t < 15) else None
        def done(t=t):
            lds_set_w(W_PROG, 3 + t // 4)
            if t == 15: stamp(1)
        before = None
        if t == 4: before = lambda: lds_wait("s1c", W_S1C, 4)
        if t == 8: before = lambda: lds_wait("s2c", W_S2C, 1, vSYw)
        items.append([dma(SKV, v(116 + (t & 3)), "s62", 1024 * t, post), done if t & 3 == 3 else None, before])
    if args.wpos >= 16: weight_items()
    nkv = 1 << 30
    n = len(items)
    done = -1
    def complete_upto(k):
        nonlocal done
        for q in range(done + 1, k + 1):
            if items[q][1]: items[q][1]()
        done = max(done, k)
    def youngest_cover(k, N):
        cnt = 0; q = k
        while q >= 0 and cnt < N:
            if len(items[q]) < 4: cnt += 1
            q -= 1
        return q
    for k in range(n):
        if items[k][2]: items[k][2]()
        hold_check()
        items[k][0]()
        Dk = args.dwo if (args.dwo and len(items[k]) == 4) else D
        if args.dww and len_before <= k < len_before + 8: Dk = args.dww
        if k >= D - 1:
            a("s_waitcnt vmcnt(%d)" % (Dk - 1))
            complete_upto(youngest_cover(k, Dk - 1))
    for N in range(max(D, args.dwo, args.dww) - 2, -1, -1):
        a("s_waitcnt vmcnt(%d)" % N)
        complete_upto(youngest_cover(n - 1, N))

def front():
    ROLE[0] = "f"
    c("================ FRONT waves 0..7")
    if args.prio: a("s_setprio %d" % args.prio)
    if args.cpf:
        c("wave 5 of a few workgroups pulls the kernel's own code into this XCD's L2")
        a("s_cmp_lg_u32 %s, 5" % sW)
        a("s_cbranch_scc1 L_nocpf")
        a("s_cmp_lg_u32 %s, 0" % sCs)
        a("s_cbranch_scc1 L_nocpf")
        a("s_getpc_b64 s[46:47]")
        lab("L_pcbase")
        a("s_sub_u32 s46, s46, L_pcbase-%s" % KN)
        a("s_subb_u32 s47, s47, 0")
        a("v_lshlrev_b32 v6, 4, %s" % vLane)
        for k in range(args.cpf):
            a("global_load_dwordx4 v[88:91], v6, s[46:47]")
            a("v_add_u32 v6, 1024, v6")
        lab("L_nocpf")
    a("s_barrier")
    nonce_ready()
    if args.loadonly:
        lds_add(W_S1C)
        lds_set_w(W_S2C, 1)
        a("s_endpgm")
    a("s_cmp_ge_u32 %s, 4" % sW)
    a("s_cbranch_scc1 L_nos1")
    c("S1 (waves 0..3): rows 64cs+32blk.., cols 128dh..")
    a("v_and_b32 v5, 1, %s" % vR)
    a("v_mul_u32_u24 v5, 896, v5")
    a("v_lshl_add_u32 v5, %s, 4, v5" % vG)
    a("s_lshl_b32 s46, %s, 1" % sCs)
    a("s_lshr_b32 s47, %s, 1" % sW)
    a("s_add_u32 s46, s46, s47")
    a("s_lshl_b32 s48, s46, 6")
    a("buffer_load_dwordx4 v[8:11], v5, %s, s48 offen" % SX)
    a("s_lshl_b32 s46, %s, 15" % sW)
    a("v_lshlrev_b32 v6, 4, %s" % vLane)
    a("v_add_u32 v6, s46, v6")
    a("s_lshl_b32 s48, %s, 10" % sW)
    a("s_add_u32 s48, s48, %d" % P1)
    a("v_lshlrev_b32 v7, 9, %s" % vR)
    a("v_lshl_add_u32 v7, %s, 7, v7" % vG)
    a("v_add_u32 v7, s48, v7")
    lds_wait("wq0", W_PROG, 1, vSYw)
    for j in range(4):
        a("ds_read_b128 %s, v6 offset:%d" % (v(48 + 4 * j, 4), 4096 + 1024 * j))
    for j in range(4, 8):
        a("ds_read_b128 %s, v6 offset:%d" % (v(48 + 4 * j, 4), 16384 + 4096 + 1024 * (j & 3)))
    a("s_waitcnt vmcnt(0) lgkmcnt(0)")
    stamp(14)
    lds_add(W_S1C)
    block_mfma(48, 8, 88, True)
    a("s_nop 7")
    exec_n2()
    for i in range(8):
        a("ds_write_b128 v7, %s offset:%d" % (v(88 + 4 * i, 4), 16 * i))
    exec_all()
    a("s_waitcnt lgkmcnt(0)")
    lds_add(W_S1P)
    c("waves 0,1: batch b = w: sum the two row blocks, publish 2 x 1KB of tagged granules")
    a("s_cmp_ge_u32 %s, 2" % sW)
    a("s_cbranch_scc1 L_s1done")
    a("v_bfe_u32 v6, %s, 5, 1" % vLane)
    a("v_lshlrev_b32 v6, 10, v6")
    a("v_and_b32 v7, 31, %s" % vLane)
    a("v_lshl_add_u32 v6, v7, 4, v6")
    a("s_lshl_b32 s46, %s, 9" % sW)
    a("s_add_u32 s46, s46, %d" % P1)
    a("v_add_u32 v6, s46, v6")
    a("v_lshlrev_b32 v7, 4, %s" % vLane)
    a("s_lshl_b32 s48, %s, 4" % sP)
    a("s_add_u32 s48, s48, %s" % sH)
    a("s_lshl_b32 s48, s48, 3")
    a("s_add_u32 s48, s48, %s" % sCs)
    a("s_lshl_b32 s48, s48, 12")
    a("s_lshl_b32 s46, %s, 11" % sW)
    a("s_add_u32 s48, s48, s46")
    a("s_add_u32 s48, s48, %d" % Q1)
    a("v_mov_b32 v98, %s" % sN0); a("v_mov_b32 v99, %s" % sN1)
    a("v_mov_b32 v102, %s" % sN0); a("v_mov_b32 v103, %s" % sN1)
    lds_wait("s1p", W_S1P, 4)
    a("ds_read_b128 v[88:91], v6")
    a("ds_read_b128 v[92:95], v6 offset:2048")
    a("s_waitcnt lgkmcnt(0)")
    a("v_add_f32 v96, v88, v92"); a("v_add_f32 v97, v89, v93")
    a("v_add_f32 v100, v90, v94"); a("v_add_f32 v101, v91, v95")
    if args.h1local:
        a("s_add_u32 s46, s48, %d" % (Q1L - Q1))
        a("buffer_store_dwordx4 v[96:99], v7, %s, s46 offen" % SWS)
        a("buffer_store_dwordx4 v[100:103], v7, %s, s46 offen offset:1024" % SWS)
    a("buffer_store_dwordx4 v[96:99], v7, %s, s48 offen sc1" % SWS)
    a("buffer_store_dwordx4 v[100:103], v7, %s, s48 offen offset:1024 sc1" % SWS)
    stamp(15)
    a("s_branch L_s1done")
    lab("L_nos1")
    if args.touch:
        c("pre-touch this workgroup's share of the hand-off regions (brings the lines into the memory-side cache early)")
        a("v_subrev_u32 v5, 256, v0")
        a("v_lshlrev_b32 v6, 4, v5")
        a("s_lshl_b32 s46, s2, 12")
        a("s_add_u32 s47, s46, %d" % Q1)
        a("buffer_load_dwordx4 v[88:91], v6, %s, s47 offen" % SWS)
        a("s_add_u32 s47, s46, %d" % C4)
        a("buffer_load_dwordx4 v[88:91], v6, %s, s47 offen" % SWS)
        a("s_mul_i32 s47, s2, 7168")
        a("s_add_u32 s47, s47, %d" % PO)
        a("buffer_load_dwordx4 v[88:91], v6, %s, s47 offen" % SWS)
        a("buffer_load_dwordx4 v[88:91], v6, %s, s47 offen offset:3072" % SWS)
        a("v_lshlrev_b32 v7, 2, v5")
        a("s_lshl_b32 s46, s2, 10")
        a("buffer_load_dword v88, v7, %s, s46 offen offset:%d" % (SWS, QA))
        a("s_lshl_b32 s46, s2, 8")
        a("s_add_u32 s46, s46, %d" % ST)
        a("v_and_b32 v7, 0xfc, v7")
        a("buffer_load_dword v88, v7, %s, s46 offen" % SWS)
        if args.touch >= 2:
            a("s_lshl_b32 s46, %s, 22" % sP)
            a("s_lshl_b32 s47, %s, 15" % sJ)
            a("s_add_u32 s46, s46, s47")
            a("s_add_u32 s46, s46, %d" % PC)
            for k in range(8):
                a("buffer_load_dwordx4 v[88:91], v6, %s, s46 offen" % SWS)
                a("s_add_u32 s46, s46, 4096")
    c("H1 gather by waves 4..7: thread t = tid-256 -> granule t of each of 7 partials")
    a("v_subrev_u32 v5, 256, v0")
    a("v_lshlrev_b32 v6, 4, v5")
    a("s_lshl_b32 s48, %s, 4" % sP)
    a("s_add_u32 s48, s48, %s" % sH)
    a("s_lshl_b32 s48, s48, 15")
    a("s_add_u32 s48, s48, %d" % Q1)
    for k in range(1, 7): a("s_add_u32 s%d, s48, %d" % ([0, 49, 51, 52, 53, 54, 55][k], 4096 * k))
    a("v_bfe_u32 v4, v5, 7, 1")
    a("v_lshlrev_b32 v4, 9, v4")
    a("v_bfe_u32 v7, v5, 3, 3")
    a("v_lshl_add_u32 v4, v7, 6, v4")
    a("v_bfe_u32 v7, v5, 6, 1")
    a("v_lshl_add_u32 v4, v7, 5, v4")
    a("v_and_b32 v7, 7, v5")
    a("v_lshl_add_u32 v4, v7, 1, v4")
    a("v_add_u32 v4, %d, v4" % QL)
    lds_wait("s1own", W_S1P, 4)
    stamp(11)
    if args.dly1: a("s_sleep %d" % args.dly1)
    if args.h1local:
        a("v_add_u32 v8, %d, v6" % (Q1L - Q1))
        a("v_mov_b32 v9, v6")
        a("v_mov_b32 v6, v8")
    a("s_mov_b32 s47, 0")
    a("s_lshl_b32 s46, %s, 14" % sW)
    a("v_lshlrev_b32 v10, 4, %s" % vLane)
    a("v_add_u32 v10, s46, v10")
    def h1_next():
        c("between attempts: pull w_uk out of the LDS staging as soon as it has landed")
        a("s_cmp_lg_u32 s47, 0")
        a("s_cbranch_scc1 L_h1_ukdone")
        a("ds_read_b32 v121, %s offset:%d" % (vSYw, 4 * W_PROG))
        a("s_waitcnt lgkmcnt(0)")
        a("v_readfirstlane_b32 s46, v121")
        a("s_cmp_lt_u32 s46, 2")
        a("s_cbranch_scc1 L_h1_ukdone")
        for s_ in range(8):
            a("ds_read_b128 %s, v10 offset:%d" % (v(16 + 4 * s_, 4), 8192 + 1024 * s_))
        a("s_waitcnt lgkmcnt(0)")
        lds_set_w(W_S2C, 1)
        a("s_mov_b32 s47, 1")
        lab("L_h1_ukdone")
        if args.h1local:
            c("every 4th attempt reads the write-through copy")
            a("s_and_b32 s46, s59, %d" % args.slowmask)
            a("s_cmp_eq_u32 s46, %d" % args.slowval)
            a("s_cselect_b64 vcc, -1, 0")
            a("s_nop 1")
            a("v_cndmask_b32 v6, v8, v9, vcc")
    hold(0, True)
    poll_masked("h1", [(lambda k=k: a("buffer_load_dwordx4 %s, v6, %s, s%d offen sc1" % (v(88 + 4 * k, 4), SWS, [48, 49, 51, 52, 53, 54, 55][k])), list(range(88 + 4 * k, 92 + 4 * k)), 't') for k in range(7)], again=h1_next, slp=args.slp1)
    hold(0, False)
    cnt_stamp(12)
    stamp(2)
    for e in range(2):
        a("v_add_f32 %s, %s, %s" % (v(88 + e), v(88 + e), v(92 + e)))
        a("v_add_f32 %s, %s, %s" % (v(96 + e), v(96 + e), v(100 + e)))
        a("v_add_f32 %s, %s, %s" % (v(104 + e), v(104 + e), v(108 + e)))
        a("v_add_f32 %s, %s, %s" % (v(88 + e), v(88 + e), v(96 + e)))
        a("v_add_f32 %s, %s, %s" % (v(104 + e), v(104 + e), v(112 + e)))
        a("v_add_f32 %s, %s, %s" % (v(88 + e), v(88 + e), v(104 + e)))
    a("v_cvt_pk_bf16_f32 v88, v88, v89")
    a("ds_write_b16 v4, v88")
    a("ds_write_b16_d16_hi v4, v88 offset:16")
    a("s_waitcnt lgkmcnt(0)")
    lds_add(W_Q)
    a("s_branch L_s1done2")
    lab("L_s1done")
    a("s_mov_b32 s47, 0")
    lab("L_s1done2")
    stamp(1)
    c("w_uk operand from LDS staging")
    a("s_lshl_b32 s46, %s, 14" % sW)
    a("v_lshlrev_b32 v7, 4, %s" % vLane)
    a("v_add_u32 v7, s46, v7")
    a("v_and_b32 v6, 1, %s" % vR)
    a("v_lshlrev_b32 v6, 9, v6")
    a("v_lshl_add_u32 v6, %s, 4, v6" % vG)
    a("v_add_u32 v6, %d, v6" % QL)
    a("s_cmp_lg_u32 s47, 0")
    a("s_cbranch_scc1 L_ukdone")
    lds_wait("uk", W_PROG, 2, vSYw)
    for s_ in range(8):
        a("ds_read_b128 %s, v7 offset:%d" % (v(16 + 4 * s_, 4), 8192 + 1024 * s_))
    a("s_waitcnt lgkmcnt(0)")
    lds_set_w(W_S2C, 1)
    lab("L_ukdone")
    lds_wait("q", W_Q, 4)
    stamp(3)
    c("S2")
    for s in range(8):
        a("ds_read_b128 %s, v6 offset:%d" % (v(48 + 4 * s, 4), 64 * s))
    a("v_lshlrev_b32 v6, 16, %s" % vR)
    a("v_lshl_add_u32 v6, %s, 10, v6" % vG)
    a("s_lshl_b32 s48, %s, 17" % sP)
    a("s_lshl_b32 s49, %s, 13" % sCs)
    a("s_add_u32 s48, s48, s49")
    a("s_lshl_b32 s49, %s, 6" % sH)
    a("s_add_u32 s48, s48, s49")
    a("s_and_b32 s49, %s, 1" % sW)
    a("s_lshl_b32 s49, s49, 12")
    a("s_add_u32 s48, s48, s49")
    a("s_lshr_b32 s49, %s, 1" % sW)
    a("s_lshl_b32 s49, s49, 4")
    a("s_add_u32 s48, s48, s49")
    a("s_mov_b32 s49, 0x3db8aa3b")
    a("s_waitcnt lgkmcnt(0)")
    for s in range(8):
        a("v_mfma_f32_16x16x32_bf16 v[88:91], %s, %s, %s" % (v(16 + 4 * s, 4), v(48 + 4 * s, 4), "0" if s == 0 else "v[88:91]"))
    a("s_nop 7")
    for k in range(4):
        a("v_mul_f32 %s, s49, %s" % (v(88 + k), v(88 + k)))
    a("v_cvt_pk_bf16_f32 v88, v88, v89")
    a("v_cvt_pk_bf16_f32 v89, v90, v91")
    a("v_mov_b32 v90, %s" % sN0)
    a("v_mov_b32 v91, %s" % sN1)
    exec_n2()
    a("buffer_store_dwordx4 v[88:91], v6, %s, s48 offen sc1" % SWS)
    exec_all()
    stamp(4)
    c("================ S3 address setup")
    a("s_lshl_b32 s51, %s, 14" % sW)
    a("v_and_b32 v8, 7, %s" % vR)
    a("v_lshlrev_b32 v8, 1, v8")
    a("v_lshrrev_b32 v9, 3, %s" % vR)
    a("v_or_b32 v8, v8, v9")
    a("v_lshlrev_b32 v9, 2, %s" % vG)
    a("v_xor_b32 v8, v8, v9")
    a("v_lshlrev_b32 v9, 8, %s" % vR)
    a("v_add_u32 v9, s51, v9")
    for s in range(4):
        a("v_xor_b32 v10, %d, v8" % s)
        a("v_lshl_add_u32 %s, v10, 4, v9" % v(4 + s))
    a("v_lshrrev_b32 v112, 2, %s" % vR)
    a("v_lshl_add_u32 v112, %s, 2, v112" % vG)
    a("v_and_b32 v113, 7, v112")
    a("v_lshlrev_b32 v113, 1, v113")
    a("v_lshrrev_b32 v114, 3, v112")
    a("v_or_b32 v113, v113, v114")
    a("v_bfe_u32 v114, %s, 1, 1" % vR)
    a("v_xor_b32 v113, v113, v114")
    a("v_lshlrev_b32 v113, 4, v113")
    a("v_and_b32 v114, 1, %s" % vR)
    a("v_lshl_add_u32 v113, v114, 3, v113")
    a("v_lshl_add_u32 v113, v112, 8, v113")
    a("v_add_u32 v113, s51, v113")
    for t in range(8):
        a("v_xor_b32 %s, %d, v113" % (v(8 + t), 32 * t))
    a("v_lshlrev_b32 v113, 4, %s" % vLane)
    a("v_add_u32 v114, 65536, v113")
    a("v_add_u32 v112, s51, v113")
    c("H2 gather: 8 x 1KB tagged granules; lane (h,g) gets c = 32g + 4*s2..")
    a("s_lshr_b32 s48, %s, 6" % sJ)
    a("s_lshl_b32 s49, %s, 1" % sP)
    a("s_add_u32 s48, s48, s49")
    a("s_lshl_b32 s48, s48, 3")
    a("s_add_u32 s48, s48, %s" % sW)
    a("s_lshl_b32 s48, s48, 13")
    a("s_add_u32 s49, s48, 4096")
    a("v_lshlrev_b32 v124, 6, %s" % vR)
    a("v_lshl_add_u32 v124, %s, 4, v124" % vG)
    if args.dly2: a("s_sleep %d" % args.dly2)
    if args.h2prog: lds_wait("h2p", W_PROG, args.h2prog, vSYw)
    hold(1, True)
    poll_masked("h2", [(lambda k=k: a("buffer_load_dwordx4 %s, v124, %s, %s offen offset:%d sc1" % (v(80 + 4 * k, 4), SWS, "s48" if k < 4 else "s49", QA + 1024 * (k & 3))), list(range(80 + 4 * k, 84 + 4 * k)), 't') for k in range(8)], slp=args.sleep2)
    hold(1, False)
    cnt_stamp(13)
    for k in range(8):
        a("v_mov_b32 %s, %s" % (v(16 + 2 * k), v(80 + 4 * k)))
        a("v_mov_b32 %s, %s" % (v(17 + 2 * k), v(81 + 4 * k)))
    lds_add(W_GO2)
    stamp(5)
    for T in range(4):
        lds_wait("tile%d" % T, W_PROG, T + 3, vSYw)
        for s_ in range(4):
            a("ds_read_b128 %s, %s offset:%d" % (v(32 + 4 * s_, 4), v(4 + s_), 4096 * T))
        if T == 1:
            c("V^T operands for u=0 (tiles 0,1) -> v[80:111]")
            for t in range(4):
                for jh in range(2):
                    a("ds_read_b64_tr_b16 %s, %s offset:%d" % (v(80 + 4 * t + 2 * jh, 2), v(8 + t), 4096 * jh))
            a("s_waitcnt lgkmcnt(8)")
        elif T == 2:
            for t in range(4, 8):
                for jh in range(2):
                    a("ds_read_b64_tr_b16 %s, %s offset:%d" % (v(80 + 4 * t + 2 * jh, 2), v(8 + t), 4096 * jh))
            a("s_waitcnt lgkmcnt(8)")
        else:
            a("s_waitcnt lgkmcnt(0)")
        for s_ in range(4):
            a("v_mfma_f32_16x16x32_bf16 %s, %s, %s, %s" % (v(64 + 4 * T, 4), v(32 + 4 * s_, 4), v(16 + 4 * s_, 4), "0" if s_ == 0 else v(64 + 4 * T, 4)))
    c("partial scores of all 4 tiles -> own slab's tile-0 region (fully consumed)")
    a("s_nop 7")
    for T in range(4):
        a("ds_write_b128 v112, %s offset:%d" % (v(64 + 4 * T, 4), 1024 * T))
    a("s_waitcnt lgkmcnt(0)")
    lds_add(W_SC)
    lds_wait("sc", W_SC, 8)
    stamp(6)
    c("reduce-scatter: wave w sums (tile w>>1, reg pair w&1) over the 8 partials; then all-gather")
    a("s_lshr_b32 s46, %s, 1" % sW)
    a("s_lshl_b32 s46, s46, 10")
    a("s_and_b32 s47, %s, 1" % sW)
    a("s_lshl_b32 s47, s47, 3")
    a("s_add_u32 s46, s46, s47")
    a("v_add_u32 v115, s46, v113")
    a("v_add_u32 v116, s46, v114")
    for k in range(8):
        a("ds_read_b64 %s, %s offset:%d" % (v(16 + 2 * k, 2), "v115" if k < 4 else "v116", 16384 * (k & 3)))
    a("v_add_u32 v117, %d, v115" % X0)
    a("v_add_u32 v118, %d, v113" % X0)
    a("s_waitcnt lgkmcnt(0)")
    for e in range(2):
        a("v_add_f32 %s, %s, %s" % (v(16 + e), v(16 + e), v(18 + e)))
        a("v_add_f32 %s, %s, %s" % (v(20 + e), v(20 + e), v(22 + e)))
        a("v_add_f32 %s, %s, %s" % (v(24 + e), v(24 + e), v(26 + e)))
        a("v_add_f32 %s, %s, %s" % (v(28 + e), v(28 + e), v(30 + e)))
        a("v_add_f32 %s, %s, %s" % (v(16 + e), v(16 + e), v(20 + e)))
        a("v_add_f32 %s, %s, %s" % (v(24 + e), v(24 + e), v(28 + e)))
        a("v_add_f32 %s, %s, %s" % (v(16 + e), v(16 + e), v(24 + e)))
    a("ds_write_b64 v117, v[16:17]")
    a("s_waitcnt lgkmcnt(0)")
    lds_add(W_SC + 1)
    lds_wait("sc2", W_SC + 1, 8)
    for T in range(4):
        a("ds_read_b128 %s, v118 offset:%d" % (v(64 + 4 * T, 4), 1024 * T))
    a("s_waitcnt lgkmcnt(0)")
    a("v_max3_f32 v48, v64, v65, v66")
    for k in range(67, 79, 2):
        a("v_max3_f32 v48, v48, %s, %s" % (v(k), v(k + 1)))
    a("v_max_f32 v48, v48, v79")
    for op in ("v_permlane32_swap_b32", "v_permlane16_swap_b32"):
        a("v_mov_b32 v49, v48")
        a("s_nop 1")
        a("%s v48, v49" % op)
        a("s_nop 1")
        a("v_max_f32 v48, v48, v49")
    for k in range(16):
        a("v_sub_f32 %s, %s, v48" % (v(64 + k), v(64 + k)))
    for k in range(16):
        a("v_exp_f32 %s, %s" % (v(64 + k), v(64 + k)))
    a("s_nop 0")
    for u in range(2):
        for q in range(4):
            a("v_cvt_pk_bf16_f32 %s, %s, %s" % (v(52 + 4 * u + q), v(64 + 8 * u + 2 * q), v(64 + 8 * u + 2 * q + 1)))
    a("s_nop 1")
    for t in range(8):
        a("v_mfma_f32_16x16x32_bf16 %s, %s, v[52:55], 0" % (v(16 + 4 * t, 4), v(80 + 4 * t, 4)))
        for jh in range(2):
            a("ds_read_b64_tr_b16 %s, %s offset:%d" % (v(80 + 4 * t + 2 * jh, 2), v(8 + t), 8192 + 4096 * jh))
    c("row sum while the u=1 operands arrive")
    a("v_add_f32 v49, v64, v65")
    for k in range(66, 80):
        a("v_add_f32 v49, v49, %s" % v(k))
    for op in ("v_permlane32_swap_b32", "v_permlane16_swap_b32"):
        a("v_mov_b32 v50, v49")
        a("s_nop 1")
        a("%s v49, v50" % op)
        a("s_nop 1")
        a("v_add_f32 v49, v49, v50")
    if args.pcl == 0:
        a("v_lshlrev_b32 v6, 18, %s" % vR)
        a("v_lshl_add_u32 v6, %s, 4, v6" % vG)
        a("s_lshl_b32 s48, %s, 22" % sP)
        a("s_lshl_b32 s49, %s, 15" % sW)
        a("s_add_u32 s48, s48, s49")
        a("s_lshl_b32 s49, %s, 6" % sJ)
        a("s_add_u32 s48, s48, s49")
        a("s_add_u32 s48, s48, %d" % PC)
    else:
        a("v_lshlrev_b32 v6, 6, %s" % vR)
        a("v_lshl_add_u32 v6, %s, 4, v6" % vG)
        a("s_lshl_b32 s48, %s, 22" % sP)
        a("s_lshl_b32 s49, %s, 15" % sJ)
        a("s_add_u32 s48, s48, s49")
        a("s_lshl_b32 s49, %s, 12" % sW)
        a("s_add_u32 s48, s48, s49")
        a("s_add_u32 s48, s48, %d" % PC)
    a("s_waitcnt lgkmcnt(0)")
    for t in range(8):
        a("v_mfma_f32_16x16x32_bf16 %s, %s, v[56:59], %s" % (v(16 + 4 * t, 4), v(80 + 4 * t, 4), v(16 + 4 * t, 4)))
    hold(2, True)
    a("s_nop 3")
    for up in range(4):
        for q in range(4):
            a("v_cvt_pk_bf16_f32 %s, %s, %s" % (v(80 + 4 * up + q), v(16 + 8 * up + 2 * q), v(16 + 8 * up + 2 * q + 1)))
        a("buffer_store_dwordx4 %s, v6, %s, s48 offen sc1" % (v(80 + 4 * up, 4), SWS))
        a("s_add_u32 s48, s48, %d" % (8192 if args.pcl == 0 else 1024))
    c("payload addresses for the H3 gather: wave w' = (u' = w'>>1, b = w'&1)")
    a("s_lshl_b32 s52, %s, 22" % sP)
    a("s_and_b32 s49, %s, 1" % sW)
    a("s_lshl_b32 s49, s49, 21")
    a("s_add_u32 s52, s52, s49")
    a("s_lshl_b32 s49, %s, 2" % sCs)
    a("s_lshr_b32 s53, %s, 1" % sW)
    a("s_add_u32 s49, s49, s53")
    a("s_lshl_b32 s49, s49, 10")
    a("s_add_u32 s52, s52, s49")
    a("s_lshl_b32 s49, %s, 6" % sH)
    a("s_add_u32 s52, s52, s49")
    a("s_add_u32 s52, s52, %d" % PC)
    a("v_lshrrev_b32 v5, 2, %s" % vLane)
    a("v_lshlrev_b32 v7, 2, v5")
    a("v_lshlrev_b32 v5, 15, v5")
    a("v_and_b32 v4, 3, %s" % vLane)
    a("v_lshl_add_u32 v5, v4, 4, v5")
    a("s_and_b32 s49, %s, 1" % sW)
    a("s_lshl_b32 s49, s49, 8")
    a("s_add_u32 s49, s49, %d" % SCL)
    a("v_add_u32 v7, s49, v7")
    a("v_lshlrev_b32 v6, 4, %s" % vLane)
    a("s_waitcnt vmcnt(0)")
    hold(2, False)
    lds_add(W_PCD)
    stamp(7)
    a("s_cmp_lg_u32 %s, 0" % sW)
    a("s_cbranch_scc1 L_s3_nostat")
    c("wave 0: all partial-ctx stores drained -> stats granules {m,l,nonce} double as the H3 flags")
    a("v_lshlrev_b32 v8, 11, %s" % vR)
    a("s_lshl_b32 s48, %s, 15" % sP)
    a("s_lshl_b32 s49, %s, 4" % sJ)
    a("s_add_u32 s48, s48, s49")
    a("s_add_u32 s48, s48, %d" % ST)
    a("v_mov_b32 v50, %s" % sN0)
    a("v_mov_b32 v51, %s" % sN1)
    lds_wait("pcd", W_PCD, 8)
    a("s_mov_b64 exec, 0xffff")
    a("buffer_store_dwordx4 v[48:51], v8, %s, s48 offen sc1" % SWS)
    exec_all()
    lab("L_s3_nostat")
    a("s_cmp_lg_u32 %s, 7" % sW)
    a("s_cbranch_scc1 L_nopoll3")
    c("wave 7: poll the 128 stats granules of head h; lane l has producers l (b=0) and 64+l (b=1)")
    a("s_lshl_b32 s48, %s, 4" % sP)
    a("s_add_u32 s48, s48, %s" % sH)
    a("s_lshl_b32 s48, s48, 11")
    a("s_add_u32 s48, s48, %d" % ST)
    poll_masked("h3s", [(lambda k=k: a("buffer_load_dwordx4 %s, v6, %s, s48 offen offset:%d sc1" % (v(64 + 4 * k, 4), SWS, 1024 * k)), list(range(64 + 4 * k, 68 + 4 * k)), 't') for k in range(2)], slp=args.sleep3, adapt=args.adapt)
    lds_add(W_GO3)
    lab("L_nopoll3")
    lds_wait("go3", W_GO3, 1)
    stamp(8)
    for k in range(4):
        a("buffer_load_dwordx4 %s, v5, %s, s52 offen sc1" % (v(16 + 4 * k, 4), SWS))
        a("s_add_u32 s52, s52, %d" % (16 * 32768))
    a("s_cmp_lg_u32 %s, 7" % sW)
    a("s_cbranch_scc1 L_noscl")
    c("wave 7: scales 2^(m-M)/L for all 128 producers -> LDS")
    for b in range(2):
        m = 64 + 4 * b
        a("v_mov_b32 v80, %s" % v(m))
        for q in ("quad_perm:[1,0,3,2]", "quad_perm:[2,3,0,1]"):
            a("s_nop 1")
            a("v_max_f32_dpp v80, v80, v80 %s row_mask:0xf bank_mask:0xf" % q)
        xlane_reduce_2to5(80, 84, "v_max_f32")
        a("v_sub_f32 %s, %s, v80" % (v(m), v(m)))
        a("v_exp_f32 %s, %s" % (v(m), v(m)))
        a("s_nop 0")
        a("v_mul_f32 v81, %s, %s" % (v(m), v(m + 1)))
        for q in ("quad_perm:[1,0,3,2]", "quad_perm:[2,3,0,1]"):
            a("s_nop 1")
            a("v_add_f32_dpp v81, v81, v81 %s row_mask:0xf bank_mask:0xf" % q)
        xlane_reduce_2to5(81, 84, "v_add_f32")
        a("v_rcp_f32 v81, v81")
        a("s_nop 0")
        a("v_mul_f32 %s, %s, v81" % (v(m), v(m)))
    a("v_lshlrev_b32 v8, 2, %s" % vLane)
    a("v_add_u32 v8, %d, v8" % SCL)
    a("ds_write_b32 v8, v64")
    a("ds_write_b32 v8, v68 offset:256")
    a("s_waitcnt lgkmcnt(0)")
    lds_add(W_SCL)
    lab("L_noscl")
    lds_wait("scl", W_SCL, 1)
    for k in range(4):
        a("ds_read_b32 %s, v7 offset:%d" % (v(64 + k), 64 * k))
    a("v_and_b32 v6, 3, %s" % vLane)
    a("v_lshlrev_b32 v6, 4, v6")
    a("v_bfe_u32 v7, %s, 5, 1" % vLane)
    a("v_lshl_add_u32 v6, v7, 3, v6")
    a("v_bfe_u32 v7, %s, 4, 1" % vLane)
    a("v_lshl_add_u32 v6, v7, 2, v6")
    a("s_lshl_b32 s48, %s, 6" % sW)
    a("s_add_u32 s48, s48, %d" % CL)
    a("v_add_u32 v6, s48, v6")
    a("s_lshr_b32 s46, %s, 1" % sW)
    a("s_lshl_b32 s46, s46, 2")
    a("s_add_u32 s46, s46, %d" % SY)
    a("v_mov_b32 v122, s46")
    a("s_waitcnt vmcnt(0) lgkmcnt(0)")
    stamp(9)
    for k in range(4):
        for q in range(4):
            a("v_lshlrev_b32 v84, 16, %s" % v(16 + 4 * k + q))
            a("v_and_b32 v85, 0xffff0000, %s" % v(16 + 4 * k + q))
            op = "v_mul_f32" if k == 0 else "v_fmac_f32"
            a("%s %s, v84, %s" % (op, v(88 + 2 * q), v(64 + k)))
            a("%s %s, v85, %s" % (op, v(88 + 2 * q + 1), v(64 + k)))
    a("s_nop 1")
    for j in range(4):
        a("v_permlane32_swap_b32 %s, %s" % (v(88 + j), v(92 + j)))
    a("s_nop 1")
    for j in range(4):
        a("v_add_f32 %s, %s, %s" % (v(88 + j), v(88 + j), v(92 + j)))
    a("s_nop 1")
    for j in range(2):
        a("v_permlane16_swap_b32 %s, %s" % (v(88 + j), v(90 + j)))
    a("s_nop 1")
    for j in range(2):
        a("v_add_f32 %s, %s, %s" % (v(88 + j), v(88 + j), v(90 + j)))
    for ror in (4, 8):
        a("s_nop 1")
        for j in range(2):
            a("v_add_f32_dpp %s, %s, %s row_ror:%d row_mask:0xf bank_mask:0xf" % (v(88 + j), v(88 + j), v(88 + j), ror))
    a("v_cvt_pk_bf16_f32 v88, v88, v89")
    a("s_mov_b32 exec_lo, 0x000f000f"); a("s_mov_b32 exec_hi, 0x000f000f")
    a("ds_write_b32 v6, v88")
    exec_all()
    a("s_waitcnt lgkmcnt(0)")
    a("v_mov_b32 v121, 1")
    a("s_mov_b64 exec, 1")
    a("ds_add_u32 v122, v121 offset:%d" % (4 * W_CL))
    exec_all()
    stamp(10)
    a("s_endpgm")

def back():
    ROLE[0] = "b"
    c("================ BACK waves 8..15")
    bulk_loader()
    nonce_ready()
    stamp(2)
    if args.loadonly: a("s_endpgm")
    a("v_and_b32 v6, 1, %s" % vR)
    a("v_lshlrev_b32 v6, 6, v6")
    a("v_lshl_add_u32 v6, %s, 4, v6" % vG)
    a("s_lshr_b32 s46, %s, 1" % sWb)
    a("s_lshl_b32 s48, s46, 7")
    a("s_add_u32 s48, s48, %d" % CL)
    a("v_add_u32 v6, s48, v6")
    a("s_lshl_b32 s46, s46, 2")
    a("s_add_u32 s46, s46, %d" % SY)
    a("v_mov_b32 v122, s46")
    a("v_lshlrev_b32 v8, 9, %s" % vR)
    a("v_lshl_add_u32 v8, %s, 7, v8" % vG)
    a("s_lshl_b32 s48, %s, 10" % sWb)
    a("s_add_u32 s48, s48, %d" % P4)
    a("v_add_u32 v8, s48, v8")
    c("H4 addresses")
    a("s_lshl_b32 s52, %s, 4" % sP)
    a("s_add_u32 s52, s52, %s" % sH)
    a("s_lshl_b32 s52, s52, 15")
    lds_wait("cl", W_CL, 2, "v122")
    stamp(3)
    c("================ S4")
    a("ds_read_b128 v[4:7], v6")
    a("s_waitcnt lgkmcnt(0)")
    for i in range(8):
        a("v_mfma_f32_16x16x32_bf16 %s, %s, v[4:7], 0" % (v(80 + 4 * i, 4), v(16 + 4 * i, 4)))
    a("s_nop 7")
    exec_n2()
    for i in range(8):
        a("ds_write_b128 v8, %s offset:%d" % (v(80 + 4 * i, 4), 16 * i))
    exec_all()
    a("s_waitcnt lgkmcnt(0)")
    a("s_barrier")
    a("s_cmp_ge_u32 %s, 4" % sWb)
    a("s_cbranch_scc1 L_s5")
    c("waves 0..3: thread t<256 = granule (dhalf,g,b,i,half): sum 4 k-blocks, publish both copies")
    a("v_subrev_u32 v5, 512, v0")
    a("v_bfe_u32 v6, v5, 7, 1")
    a("v_lshlrev_b32 v6, 10, v6")
    a("v_bfe_u32 v7, v5, 4, 1")
    a("v_lshl_add_u32 v6, v7, 9, v6")
    a("v_bfe_u32 v7, v5, 5, 2")
    a("v_lshl_add_u32 v6, v7, 7, v6")
    a("v_and_b32 v7, 15, v5")
    a("v_lshl_add_u32 v6, v7, 3, v6")
    a("v_add_u32 v6, %d, v6" % P4)
    for k in range(4):
        a("ds_read_b64 %s, v6 offset:%d" % (v(16 + 2 * k, 2), 2048 * k))
    a("v_lshlrev_b32 v5, 4, v5")
    a("s_lshl_b32 s48, %s, 12" % sCs)
    a("s_add_u32 s48, s48, s52")
    a("s_add_u32 s49, s48, %d" % C4L)
    a("s_add_u32 s48, s48, %d" % C4)
    a("v_mov_b32 v26, %s" % sN0); a("v_mov_b32 v27, %s" % sN1)
    a("s_waitcnt lgkmcnt(0)")
    a("v_add_f32 v16, v16, v18"); a("v_add_f32 v17, v17, v19")
    a("v_add_f32 v20, v20, v22"); a("v_add_f32 v21, v21, v23")
    a("v_add_f32 v24, v16, v20"); a("v_add_f32 v25, v17, v21")
    a("buffer_store_dwordx4 v[24:27], v5, %s, s49 offen" % SWS)
    a("buffer_store_dwordx4 v[24:27], v5, %s, s48 offen sc1" % SWS)
    stamp(4)
    a("s_endpgm")
    lab("L_s5")
    c("================ waves 4..7: H4 gather (8 producers x 512B for d-slice cs), S5 for m-block mb")
    a("v_lshrrev_b32 v6, 5, %s" % vLane)
    a("v_lshlrev_b32 v6, 12, v6")
    a("v_and_b32 v7, 31, %s" % vLane)
    a("v_lshl_add_u32 v6, v7, 4, v6")
    a("v_add_u32 v8, %d, v6" % (C4L - C4))
    a("v_mov_b32 v9, v6")
    a("v_mov_b32 v6, v8")
    a("s_lshl_b32 s48, %s, 9" % sCs)
    a("s_add_u32 s48, s48, s52")
    a("s_add_u32 s48, s48, %d" % C4)
    for k in range(1, 4): a("s_add_u32 s%d, s48, %d" % ([0, 49, 51, 53][k], 8192 * k))
    a("s_and_b32 s46, %s, 3" % sWb)
    a("s_lshl_b32 s47, s46, 7")
    a("s_add_u32 s47, s47, %d" % CB)
    a("v_lshlrev_b32 v10, 2, v7")
    a("v_add_u32 v10, s47, v10")
    a("v_and_b32 v11, 1, %s" % vR)
    a("v_lshlrev_b32 v11, 6, v11")
    a("v_lshl_add_u32 v11, %s, 4, v11" % vG)
    a("v_add_u32 v11, s47, v11")
    a("s_lshl_b32 s47, s46, 10")
    a("s_add_u32 s47, s47, %d" % P5)
    a("v_lshlrev_b32 v12, 9, %s" % vR)
    a("v_lshl_add_u32 v12, %s, 7, v12" % vG)
    a("v_add_u32 v12, s47, v12")
    a("v_lshlrev_b32 v13, 4, %s" % vLane)
    a("v_add_u32 v13, s47, v13")
    a("s_lshl_b32 s47, s46, 5")
    a("v_add_u32 v14, s47, v7")
    a("v_cmp_gt_u32 vcc, 112, v14")
    a("v_lshrrev_b32 v15, 5, %s" % vLane)
    a("v_mul_u32_u24 v15, 112, v15")
    a("v_add_u32 v14, v14, v15")
    a("v_lshlrev_b32 v14, %d, v14" % (4 if args.pol else 5))
    a("v_mov_b32 v15, 0x7fff0000")
    a("v_cndmask_b32 v14, v15, v14, vcc")
    a("s_lshl_b32 s54, %s, 7" % sP)
    a("s_add_u32 s54, s54, %s" % sJ)
    a("s_mul_i32 s54, s54, 7168")
    a("s_add_u32 s54, s54, %d" % PO)
    if args.dly4: a("s_sleep %d" % args.dly4)
    def h4_next():
        a("s_and_b32 s46, s59, %d" % args.slowmask)
        a("s_cmp_eq_u32 s46, %d" % args.slowval)
        a("s_cselect_b64 vcc, -1, 0")
        a("s_nop 1")
        a("v_cndmask_b32 v6, v8, v9, vcc")
    poll_masked("h4", [(lambda k=k: a("buffer_load_dwordx4 %s, v6, %s, s%d offen sc1" % (v(16 + 4 * k, 4), SWS, [48, 49, 51, 53][k])), list(range(16 + 4 * k, 20 + 4 * k)), 't') for k in range(4)], again=h4_next, slp=args.slp1)
    stamp(5)
    for e in range(2):
        a("v_add_f32 %s, %s, %s" % (v(16 + e), v(16 + e), v(20 + e)))
        a("v_add_f32 %s, %s, %s" % (v(24 + e), v(24 + e), v(28 + e)))
        a("v_add_f32 %s, %s, %s" % (v(16 + e), v(16 + e), v(24 + e)))
        a("v_mov_b32 v20, %s" % v(16 + e))
        a("s_nop 1")
        a("v_permlane32_swap_b32 %s, v20" % v(16 + e))
        a("s_nop 1")
        a("v_add_f32 %s, %s, v20" % (v(16 + e), v(16 + e)))
    a("v_cvt_pk_bf16_f32 v16, v16, v17")
    a("ds_write_b32 v10, v16")
    a("s_waitcnt lgkmcnt(0)")
    a("ds_read_b128 v[4:7], v11")
    a("s_waitcnt lgkmcnt(0)")
    for i in range(8):
        a("v_mfma_f32_16x16x32_bf16 %s, %s, v[4:7], 0" % (v(80 + 4 * i, 4), v(48 + 4 * i, 4)))
    a("v_mov_b32 v34, %s" % sN0); a("v_mov_b32 v35, %s" % sN1)
    a("v_mov_b32 v38, %s" % sN0); a("v_mov_b32 v39, %s" % sN1)
    a("s_nop 5")
    exec_n2()
    for i in range(8):
        a("ds_write_b128 v12, %s offset:%d" % (v(80 + 4 * i, 4), 16 * i))
    exec_all()
    a("s_waitcnt lgkmcnt(0)")
    a("ds_read_b128 v[16:19], v13")
    a("s_waitcnt lgkmcnt(0)")
    a("v_mov_b32 v32, v16"); a("v_mov_b32 v33, v17"); a("v_mov_b32 v36, v18"); a("v_mov_b32 v37, v19")
    a("buffer_store_dwordx4 v[32:35], v14, %s, s54 offen sc1" % SWS)
    a("buffer_store_dwordx4 v[36:39], v14, %s, s54 offen offset:%d sc1" % (SWS, 3584 if args.pol else 16))
    stamp(6)
    a("s_cmp_lg_u32 %s, 7" % sWb)
    a("s_cbranch_scc1 L_end")
    a("s_cmp_ge_u32 %s, 56" % sJ)
    a("s_cbranch_scc1 L_end")
    FINAL[0] = True
    c("lane = (producer sub 8, granule 8); 16 loads x 8 producers; 128B per producer")
    a("v_lshrrev_b32 v6, 3, %s" % vLane)
    a("v_mul_u32_u24 v6, 7168, v6")
    a("v_and_b32 v7, 7, %s" % vLane)
    if args.pol:
        a("v_and_b32 v8, 1, v7")
        a("v_mul_u32_u24 v8, 3584, v8")
        a("v_add_u32 v6, v6, v8")
        a("v_lshrrev_b32 v8, 1, v7")
        a("v_lshl_add_u32 v6, v8, 4, v6")
    else:
        a("v_lshl_add_u32 v6, v7, 4, v6")
    a("s_mul_i32 s48, %s, %d" % (sP, 128 * 7168))
    a("s_lshl_b32 s49, %s, %d" % (sJ, 6 if args.pol else 7))
    a("s_add_u32 s48, s48, s49")
    a("s_add_u32 s48, s48, %d" % PO)
    a("s_cmp_ge_u32 %s, 28" % sJ)
    a("s_cselect_b32 s49, 28, 0")
    a("s_cselect_b32 s51, 896, 0")
    a("s_sub_u32 s49, %s, s49" % sJ)
    a("s_lshl_b32 s49, s49, 4")
    a("s_and_b32 s52, s49, 0xffe0")
    a("s_lshr_b32 s49, s49, 2")
    a("s_and_b32 s49, s49, 7")
    a("s_add_u32 s52, s52, s49")
    a("s_add_u32 s52, s52, s51")
    a("s_mul_i32 s49, %s, 448" % sP)
    a("s_add_u32 s52, s52, s49")
    a("s_lshl_b32 s52, s52, 1")
    a("v_lshrrev_b32 v8, 1, v7")
    a("v_lshlrev_b32 v8, 1, v8")
    a("v_and_b32 v7, 1, v7")
    a("v_lshl_add_u32 v7, v7, 5, v8")
    def ld5(k):
        a("s_add_u32 s49, s48, %d" % (8 * 7168 * k))
        a("buffer_load_dwordx4 %s, v6, %s, s49 offen sc1" % (v(16 + 4 * k, 4), SWS))
    d5 = args.dly5
    while d5 > 0:
        a("s_sleep %d" % min(d5, 127)); d5 -= 127
    poll_masked("h5", [(lambda k=k: ld5(k), list(range(16 + 4 * k, 20 + 4 * k)), 't') for k in range(16)], slp=args.sleep5)
    stamp(7)
    for st in (8, 4, 2, 1):
        for k in range(st):
            for e in range(2):
                a("v_add_f32 %s, %s, %s" % (v(16 + 4 * k + e), v(16 + 4 * k + e), v(16 + 4 * (k + st) + e)))
    for e in range(2):
        a("s_nop 1")
        a("v_add_f32_dpp %s, %s, %s row_ror:8 row_mask:0xf bank_mask:0xf" % (v(16 + e), v(16 + e), v(16 + e)))
        for pop in ("v_permlane16_swap_b32", "v_permlane32_swap_b32"):
            a("v_mov_b32 v20, %s" % v(16 + e))
            a("s_nop 1")
            a("%s %s, v20" % (pop, v(16 + e)))
            a("s_nop 1")
            a("v_add_f32 %s, %s, v20" % (v(16 + e), v(16 + e)))
    a("v_cvt_pk_bf16_f32 v16, v16, v17")
    a("s_mov_b64 exec, 0xff")
    a("buffer_store_short v16, v7, %s, s52 offen" % SOUT)
    a("buffer_store_short_d16_hi v16, v7, %s, s52 offen offset:16" % SOUT)
    a("s_cmp_lg_u32 %s, 0" % sJ)
    a("s_cbranch_scc1 L_noep")
    c("advance the epoch word for a later launch on the same workspace")
    a("s_lshl_b32 s46, %s, 7" % sP)
    a("s_add_u32 s46, s46, %d" % EP)
    a("v_mov_b32 v20, %s" % sN0)
    a("v_mov_b32 v21, %s" % sN1)
    a("v_mov_b32 v22, 0")
    a("s_mov_b64 exec, 1")
    a("buffer_store_dwordx2 v[20:21], v22, %s, s46 offen sc1" % SWS)
    lab("L_noep")
    exec_all()
    stamp(8)

hdr = [l for l in open("concat_heads__compressed_kv_cla__compressed_kv_cla__decode.s.ref").read().split("\n") if l.startswith(";") and "@launch" not in l]
out.extend(hdr)
out.append("; @launch grid=(256,1,1) block=(1024,1,1) lds=%d" % LDS_BYTES)
out.extend("""; ---------------------------------------------------------------------------------------------
; MLA decode with weight absorption (generated by exp/gen9.py), one persistent launch, 1 WG per CU.
;   S1 q = x.Wq | S2 q_abs = q.Wuk^T | S3 flash-decoding over c_kv (true running max per split,
;   exact rescale at combine) | S4 ctx = ctx_c.Wuv | S5 out = ctx.Wo | cross-WG sum.
;   waves 8..15: paced input stream (LDS-DMA / registers), S4, S5.   waves 0..7: S1, S2, S3, gathers.
;   Hand-offs between workgroups go through d_ws with write-through stores; payloads/flags carry a
;   64-bit launch nonce (epoch word found in d_ws + 1) so stale words of earlier launches never match.
;   Same-L2 copies (plain stores) are only a faster path; the write-through copy is always there too.
;   Every spin is bounded.  s_sleep is used only as poll back-off.
; ---------------------------------------------------------------------------------------------""".split("\n"))
out.extend(['.amdgcn_target "amdgcn-amd-amdhsa--gfx950"', ".text"])
out.extend([".globl %s" % KN, ".p2align 8", ".type %s,@function" % KN, KN + ":"])
prologue(256)
stamp(0)
a("s_cmp_ge_u32 %s, 8" % sW)
a("s_cbranch_scc1 L_back")
front()
lab("L_back")
back()
lab("L_end"); a("s_endpgm")
out.extend(['.section .rodata,"a"', ".p2align 6", ".amdhsa_kernel %s" % KN,
    "  .amdhsa_next_free_vgpr 128", "  .amdhsa_next_free_sgpr 96", "  .amdhsa_accum_offset 128",
    "  .amdhsa_group_segment_fixed_size 0", "  .amdhsa_kernarg_size 120", "  .amdhsa_user_sgpr_count 2",
    "  .amdhsa_user_sgpr_kernarg_segment_ptr 1", "  .amdhsa_system_sgpr_workgroup_id_x 1", ".end_amdhsa_kernel"])
txt = "\n".join(out)
import re
if args.stp != "sc1":
    txt = re.sub(r"(buffer_store_\w+ [^\n]*) sc1", lambda m: m.group(1) + " " + args.stp.replace("_", " "), txt)
if args.ldp != "sc1":
    txt = re.sub(r"(buffer_load_\w+ [^\n]*) sc1", lambda m: m.group(1) + " " + args.ldp.replace("_", " "), txt)
print(txt)
```
